```python
import torch

def _softmax(x, axis=-1):
    return torch.softmax(x, dim=axis)

def _gelu(x):
    return torch.nn.functional.gelu(x, approximate='tanh')

def _silu(x):
    return torch.nn.functional.silu(x)

def _sigmoid(x):
    return torch.sigmoid(x)

def _layernorm(x, axis=-1, eps=1e-05):
    m = x.mean(dim=axis, keepdim=True)
    v = x.var(dim=axis, keepdim=True, unbiased=False)
    return (x - m) / torch.sqrt(v + eps)

def _scatter_add(tgt, idx, src, axis=0):
    return tgt.clone().index_add_(axis, idx, src)

def _segment_sum(src, seg, n):
    out = torch.zeros((n,) + src.shape[1:], dtype=src.dtype)
    return out.index_add_(0, seg, src)

def _pad(x, pw):
    flat = tuple((v for pair in reversed(pw) for v in pair))
    return torch.nn.functional.pad(x, flat)
kernel_name = 'adaLN_cond__compressed_kv_cla__geglu_ffn__decode'

def setup_inputs():

    _w = lambda a: (lambda t: t.to(torch.bfloat16) if t.is_floating_point() else t)(torch.as_tensor(a))

    def _A_setup():
        B, H, Sq, Sk, D, M = (1, 32, 1, 16384, 128, 576)
        Dc = 4 * D
        return {'x': _w((lambda *s: torch.randn(*s, dtype=torch.bfloat16) * 0.05)(B, Sq, M)), 'c_kv': _w((lambda *s: torch.randn(*s, dtype=torch.bfloat16) * 1.6)(B, Sk, Dc)), 'w_q': _w((lambda *s: torch.randn(*s, dtype=torch.bfloat16) * 0.8)(M, H, D) * M ** (-0.5)), 'w_uk': _w((lambda *s: torch.randn(*s, dtype=torch.bfloat16) * 0.8)(Dc, H, D) * Dc ** (-0.5)), 'w_uv': _w((lambda *s: torch.randn(*s, dtype=torch.bfloat16) * 1.6)(Dc, H, D) * Dc ** (-0.5)), 'w_o': _w((lambda *s: torch.randn(*s, dtype=torch.bfloat16) * 1.6)(H, D, M) * (H * D) ** (-0.5))}
    _A_in = _A_setup()

    def _B_setup():
        B, S, D, F = (1, 1, 576, 4608)
        return {'x': _w((lambda *s: torch.randn(*s, dtype=torch.bfloat16) * 0.05)(B, S, D)), 'w_gate': _w((lambda *s: torch.randn(*s, dtype=torch.bfloat16) * 0.05)(D, F)), 'w_up': _w((lambda *s: torch.randn(*s, dtype=torch.bfloat16) * 0.05)(D, F)), 'w_down': _w((lambda *s: torch.randn(*s, dtype=torch.bfloat16) * 0.05)(F, D))}
    _B_in = _B_setup()
    return {'A_x': _A_in['x'], 'A_c_kv': _A_in['c_kv'], 'A_w_q': _A_in['w_q'], 'A_w_uk': _A_in['w_uk'], 'A_w_uv': _A_in['w_uv'], 'A_w_o': _A_in['w_o'], 'B_x': _B_in['x'], 'B_w_gate': _B_in['w_gate'], 'B_w_up': _B_in['w_up'], 'B_w_down': _B_in['w_down'], 'c': _w((lambda *s: torch.randn(*s, dtype=torch.bfloat16) * 0.1)(1, 576) * 8.0), 'w_mod': _w((lambda *s: torch.randn(*s, dtype=torch.bfloat16) * 0.1)(576, 6 * 576) * 576 ** (-0.5) * 8.0)}

def reference(A_x, A_c_kv, A_w_q, A_w_uk, A_w_uv, A_w_o, B_x, B_w_gate, B_w_up, B_w_down, c, w_mod):

    def _A_ref(x, c_kv, w_q, w_uk, w_uv, w_o):
        B, Sq, M = (x.shape[0], x.shape[1], x.shape[2])
        Sk = c_kv.shape[1]
        H, D = (w_q.shape[1], w_q.shape[2])
        q = torch.einsum('bqm,mhd->bhqd', x, w_q)
        k = torch.einsum('bkc,chd->bhkd', c_kv, w_uk)
        v = torch.einsum('bkc,chd->bhkd', c_kv, w_uv)
        scores = torch.einsum('bhqd,bhkd->bhqk', q, k) * D ** (-0.5)
        off = Sk - Sq
        qi = torch.arange(Sq)[:, None]
        kj = torch.arange(Sk)[None, :]
        cmask = kj <= qi + off
        scores = torch.where(cmask[None, None], scores, -1000000000.0)
        p = _softmax(scores, axis=-1)
        ctx = torch.einsum('bhqk,bhkd->bhqd', p, v)
        return torch.einsum('bhqd,hdm->bqm', ctx, w_o)

    def _B_ref(x, w_gate, w_up, w_down):
        return _gelu(x @ w_gate) * (x @ w_up) @ w_down
    x = A_x
    mod = (_silu(c) @ w_mod).reshape(c.shape[0], 6, 1, -1)
    sa, ca, ga, sb, cb, gb = (mod[:, 0].clone(), mod[:, 1].clone(), mod[:, 2].clone(), mod[:, 3].clone(), mod[:, 4].clone(), mod[:, 5].clone())
    h = _layernorm(x, axis=-1) * (1 + ca) + sa
    x = x + ga * _A_ref(h, A_c_kv, A_w_q, A_w_uk, A_w_uv, A_w_o)
    h = _layernorm(x, axis=-1) * (1 + cb) + sb
    x = x + gb * _B_ref(h, B_w_gate, B_w_up, B_w_down)
    return x
```

```python
import re
from asmlib import NAME

TRANS = ('v_exp_', 'v_log_', 'v_rcp_', 'v_rsq_', 'v_sqrt_', 'v_sin_', 'v_cos_')

def _regs(tok):
    tok = tok.strip()
    if tok.startswith('-'): tok = tok[1:]
    if tok.startswith('|') and tok.endswith('|'): tok = tok[1:-1]
    m = re.fullmatch(r'([vas])(\d+)', tok)
    if m:
        k, i = m.group(1), int(m.group(2))
        return [('v', i + 256)] if k == 'a' else [(k, i)]
    m = re.fullmatch(r'([vas])\[(\d+):(\d+)\]', tok)
    if m:
        k, a, b = m.group(1), int(m.group(2)), int(m.group(3))
        o = 256 if k == 'a' else 0
        k = 'v' if k == 'a' else k
        return [(k, i + o) for i in range(a, b + 1)]
    if tok == 'vcc': return [('s', 106), ('s', 107)]
    if tok == 'vcc_lo': return [('s', 106)]
    if tok == 'vcc_hi': return [('s', 107)]
    if tok == 'exec': return [('s', 126), ('s', 127)]
    if tok == 'exec_lo': return [('s', 126)]
    if tok == 'exec_hi': return [('s', 127)]
    if tok == 'm0': return [('s', 124)]
    return []

class Ins:
    def __init__(self, text):
        self.text = text
        t = text.split(';')[0].strip()
        self.label = t.endswith(':')
        self.op = ''
        self.dst = set(); self.src = set(); self.srcC = set(); self.srcAB = set(); self.sdata = set()
        self.kind = 'other'; self.states = 1
        self.dpp = False; self.lds = False
        if self.label or not t or t.startswith('.'):
            self.states = 0; self.kind = 'none'; return
        parts = t.split(None, 1)
        op = self.op = parts[0]
        rest = parts[1] if len(parts) > 1 else ''
        ops = []; depth = 0; cur = ''
        for ch in rest:
            if ch == '[': depth += 1
            if ch == ']': depth -= 1
            if ch == ',' and depth == 0: ops.append(cur); cur = ''
            else: cur += ch
        ops.append(cur)
        mods = ''
        if ops:
            l = ops[-1].strip().split(None, 1)
            if l:
                ops[-1] = l[0]; mods = l[1] if len(l) > 1 else ''
        self.ops = [o.strip() for o in ops]; self.mods = mods
        R = [_regs(o) for o in self.ops]
        flat = lambda L: set(x for l in L for x in l)
        if op == 's_nop':
            self.kind = 'nop'; self.states = int(self.ops[0], 0) + 1; return
        if op.startswith('v_mfma'):
            self.kind = 'mfma'
            self.dst = set(R[0]); self.srcAB = flat(R[1:3]); self.srcC = set(R[3]); self.src = self.srcAB | self.srcC
            self.passes = 8 if '32x32' in op else 4
            if op.endswith('_f32') and 'x4_f32' in op: raise ValueError('sgemm not modelled')
            return
        if op.startswith('v_'):
            self.kind = 'valu'
            self.dpp = ('_dpp' in op) or ('row_' in mods) or ('quad_perm' in mods)
            if op.startswith('v_permlane'):
                self.dst = flat(R[:2]); self.src = flat(R[:2])
            elif op.startswith('v_cmp'):
                self.dst = set(R[0]); self.src = flat(R[1:])
                if op.startswith('v_cmpx'): raise ValueError('no cmpx')
            elif '_co_' in op:
                self.dst = flat(R[:2]); self.src = flat(R[2:])
            else:
                self.dst = set(R[0]); self.src = flat(R[1:])
                if op.startswith(('v_fmac', 'v_mac', 'v_dot2c', 'v_writelane')) or self.dpp: self.src |= set(R[0])
                if op.startswith('v_dot'):
                    self.srcC = set(R[0]) if op.startswith('v_dot2c') else set(R[3])
                    self.srcAB = flat(R[1:3])
            return
        if op.startswith(('buffer_', 'global_')):
            self.kind = 'vmem'
            self.lds = bool(re.search(r'\blds\b', mods)) or '_lds_' in op
            if 'store' in op or 'atomic' in op:
                self.src = flat(R)
                di = 0 if op.startswith('buffer_') else 1
                if 'x3' in op or 'x4' in op: self.sdata = set(R[di])
            elif self.lds:
                self.src = flat(R) | {('s', 124)}
            else:
                self.dst = set(R[0]); self.src = flat(R[1:])
            return
        if op.startswith('ds_'):
            self.kind = 'ds'
            if op.startswith(('ds_read', 'ds_bpermute', 'ds_permute', 'ds_swizzle')):
                self.dst = set(R[0]); self.src = flat(R[1:])
            else:
                self.src = flat(R)
            return
        if op.startswith('s_'):
            self.kind = 'salu'
            if op.startswith(('s_cmp', 's_bitcmp', 's_cbranch', 's_branch', 's_waitcnt', 's_barrier', 's_endpgm', 's_setprio', 's_sleep')):
                self.src = flat(R)
            else:
                self.dst = set(R[0]) if R else set(); self.src = flat(R[1:])
            return
        raise ValueError('unknown op ' + text)

def need(p, c):
    n = 0
    V = lambda S: {x for x in S if x[0] == 'v'}
    Sg = lambda S: {x for x in S if x[0] == 's'}
    if p.kind == 'valu':
        pv = V(p.dst); ps = Sg(p.dst)
        isdot = p.op.startswith('v_dot')
        if c.kind == 'mfma' and pv & c.src: n = max(n, 3 if isdot else 2)
        if c.kind == 'valu':
            if c.dpp and pv & c.src: n = max(n, 2)
            if c.op.startswith('v_permlane') and pv & c.src: n = max(n, 2)
            if c.op.startswith(('v_readlane', 'v_readfirstlane')) and pv & c.src: n = max(n, 1)
            if ps & c.src: n = max(n, 4 if c.op.startswith(('v_readlane', 'v_writelane')) else 2)
            if p.op.startswith(TRANS) and pv & c.src: n = max(n, 1)
            if 'op_sel' in p.mods or 'sdwa' in p.op or 'dst_sel' in p.mods:
                if pv & (c.src | c.dst): n = max(n, 1)
        if isdot:
            if c.op == p.op:
                if pv & c.srcAB: n = max(n, 3)
            elif pv & (c.src | c.dst): n = max(n, 3)
        if c.kind == 'vmem' and ps & c.src: n = max(n, 5)
    if p.kind == 'mfma':
        big = p.passes == 8
        if c.kind == 'mfma':
            if p.dst & c.srcAB: n = max(n, 12 if big else 8)
            if p.dst & c.srcC:
                if not (p.dst == c.srcC and p.passes == c.passes): n = max(n, 10 if big else 6)
            if (p.dst & c.dst) and not (p.dst == c.srcC and p.passes == c.passes): n = max(n, 12 if big else 8)
        elif c.kind in ('valu', 'vmem', 'ds'):
            if p.dst & (c.src | c.dst): n = max(n, 12 if big else 8)
            if c.kind == 'valu' and p.srcC & c.dst: n = max(n, 7 if big else 3)
    if p.kind == 'vmem' and p.sdata:
        if p.sdata & c.dst: n = max(n, 2)
    if p.kind == 'salu' and ('s', 124) in p.dst and c.kind == 'vmem' and c.lds: n = max(n, 1)
    return n

class Asm:
    def __init__(self):
        self.lines = []
        self.uid = 0
    def __call__(self, text):
        for l in text.split('\n'):
            l = l.strip()
            if l: self.lines.append(l)
    def lab(self, p='L'):
        self.uid += 1
        return f'{p}_{self.uid}'
    def finalize(self, verbose=False):
        ins = [Ins(l) for l in self.lines]
        out = []
        W = 14
        def fix(hist, c):
            d = 0; req = 0
            for p in reversed(hist):
                if d >= W: break
                if p.kind in ('none',): continue
                r = need(p, c) - d
                if r > req: req = r
                d += p.states
            return req
        nn = 0
        for c in ins:
            if c.kind != 'none':
                hist = []
                for p in reversed(out[-60:]):
                    if p.op in ('s_branch', 's_endpgm'): break
                    hist.append(p)
                hist.reverse()
                r = fix(hist, c)
                if r > 0:
                    out.append(Ins(f's_nop {r-1}')); nn += 1
            out.append(c)
        labels = {i.text.split(':')[0].strip(): k for k, i in enumerate(out) if i.label}
        changed = True
        while changed:
            changed = False
            labels = {i.text.split(':')[0].strip(): k for k, i in enumerate(out) if i.label}
            for k, b in enumerate(out):
                if b.op.startswith(('s_cbranch', 's_branch')):
                    tgt = labels[b.ops[0]]
                    hist = [p for p in out[max(0, k-40):k+1]]
                    worst = 0; h = list(hist); d = 0
                    for c in out[tgt:tgt+40]:
                        if c.kind == 'none': continue
                        if d >= W: break
                        dd = d;
                        for p in reversed(hist):
                            if dd >= W: break
                            if p.kind == 'none': continue
                            r = need(p, c) - dd
                            worst = max(worst, r)
                            dd += p.states
                        d += c.states
                        if c.op in ('s_branch', 's_endpgm'): break
                    if worst > 0:
                        out.insert(k, Ins(f's_nop {worst-1}')); nn += 1
                        changed = True
                        break
        if verbose: print('inserted nops', nn, 'instrs', sum(1 for i in out if i.kind != 'none'))
        return '\n'.join((i.text if i.label else '    ' + i.text) for i in out) + '\n'

def vr(b, n=1): return f'v{b}' if n == 1 else f'v[{b}:{b+n-1}]'
def ar(b, n=1): return f'a{b}' if n == 1 else f'a[{b}:{b+n-1}]'
def sr(b, n=1): return f's{b}' if n == 1 else f's[{b}:{b+n-1}]'
```

```python
NAME = 'adaLN_cond__compressed_kv_cla__geglu_ffn__decode'
SIZES = dict(x=1152, ckv=16777216, wq=4718592, wuk=4194304, wuv=4194304, wo=4718592, bx=1152,
             wg=5308416, wu=5308416, wd=5308416, c=1152, wmod=3981312, out=1152, dbg=256, ws=268435456)
KOFF = dict(x=0, ckv=8, wq=16, wuk=24, wuv=32, wo=40, bx=48, wg=56, wu=64, wd=72, c=80, wmod=88, out=96, dbg=104, ws=112)

def header(grid, block, lds):
    return f"""; generated
; @launch grid=({grid},1,1) block=({block},1,1) lds={lds}
.amdgcn_target "amdgcn-amd-amdhsa--gfx950"
.text
.globl {NAME}_kernel
.p2align 8
.type {NAME}_kernel,@function
{NAME}_kernel:
"""

def footer(vgpr, sgpr=102, accum=None):
    if accum is None: accum = (vgpr + 3) // 4 * 4
    return f"""
.section .rodata,"a"
.p2align 6
.amdhsa_kernel {NAME}_kernel
  .amdhsa_next_free_vgpr {vgpr}
  .amdhsa_next_free_sgpr {sgpr}
  .amdhsa_accum_offset {accum}
  .amdhsa_group_segment_fixed_size 0
  .amdhsa_kernarg_size 120
  .amdhsa_user_sgpr_count 2
  .amdhsa_user_sgpr_kernarg_segment_ptr 1
  .amdhsa_system_sgpr_workgroup_id_x 1
  .amdhsa_float_denorm_mode_32 3
  .amdhsa_float_denorm_mode_16_64 3
.end_amdhsa_kernel
"""
```

```python
import sys, argparse
from asmlib import NAME, SIZES
from asmgen import Asm, vr, ar, sr

MODP=0x1000; QP=0x8000; QA=0x10000; ML=0x18000; CP=0x20000; MOD2=0x40000; TR=0x44000; T32=0x49000
YP=0x50000; OP=0x100000; DBGT=0x500000; WS_USED=0x600000
PTR = dict(x=4, ckv=6, wq=8, wuk=10, wuv=12, wo=14, bx=16, wg=18, wu=20, wd=22, c=24, wmod=26, out=28, dbg=30, ws=32)
sE=34; sW=35; sG=36; sI=37; sPERM=38; sT8=39; sTD=40; sKD=44
rWS=48; r1=52; r2=56; r3=60; r4=64
sT=68
sTS=76
sSPIN=96; sU=97; sX=98
vL=1; vGQ=2; vP=3; vL16=4; vMB=5; vMF=6; vACT=7
SPIN_LIMIT=40000
LOG2E=1.4426950408889634
import struct
def fb(x): return '0x%08x' % struct.unpack('<I', struct.pack('<f', x))[0]

class G(Asm):
    def __init__(s, diag=False, stop=99):
        super().__init__(); s.diag=diag; s.stop=stop
    def srd(s, r, name, size=None):
        p = PTR[name]; size = size if size is not None else SIZES[name]
        s(f"""s_mov_b32 s{r}, s{p}
              s_mov_b32 s{r+1}, s{p+1}
              s_mov_b32 s{r+2}, {size}
              s_mov_b32 s{r+3}, 0x20000""")
    def ts(s, k):
        if s.diag: s(f's_memrealtime s[{sTS+2*k}:{sTS+2*k+1}]')
    def dma(s, voff, srd, soff, flags):
        s(f'buffer_load_dwordx4 v{voff}, s[{srd}:{srd+3}], s{soff} offen {flags} lds')
    def packtag(s, dst, lo, hi, d):
        s(f'v_perm_b32 v{dst}, v{hi}, v{lo}, s{sPERM}')
        s.tag16(dst, d)
    def tag16(s, dst, d):
        s(f"""v_add_u32 v{dst}, s{sKD+d}, v{dst}
              v_and_or_b32 v{dst}, v{dst}, v{vMB}, s{sTD+d}""")
    def tag32(s, dst, src):
        s(f'v_and_or_b32 v{dst}, v{src}, v{vMF}, s{sT8}')
    def chk16(s, acc, base, n, first=True):
        for i in range(n):
            if first and i == 0: s(f'v_xor_b32 v{acc}, s{sTD}, v{base}')
            else: s(f'v_bitop3_b32 v{acc}, v{base+i}, s{sTD+(i&3)}, v{acc} bitop3:0xbe')
    def chk32(s, acc, regs, first=True):
        for i, r in enumerate(regs):
            if first and i == 0: s(f'v_xor_b32 v{acc}, s{sT8}, v{r}')
            else: s(f'v_bitop3_b32 v{acc}, v{r}, s{sT8}, v{acc} bitop3:0xbe')
    def retry(s, acc, mask, loop):
        done = s.lab('ok')
        s(f"""v_and_b32 v{acc}, {mask}, v{acc}
              v_cmp_ne_u32 vcc, 0, v{acc}
              s_cbranch_vccz {done}
              s_add_u32 s{sSPIN}, s{sSPIN}, 1
              s_cmp_lt_u32 s{sSPIN}, {SPIN_LIMIT}
              s_cbranch_scc1 {loop}
              {done}:""")
    def setexec(s, lo, hi):
        s(f's_mov_b32 exec_lo, {lo:#x}\ns_mov_b32 exec_hi, {hi:#x}')
    def fullexec(s): s('s_mov_b64 exec, -1')
    def bfr(s, dst, src):
        s(f"""v_cvt_pk_bf16_f32 v{dst}, v{src}, v{src}
              v_and_b32 v{dst}, 0xffff0000, v{dst}""")
    def wave_red(s, op, r, t):
        for k in (8, 4, 2, 1):
            s(f'{op}_dpp v{r}, v{r}, v{r} row_ror:{k} row_mask:0xf bank_mask:0xf')
        s(f"""v_mov_b32 v{t}, v{r}
              v_permlane16_swap_b32 v{r}, v{t}
              {op} v{r}, v{r}, v{t}
              v_mov_b32 v{t}, v{r}
              v_permlane32_swap_b32 v{r}, v{t}
              {op} v{r}, v{r}, v{t}""")
    def tags(s):
        s(f"""s_waitcnt lgkmcnt(0)
              s_add_u32 s{sE}, s{sE}, 1
              s_and_b32 s{sT8}, s{sE}, 0xff""")
        for d in range(4):
            s(f"""s_bfe_u32 s{sT}, s{sT8}, {(2*d)|(1<<16):#x}
                  s_bfe_u32 s{sT+1}, s{sT8}, {(2*d+1)|(1<<16):#x}
                  s_lshl_b32 s{sT+1}, s{sT+1}, 16
                  s_or_b32 s{sTD+d}, s{sT}, s{sT+1}
                  s_xor_b32 s{sKD+d}, s{sTD+d}, 0x10001""")
    def silu(s, src, t):
        s(f"""v_lshlrev_b32 v{t}, 16, v{src}
              v_and_b32 v{t+1}, 0xffff0000, v{src}
              v_mul_f32 v{t+2}, {fb(-LOG2E)}, v{t}
              v_mul_f32 v{t+3}, {fb(-LOG2E)}, v{t+1}
              v_exp_f32 v{t+2}, v{t+2}
              v_exp_f32 v{t+3}, v{t+3}
              v_add_f32 v{t+2}, 1.0, v{t+2}
              v_add_f32 v{t+3}, 1.0, v{t+3}
              v_rcp_f32 v{t+2}, v{t+2}
              v_rcp_f32 v{t+3}, v{t+3}
              v_mul_f32 v{t}, v{t}, v{t+2}
              v_mul_f32 v{t+1}, v{t+1}, v{t+3}
              v_cvt_pk_bf16_f32 v{src}, v{t}, v{t+1}""")
    def voff128(s, dst, t, RS, a, b):
        s(f"""v_lshrrev_b32 v{t}, 3, v{vL}
              v_and_b32 v{dst}, 6, v{t}
              v_xor_b32 v{dst}, v{dst}, v{vL}
              v_and_b32 v{dst}, 7, v{dst}
              v_lshlrev_b32 v{dst}, 4, v{dst}
              v_lshrrev_b32 v{t+1}, 2, v{t}
              v_and_b32 v{t}, 3, v{t}
              v_mov_b32 v{t+2}, {a*RS}
              v_mad_u32_u24 v{dst}, v{t+1}, v{t+2}, v{dst}
              v_mov_b32 v{t+2}, {b*RS}
              v_mad_u32_u24 v{dst}, v{t}, v{t+2}, v{dst}""")
    def tr128(s, dst, t, cg, base):
        s(f"""v_lshrrev_b32 v{t}, 2, v{vL}
              v_lshlrev_b32 v{dst}, 7, v{t}
              v_lshrrev_b32 v{t}, 1, v{t}
              v_and_b32 v{t}, 3, v{t}
              v_xor_b32 v{t}, {cg}, v{t}
              v_lshl_add_u32 v{dst}, v{t}, 5, v{dst}
              v_and_b32 v{t}, 3, v{vL}
              v_lshl_add_u32 v{dst}, v{t}, 3, v{dst}""")
        if base: s(f'v_add_u32 v{dst}, {base}, v{dst}')
    def voff256(s, dst, t, RSL):
        s(f"""v_lshlrev_b32 v{t}, 1, v{vGQ}
              v_xor_b32 v{dst}, v{t}, v{vP}
              v_lshlrev_b32 v{dst}, 4, v{dst}
              v_mov_b32 v{t}, {RSL}
              v_mad_u32_u24 v{dst}, v{vGQ}, v{t}, v{dst}""")
    def tr256(s, dst, t, cg, base):
        s(f"""v_lshrrev_b32 v{t}, 2, v{vP}
              v_mul_u32_u24 v{dst}, 1152, v{vGQ}
              v_lshl_add_u32 v{dst}, v{t}, 8, v{dst}
              v_xor_b32 v{t}, {cg}, v{t}
              v_lshl_add_u32 v{dst}, v{t}, 5, v{dst}
              v_and_b32 v{t}, 3, v{vL}
              v_lshl_add_u32 v{dst}, v{t}, 3, v{dst}""")
        if base: s(f'v_add_u32 v{dst}, {base}, v{dst}')

MF='v_mfma_f32_16x16x32_bf16'

def prologue(s):
    s(f"""s_cmp_ge_u32 s2, 256
          s_cbranch_scc1 L_end
          s_load_dwordx16 s[4:19], s[0:1], 0
          s_load_dwordx8 s[20:27], s[0:1], 64
          s_load_dwordx4 s[28:31], s[0:1], 96
          s_load_dwordx2 s[32:33], s[0:1], 112""")
    s.ts(0)
    s(f"""v_lshrrev_b32 v8, 6, v0
          v_and_b32 v{vL}, 63, v0
          v_readfirstlane_b32 s{sW}, v8
          v_lshrrev_b32 v{vGQ}, 4, v{vL}
          v_and_b32 v{vP}, 15, v{vL}
          v_lshlrev_b32 v{vL16}, 4, v{vL}
          v_mov_b32 v{vMB}, 0xfffefffe
          v_mov_b32 v{vMF}, 0xffffff00
          v_lshrrev_b32 v8, 2, v{vL}
          v_and_b32 v9, 3, v{vL}
          v_lshlrev_b32 v9, 4, v9
          v_lshl_add_u32 v{vACT}, v8, 8, v9
          s_mov_b32 s{sPERM}, 0x07060302
          s_mov_b32 s{sSPIN}, 0
          s_and_b32 s{sG}, s2, 7
          s_lshr_b32 s{sI}, s2, 4
          s_waitcnt lgkmcnt(0)
          s_load_dword s{sE}, s[32:33], 0""")
    s.srd(rWS, 'ws', WS_USED)
    s(f"""s_bitcmp1_b32 s2, 3
          s_cbranch_scc1 L_X""")

def epilogue(s):
    s('L_done:')
    if s.diag:
        s(f"""s_memrealtime s[{sTS+18}:{sTS+19}]
              s_waitcnt lgkmcnt(0)
              s_lshl_b32 s{sT}, s2, 2
              s_add_u32 s{sT}, s{sT}, s{sW}
              s_lshl_b32 s{sT}, s{sT}, 6
              s_add_u32 s{sT}, s{sT}, {DBGT}
              s_mov_b64 exec, 1
              v_mov_b32 v8, 0""")
        for k in range(10): s(f'v_mov_b32 v{12+k}, s{sTS+2*k}')
        s(f"""v_mov_b32 v22, s{sSPIN}
              s_getreg_b32 s{sT+1}, hwreg(HW_REG_XCC_ID)
              v_mov_b32 v23, s{sT+1}
              buffer_store_dwordx4 v[12:15], v8, s[{rWS}:{rWS+3}], s{sT} offen
              buffer_store_dwordx4 v[16:19], v8, s[{rWS}:{rWS+3}], s{sT} offen offset:16
              buffer_store_dwordx4 v[20:23], v8, s[{rWS}:{rWS+3}], s{sT} offen offset:32""")
    s('L_end:\ns_endpgm')

def gemv128(s, nk, LW, LA, D, areg, vreg, t):
    s.tr128(t, t+2, f's{sW}', LW)
    s(f'v_add_u32 v{t+1}, 0x8000, v{t}')
    s(f'v_lshlrev_b32 v{t+2}, 4, v{vGQ}')
    for kt in range(nk):
        for hh in range(2):
            off = kt*4096+hh*2048
            b = t if off < 0x8000 else t+1
            if off >= 0x8000: off -= 0x8000
            s(f'ds_read_b64_tr_b16 {ar(areg+4*kt+2*hh,2)}, v{b} offset:{off}')
        s(f'ds_read_b128 {vr(vreg+4*kt,4)}, v{t+2} offset:{LA+kt*64}' if LA+kt*64 < 65536 else 'BAD')
    s('s_waitcnt lgkmcnt(0)')
    for kt in range(nk):
        s(f'{MF} {vr(D,4)}, {ar(areg+4*kt,4)}, {vr(vreg+4*kt,4)}, {vr(D,4) if kt else 0}')

X_XS=135168; X_PA=151552; X_MX=159744; X_SA=160256
def role_x(s):
    s('L_X:')
    s(f"""s_lshl_b32 s{sU}, s{sI}, 3
          s_add_u32 s{sU}, s{sU}, s{sG}""")
    s.srd(r1, 'ckv'); s.srd(r2, 'wmod'); s.srd(r3, 'c')
    noA = s.lab('noA')
    s(f"""s_cmp_ge_u32 s{sU}, 108
          s_cbranch_scc1 {noA}
          s_mul_i32 s{sT}, s{sU}, 3641
          s_lshr_b32 s{sT}, s{sT}, 16
          s_mul_i32 s{sT+1}, s{sT}, 18
          s_sub_u32 s{sT+1}, s{sU}, s{sT+1}""")
    s(f"""v_lshlrev_b32 v8, 2, v0
          s_mul_i32 s{sT+2}, s{sT}, 192
          buffer_load_dword v16, v8, s[{r3}:{r3+3}], s{sT+2} offen""")
    s.voff128(9, 10, 6912, 8, 1)
    s(f"""s_mul_i32 s{sT+2}, s{sT}, {96*6912}
          s_lshl_b32 s{sT+3}, s{sT+1}, 7
          s_add_u32 s{sT+2}, s{sT+2}, s{sT+3}
          s_mul_i32 s{sT+3}, s{sW}, 3""")
    for j in range(3):
        s(f"""s_add_u32 s{sT+4}, s{sT+3}, {j}
              s_lshr_b32 s{sT+5}, s{sT+4}, 2
              s_lshl_b32 s{sT+5}, s{sT+5}, 5
              s_and_b32 s{sT+6}, s{sT+4}, 1
              s_lshl_b32 s{sT+6}, s{sT+6}, 4
              s_add_u32 s{sT+5}, s{sT+5}, s{sT+6}
              s_and_b32 s{sT+6}, s{sT+4}, 2
              s_lshl_b32 s{sT+6}, s{sT+6}, 1
              s_add_u32 s{sT+5}, s{sT+5}, s{sT+6}
              s_mul_i32 s{sT+5}, s{sT+5}, 6912
              s_add_u32 s{sT+5}, s{sT+5}, s{sT+2}
              s_lshl_b32 s{sT+4}, s{sT+4}, 10
              s_add_u32 m0, s{sT+4}, {X_XS}""")
        s.dma(9, r2, sT+5, 'nt')
    s(f"""s_mul_i32 s{sX}, s{sT}, 4608
          s_lshl_b32 s{sT+1}, s{sT+1}, 8
          s_add_u32 s{sX}, s{sX}, s{sT+1}
          s_lshl_b32 s{sT+1}, s{sW}, 6
          s_add_u32 s{sX}, s{sX}, s{sT+1}
          s_add_u32 s{sX}, s{sX}, {MODP}""")
    s('s_waitcnt vmcnt(3)')
    s.silu(16, 10)
    s(f"""v_add_u32 v8, {X_SA}, v8
          ds_write_b32 v8, v16""")
    s.tags()
    s("""s_waitcnt vmcnt(0) lgkmcnt(0)
         s_barrier""")
    s.tr128(20, 22, f's{sW}', X_XS)
    s(f"""v_lshlrev_b32 v21, 4, v{vGQ}
          v_add_u32 v22, {X_SA}, v21""")
    for kt in range(3):
        for hh in range(2):
            s(f'ds_read_b64_tr_b16 {vr(24+4*kt+2*hh,2)}, v20 offset:{kt*4096+hh*2048}')
        s(f'ds_read_b128 {vr(36+4*kt,4)}, v22 offset:{kt*64}')
    s('s_waitcnt lgkmcnt(0)')
    for kt in range(3):
        s(f'{MF} v[12:15], {vr(24+4*kt,4)}, {vr(36+4*kt,4)}, {"v[12:15]" if kt else 0}')
    for r in range(4): s.tag32(12+r, 12+r)
    s.setexec(0x00010001, 0x00010001)
    s(f'buffer_store_dwordx4 v[12:15], v21, s[{rWS}:{rWS+3}], s{sX} offen sc1')
    s.fullexec()
    s.ts(1)
    j = s.lab('j')
    s(f's_branch {j}\n{noA}:')
    s.tags()
    s(f'{j}:')
    if s.stop <= 1: s('s_branch L_done'); return
    lp = s.lab('ckv')
    s(f"""s_lshl_b32 s{sT}, s{sU}, 17
          s_lshl_b32 s{sT+1}, s{sW}, 10
          s_add_u32 s{sT}, s{sT}, s{sT+1}
          s_mul_i32 s{sT+1}, s{sW}, 1056
          s_mov_b32 m0, s{sT+1}
          s_mov_b32 s{sT+2}, 0
          {lp}:""")
    s.dma(vL16, r1, sT, 'nt')
    s(f"""s_add_u32 s{sT}, s{sT}, 4096
          s_add_u32 m0, m0, {4*1056}
          s_add_u32 s{sT+2}, s{sT+2}, 1
          s_cmp_lt_u32 s{sT+2}, 32
          s_cbranch_scc1 {lp}""")
    s(f"""s_lshr_b32 s{sT}, s{sW}, 1
          s_and_b32 s{sT+1}, s{sW}, 1
          s_mul_i32 s{sT+2}, s{sT}, {64*1056}
          s_lshl_b32 s{sT+3}, s{sT+1}, 9
          s_add_u32 s{sT+2}, s{sT+2}, s{sT+3}
          s_mul_i32 s{sT+3}, s{sT+1}, {2*16896}
          s_add_u32 s{sT+4}, s{sT+2}, s{sT+3}
          s_sub_u32 s{sT+5}, s{sT+2}, s{sT+3}
          s_add_u32 s{sT+5}, s{sT+5}, {2*16896}
          v_mul_u32_u24 v8, 1056, v{vP}
          v_lshl_add_u32 v8, v{vGQ}, 4, v8
          v_add_u32 v9, s{sT+5}, v8
          v_add_u32 v8, s{sT+4}, v8
          v_lshrrev_b32 v10, 2, v{vL}
          v_mul_u32_u24 v10, 1056, v10
          v_and_b32 v11, 3, v{vL}
          v_lshl_add_u32 v10, v11, 3, v10
          s_lshl_b32 s{sT+2}, s{sW}, 8
          v_add_u32 v10, s{sT+2}, v10
          v_add_u32 v11, {64*1056}, v10""")
    s(f"""v_lshrrev_b32 v12, 2, v{vP}
          v_lshlrev_b32 v12, 8, v12
          v_lshl_add_u32 v12, v{vGQ}, 6, v12
          v_and_b32 v13, 3, v{vL}
          v_lshl_add_u32 v12, v13, 4, v12
          s_lshl_b32 s{sT+1}, s{sT+1}, 14
          s_add_u32 s{sT}, s{sT+1}, {QA}
          s_add_u32 s{sT+1}, s{sT}, 4096
          s_add_u32 s{sT+2}, s{sT}, 8192
          s_add_u32 s{sT+3}, s{sT}, 12288""")
    s("""s_waitcnt vmcnt(0)
         s_barrier""")
    s.ts(2)
    for kt in range(4):
        for st in range(8):
            s(f'ds_read_b128 {ar((kt*8+st)*4,4)}, v{8 if kt<2 else 9} offset:{(kt&1)*16896+st*64}')
    for ct in range(8):
        for ks in range(4):
            for hh in range(2):
                s(f'ds_read_b64_tr_b16 {ar(128+(ct*4+ks)*4+2*hh,2)}, v{10 if ks<2 else 11} offset:{((ks&1)*32+16*hh)*1056+32*ct}')
    QV=64; SV=32; OV=128
    lp = s.lab('qa')
    s(f'{lp}:')
    for st in range(8):
        for ht in range(2):
            s(f'buffer_load_dwordx4 {vr(QV+(st*2+ht)*4,4)}, v12, s[{rWS}:{rWS+3}], s{sT+(st>>1)} offen offset:{(st&1)*2048+ht*1024} sc1')
    s('s_waitcnt vmcnt(0)')
    s.chk16(13, QV, 64)
    s.retry(13, '0x10001', lp)
    s.ts(3)
    s('s_waitcnt lgkmcnt(0)')
    for st in range(8):
        for kt in range(4):
            for ht in range(2):
                d = vr(SV+(kt*2+ht)*4,4)
                s(f'{MF} {d}, {ar((kt*8+st)*4,4)}, {vr(QV+(st*2+ht)*4,4)}, {d if st else 0}')
    s(f"""s_lshl_b32 s{sT}, s{sW}, 12
          s_xor_b32 s{sT+1}, s{sT}, 4096
          s_add_u32 s{sT}, s{sT}, {X_XS}
          s_add_u32 s{sT+1}, s{sT+1}, {X_XS}
          v_add_u32 v14, s{sT}, v{vL16}
          v_add_u32 v15, s{sT+1}, v{vL16}""")
    for q in range(4):
        s(f'ds_write_b128 v14, {vr(SV+16+4*q,4)} offset:{q*1024}')
    s("""s_waitcnt lgkmcnt(0)
         s_barrier""")
    for q in range(4):
        s(f'ds_read_b128 {vr(SV+16+4*q,4)}, v15 offset:{q*1024}')
    s(f"""v_lshlrev_b32 v16, 5, v{vP}
          v_add_u32 v16, {X_MX}, v16
          s_lshl_b32 s{sT}, s{sW}, 3
          v_add_u32 v17, s{sT}, v16
          s_waitcnt lgkmcnt(0)""")
    for q in range(16): s(f'v_add_f32 v{SV+q}, v{SV+q}, v{SV+16+q}')
    for ht in range(2):
        a = SV+ht*4; b = SV+8+ht*4; m = 18+ht
        s(f"""v_max3_f32 v{m}, v{a}, v{a+1}, v{a+2}
              v_max3_f32 v{m}, v{m}, v{a+3}, v{b}
              v_max3_f32 v{m}, v{m}, v{b+1}, v{b+2}
              v_max_f32 v{m}, v{m}, v{b+3}""")
    s(f"""v_permlane32_swap_b32 v18, v19
          v_max_f32 v18, v18, v19
          v_mov_b32 v19, v18
          v_permlane16_swap_b32 v18, v19
          v_max_f32 v18, v18, v19
          v_mov_b32 v19, v18
          v_permlane32_swap_b32 v18, v19
          ds_write_b64 v17, v[18:19]
          s_waitcnt lgkmcnt(0)
          s_barrier
          ds_read_b128 v[20:23], v16
          ds_read_b128 v[24:27], v16 offset:16
          s_lshl_b32 s{sT}, s{sW}, 11
          s_add_u32 s{sT}, s{sT}, {X_PA}
          v_add_u32 v14, s{sT}, v{vL16}
          v_add_u32 v15, {X_PA}, v{vL16}
          s_waitcnt lgkmcnt(0)
          v_max3_f32 v18, v20, v22, v24
          v_max3_f32 v19, v21, v23, v25
          v_max_f32 v18, v18, v26
          v_max_f32 v19, v19, v27
          v_ceil_f32 v18, v18
          v_ceil_f32 v19, v19
          v_and_b32 v18, v18, v{vMF}
          v_and_b32 v19, v19, v{vMF}""")
    for ht in range(2):
        for kt in range(2):
            for r in range(4):
                x = SV+(kt*2+ht)*4+r
                s(f'v_sub_f32 v{x}, v{x}, v{18+ht}')
        for kt in range(2):
            for r in range(4):
                x = SV+(kt*2+ht)*4+r
                s(f'v_exp_f32 v{x}, v{x}')
        for kt in range(2):
            x = SV+(kt*2+ht)*4
            s(f'v_cvt_pk_bf16_f32 v{20+ht*4+kt*2}, v{x}, v{x+1}')
            s(f'v_cvt_pk_bf16_f32 v{21+ht*4+kt*2}, v{x+2}, v{x+3}')
        s(f'ds_write_b128 v14, {vr(20+ht*4,4)} offset:{ht*1024}')
    s("""s_waitcnt lgkmcnt(0)
         s_barrier""")
    PV=64
    for ks in range(4):
        for ht in range(2):
            s(f'ds_read_b128 {vr(PV+(ks*2+ht)*4,4)}, v15 offset:{(ks*2+ht)*1024}')
    s(f"""v_lshlrev_b32 v14, 19, v{vGQ}
          v_lshl_add_u32 v14, v{vP}, 4, v14
          s_lshl_b32 s{sT}, s{sW}, 15
          s_lshl_b32 s{sT+1}, s{sU}, 8
          s_add_u32 s{sT}, s{sT}, s{sT+1}
          s_add_u32 s{sT}, s{sT}, {OP}
          s_add_u32 s{sT+1}, s{sT+1}, {ML}
          v_mov_b32 v28, 0x3f803f80
          v_mov_b32 v29, v28
          v_mov_b32 v30, v28
          v_mov_b32 v31, v28
          s_waitcnt lgkmcnt(0)""")
    s.ts(4)
    nl = s.lab('nl')
    s(f"""s_cmp_lg_u32 s{sW}, 0
          s_cbranch_scc1 {nl}""")
    for ks in range(4):
        for ht in range(2):
            d = vr(20+ht*4,4)
            s(f'{MF} {d}, v[28:31], {vr(PV+(ks*2+ht)*4,4)}, {d if ks else 0}')
    s.tag32(32, 18); s.tag32(34, 19); s.tag32(33, 20); s.tag32(35, 24)
    s.setexec(0xffff, 0)
    s(f'buffer_store_dwordx4 v[32:35], v{vL16}, s[{rWS}:{rWS+3}], s{sT+1} offen sc1')
    s.fullexec()
    s(f'{nl}:')
    def ostore(ht):
        for r in range(4):
            t = 32+4*((ht*4+r)&3) + (16 if ht else 0)
            for d in range(4):
                s.packtag(t+d, OV+(ht*8+2*d)*4+r, OV+(ht*8+2*d+1)*4+r, d)
            s(f's_add_u32 s{sT+2}, s{sT}, {(16*ht+r)*131072}')
            s(f'buffer_store_dwordx4 {vr(t,4)}, v14, s[{rWS}:{rWS+3}], s{sT+2} offen sc1')
    for ht in range(2):
        for ks in range(4):
            for ct in range(8):
                d = vr(OV+(ht*8+ct)*4,4)
                s(f'{MF} {d}, {vr(PV+(ks*2+ht)*4,4)}, {ar(128+(ct*4+ks)*4,4)}, {d if ks else 0}')
    ostore(0); ostore(1)
    s.ts(5)
    if s.stop <= 4: s('s_branch L_done'); return
    s(f"""s_mul_i32 s{sU}, s{sG}, 18
          s_add_u32 s{sU}, s{sU}, s{sI}""")
    s('s_branch L_ffn_load')

LG=0; LU=36864; LD=73728; LT=110592; LCS=129024; LONE=131328; LEX=131456; LST=133504; LDUM=133632
def ffn_load(s):
    s.srd(r1, 'wg'); s.srd(r2, 'wu'); s.srd(r3, 'wd')
    s(f"""s_mul_i32 s{sX}, s{sW}, 5
          s_lshl_b32 s{sT}, s{sW}, 2
          s_add_u32 s{sT}, s{sT}, 2
          s_cmp_lt_u32 s{sW}, 2
          s_cselect_b32 s{sX}, s{sX}, s{sT}
          s_cselect_b32 s{sX+1}, 5, 4""")
    s(f"""v_and_b32 v8, 1, v{vGQ}
          v_lshlrev_b32 v8, 1, v8
          v_xor_b32 v8, v8, v{vL}
          v_and_b32 v8, 3, v8
          v_lshlrev_b32 v8, 4, v8
          v_lshrrev_b32 v9, 2, v{vP}
          v_lshl_add_u32 v9, v{vGQ}, 3, v9
          v_mov_b32 v10, 9216
          v_mad_u32_u24 v8, v9, v10, v8
          s_mul_i32 s{sT}, s{sX}, {32*9216}
          s_lshl_b32 s{sT+1}, s{sU}, 6
          s_add_u32 s{sT}, s{sT}, s{sT+1}
          s_lshl_b32 s{sT+1}, s{sX}, 11
          s_mov_b32 s{sT+2}, 0""")
    lp = s.lab('fg')
    s(f"""{lp}:
          s_add_u32 s{sT+3}, s{sT}, {4*9216}
          s_add_u32 m0, s{sT+1}, {LG}""")
    s.dma(8, r1, sT, 'nt')
    s(f's_add_u32 m0, s{sT+1}, {LG+1024}')
    s.dma(8, r1, sT+3, 'nt')
    s(f's_add_u32 m0, s{sT+1}, {LU}')
    s.dma(8, r2, sT, 'nt')
    s(f's_add_u32 m0, s{sT+1}, {LU+1024}')
    s.dma(8, r2, sT+3, 'nt')
    s(f"""s_add_u32 s{sT}, s{sT}, {32*9216}
          s_add_u32 s{sT+1}, s{sT+1}, 2048
          s_add_u32 s{sT+2}, s{sT+2}, 1
          s_cmp_lt_u32 s{sT+2}, s{sX+1}
          s_cbranch_scc1 {lp}""")
    s.voff128(9, 10, 1152, 8, 1)
    s(f"""s_and_b32 s{sT}, s{sW}, 1
          s_lshl_b32 s{sT}, s{sT}, 4
          s_and_b32 s{sT+1}, s{sW}, 2
          s_lshl_b32 s{sT+1}, s{sT+1}, 1
          s_add_u32 s{sT}, s{sT}, s{sT+1}
          s_lshl_b32 s{sT+1}, s{sU}, 5
          s_add_u32 s{sT}, s{sT}, s{sT+1}
          s_mul_i32 s{sT}, s{sT}, 1152
          s_lshl_b32 s{sT+1}, s{sW}, 10
          s_add_u32 m0, s{sT+1}, {LD}
          s_mov_b32 s{sT+2}, 0""")
    lp = s.lab('fd')
    s(f'{lp}:')
    s.dma(9, r3, sT, 'nt')
    s(f"""s_add_u32 s{sT}, s{sT}, 128
          s_add_u32 m0, m0, 4096
          s_add_u32 s{sT+2}, s{sT+2}, 1
          s_cmp_lt_u32 s{sT+2}, 9
          s_cbranch_scc1 {lp}""")

def ffn_compute(s):
    s('L_ffn:')
    FW=0; GW=80
    s(f"""v_min_u32 v8, 143, v0
          v_lshlrev_b32 v9, 4, v8
          s_mov_b32 s{sT}, {MOD2+576*4}""")
    lp = s.lab('cs')
    s(f"""{lp}:
          buffer_load_dwordx4 v[12:15], v9, s[{rWS}:{rWS+3}], s{sT} offen sc1
          buffer_load_dwordx4 v[16:19], v9, s[{rWS}:{rWS+3}], s{sT} offen offset:2304 sc1
          s_waitcnt vmcnt(0)""")
    s.chk32(10, list(range(12,20)))
    s.retry(10, '0xff', lp)
    for r in range(4):
        s(f'v_and_b32 v{16+r}, 0xffff0000, v{16+r}\nv_add_f32 v{16+r}, 1.0, v{16+r}')
    s(f"""v_perm_b32 v12, v13, v12, s{sPERM}
          v_perm_b32 v13, v15, v14, s{sPERM}
          v_cvt_pk_bf16_f32 v16, v16, v17
          v_cvt_pk_bf16_f32 v17, v18, v19
          v_lshlrev_b32 v9, 3, v8
          v_add_u32 v9, {LCS}, v9
          s_barrier
          ds_write_b64 v9, v[16:17]
          ds_write_b64 v9, v[12:13] offset:1152
          v_mov_b32 v12, 0x3f803f80
          v_lshlrev_b32 v9, 2, v{vP}
          v_add_u32 v9, {LONE}, v9
          ds_write_b32 v9, v12
          s_waitcnt lgkmcnt(0)
          s_barrier""")
    s.ts(6)
    s(f"""v_lshrrev_b32 v8, 2, v{vL}
          v_lshlrev_b32 v8, 6, v8
          v_and_b32 v9, 3, v{vL}
          v_lshl_add_u32 v8, v9, 3, v8
          s_lshl_b32 s{sT}, s{sX}, 11
          v_add_u32 v8, s{sT}, v8
          v_and_b32 v9, 1, v{vGQ}
          v_lshl_add_u32 v8, v9, 5, v8
          v_xor_b32 v9, 32, v8""")
    def fwread(k):
        for c in range(4):
            for hh in range(2):
                s(f'ds_read_b64_tr_b16 {ar(FW+(k*4+c)*4+2*hh,2)}, v{8+(c>>1)} offset:{(LU if c&1 else LG)+k*2048+hh*1024}')
    for k in range(4): fwread(k)
    l4 = s.lab('f4')
    s(f's_cmp_lt_u32 s{sX+1}, 5\ns_cbranch_scc1 {l4}')
    fwread(4)
    s(f'{l4}:')
    s(f's_mul_i32 s{sT}, s{sW}, 9')
    for i in range(9):
        s(f"""s_add_u32 s{sT+1}, s{sT}, {i}
              s_and_b32 s{sT+2}, s{sT+1}, 3
              s_lshr_b32 s{sT+1}, s{sT+1}, 2
              s_lshl_b32 s{sT+1}, s{sT+1}, 12
              s_add_u32 s{sT+1}, s{sT+1}, {LD}""")
        s.tr128(10, 11, f's{sT+2}', f's{sT+1}')
        s(f'ds_read_b64_tr_b16 {ar(GW+4*i,2)}, v10')
        s(f'ds_read_b64_tr_b16 {ar(GW+4*i+2,2)}, v10 offset:2048')
    AV=64; AV2=84; Z=32; GR=48
    s(f"""v_and_b32 v10, 1, v{vP}
          v_mul_u32_u24 v10, 1152, v10
          v_lshl_add_u32 v10, v{vGQ}, 4, v10
          s_lshl_b32 s{sT}, s{sX}, 6
          s_add_u32 s{sT}, s{sT}, {LCS}
          v_add_u32 v10, s{sT}, v10""")
    for k in range(5): s(f'ds_read_b128 {vr(AV+4*k,4)}, v10 offset:{k*64}')
    s('s_waitcnt lgkmcnt(0)')
    def fmf(k, gram=False):
        for c in range(4):
            d = vr(Z+4*c,4)
            s(f'{MF} {d}, {vr(AV+4*k,4)}, {ar(FW+(k*4+c)*4,4)}, {d if k else 0}')
        if gram:
            d = vr(GR,4)
            s(f'{MF} {d}, {vr(AV+4*k,4)}, {vr(AV2+4*k,4)}, {d if k else 0}')
    for k in range(4): fmf(k)
    l4 = s.lab('f4')
    s(f's_cmp_lt_u32 s{sX+1}, 5\ns_cbranch_scc1 {l4}')
    fmf(4)
    s(f'{l4}:')
    s(f"""v_lshlrev_b32 v11, 6, v{vP}
          s_lshl_b32 s{sT}, s{sW}, 4
          s_add_u32 s{sT}, s{sT}, {LEX}
          v_add_u32 v11, s{sT}, v11
          ds_write_b64 v11, v[{Z}:{Z+1}]
          ds_write_b64 v11, v[{Z+4}:{Z+5}] offset:8
          ds_write_b64 v11, v[{Z+8}:{Z+9}] offset:1024
          ds_write_b64 v11, v[{Z+12}:{Z+13}] offset:1032
          v_and_b32 v12, 7, v{vP}
          v_lshl_add_u32 v12, v{vGQ}, 3, v12
          v_lshlrev_b32 v13, 6, v12
          v_add_u32 v13, {LEX}, v13
          s_waitcnt lgkmcnt(0)
          s_barrier""")
    for q in range(4): s(f'ds_read_b128 {vr(Z+4*q,4)}, v13 offset:{16*q}')
    UV=24
    s(f"""v_lshrrev_b32 v14, 2, v{vL}
          v_mul_u32_u24 v14, 1152, v14
          v_and_b32 v15, 3, v{vL}
          v_lshl_add_u32 v14, v15, 4, v14
          s_lshl_b32 s{sT}, s{sX}, 10
          s_add_u32 s{sT}, s{sT}, {LT}
          v_lshlrev_b32 v15, 6, v{vP}
          v_lshl_add_u32 v15, v{vGQ}, 4, v15
          v_add_u32 v15, s{sT}, v15
          s_lshl_b32 s{sT+1}, s{sX}, 6
          s_add_u32 s{sT+1}, s{sT+1}, {TR}
          v_lshlrev_b32 v17, 5, v12
          v_add_u32 v17, {LEX}, v17
          v_mov_b32 v18, {LST}""")
    s(f"""s_lshl_b32 s{sT+2}, s{sW}, 3
          s_add_u32 s{sT+2}, s{sT+2}, {LEX-1024}
          v_lshlrev_b32 v19, 5, v{vL}
          v_add_u32 v19, s{sT+2}, v19
          v_mov_b32 v21, {LDUM}
          v_cmp_lt_u32 vcc, 31, v{vL}
          v_cndmask_b32 v19, v21, v19, vcc
          s_lshl_b32 s{sT+2}, s{sW}, 2
          s_add_u32 s{sT+2}, s{sT+2}, {LST}
          v_lshrrev_b32 v20, 3, v{vP}
          v_lshlrev_b32 v20, 4, v20
          v_add_u32 v20, s{sT+2}, v20
          v_cmp_gt_u32 vcc, 16, v{vL}
          v_cndmask_b32 v20, v21, v20, vcc
          s_waitcnt lgkmcnt(0)""")
    for e in range(4):
        s(f"""v_add_f32 v{UV+e}, v{Z+e}, v{Z+4+e}
              v_add_f32 v{Z+8+e}, v{Z+8+e}, v{Z+12+e}
              v_add_f32 v{UV+e}, v{UV+e}, v{Z+8+e}""")
    s(f"""v_lshrrev_b32 v22, 5, v{vL}
          v_lshlrev_b32 v22, 8, v22
          v_lshl_add_u32 v22, v{vP}, 4, v22
          v_lshlrev_b32 v23, 4, v{vGQ}
          s_mul_i32 s{sT+4}, s{sU}, 2304
          s_mul_i32 s{sT+5}, s{sW}, 576
          s_add_u32 s{sT+4}, s{sT+4}, s{sT+5}
          s_add_u32 s{sT+4}, s{sT+4}, {YP}
          s_mov_b32 s{sT+6}, 0
          s_mov_b32 s{sT+7}, -1
          v_cmp_lt_u32 vcc, 7, v{vP}
          s_barrier""")
    s('s_mov_b64 s[100:101], vcc')
    s('v_mov_b32 v16, 0x3f803f80')
    lp = s.lab('tr')
    s(f'{lp}:')
    for k in range(5):
        if k == 4:
            s(f"""s_sub_u32 s{sT+3}, s{sX+1}, 1
                  s_lshl_b32 s{sT+3}, s{sT+3}, 6
                  s_add_u32 s{sT+3}, s{sT+3}, s{sT+1}""")
            s(f"""s_lshl_b32 s{sT+2}, s{sW}, 10
                  s_add_u32 m0, s{sT+2}, {LDUM+256}""")
        else:
            s(f"""s_add_u32 s{sT+3}, s{sT+1}, {k*64}
                  s_add_u32 m0, s{sT}, {k*1024}""")
        s.dma(14, rWS, sT+3, 'sc1')
    s(f"""s_sub_u32 s{sT+2}, m0, s{sT}
          v_add_u32 v13, s{sT+2}, v15
          s_waitcnt vmcnt(0)""")
    for k in range(4): s(f'ds_read_b128 {vr(AV+4*k,4)}, v15 offset:{k*1024}')
    s(f'ds_read_b128 {vr(AV+16,4)}, v13')
    s('s_waitcnt lgkmcnt(0)')
    s.chk16(10, AV, 20)
    s.retry(10, '0x10001', lp)
    s.ts(7)
    for q in range(20): s(f'v_cndmask_b32 v{AV2+q}, v{AV+q}, v16, s[100:101]')
    for k in range(4): fmf(k, True)
    l4 = s.lab('f4')
    s(f's_cmp_lt_u32 s{sX+1}, 5\ns_cbranch_scc1 {l4}')
    fmf(4, True)
    s(f'{l4}:')
    for c in list(range(4))+[4]:
        b = Z+4*c
        s(f"""v_add_f32 v{b}, v{b}, v{b+1}
              v_add_f32 v{b+2}, v{b+2}, v{b+3}""")
    for c in list(range(4))+[4]:
        b = Z+4*c
        s(f'v_add_f32 v{b}, v{b}, v{b+2}')
    s(f"""v_permlane16_swap_b32 v{Z}, v{Z+8}
          v_permlane16_swap_b32 v{Z+4}, v{Z+12}
          v_add_f32_dpp v{GR}, v{GR}, v{GR} quad_perm:[1,0,3,2] row_mask:0xf bank_mask:0xf
          v_add_f32 v{Z}, v{Z}, v{Z+8}
          v_add_f32 v{Z+1}, v{Z+4}, v{Z+12}
          v_add_f32_dpp v{GR}, v{GR}, v{GR} quad_perm:[2,3,0,1] row_mask:0xf bank_mask:0xf
          ds_write_b64 v19, v[{Z}:{Z+1}]
          v_add_f32_dpp v{GR}, v{GR}, v{GR} row_half_mirror row_mask:0xf bank_mask:0xf
          v_mov_b32 v{GR+1}, v{GR}
          v_permlane16_swap_b32 v{GR}, v{GR+1}
          v_add_f32 v{GR}, v{GR}, v{GR+1}
          ds_write_b32 v20, v{GR}
          s_waitcnt lgkmcnt(0)
          s_barrier
          ds_read_b128 v[{GR}:{GR+3}], v18
          ds_read_b128 v[{GR+4}:{GR+7}], v18 offset:16
          ds_read_b128 v[{Z}:{Z+3}], v17
          ds_read_b128 v[{Z+4}:{Z+7}], v17 offset:16
          s_waitcnt lgkmcnt(2)
          v_add_f32 v{GR}, v{GR}, v{GR+1}
          v_add_f32 v{GR+2}, v{GR+2}, v{GR+3}
          v_add_f32 v{GR+4}, v{GR+4}, v{GR+5}
          v_add_f32 v{GR+6}, v{GR+6}, v{GR+7}
          v_add_f32 v{GR}, v{GR}, v{GR+2}
          v_add_f32 v{GR+4}, v{GR+4}, v{GR+6}
          v_mul_f32 v{GR+4}, {fb(1.0/(8*576))}, v{GR+4}
          v_mov_b32 v{GR+1}, {fb(1e-5)}
          v_fmac_f32 v{GR+1}, {fb(1.0/576)}, v{GR}
          v_fma_f32 v{GR+1}, -v{GR+4}, v{GR+4}, v{GR+1}
          v_rsq_f32 v{GR+1}, v{GR+1}
          s_waitcnt lgkmcnt(0)
          v_add_f32 v{Z}, v{Z}, v{Z+2}
          v_add_f32 v{Z+1}, v{Z+1}, v{Z+3}
          v_add_f32 v{Z+4}, v{Z+4}, v{Z+6}
          v_add_f32 v{Z+5}, v{Z+5}, v{Z+7}
          v_add_f32 v{Z}, v{Z}, v{Z+4}
          v_add_f32 v{Z+1}, v{Z+1}, v{Z+5}
          v_fma_f32 v{Z}, -v{GR+4}, v{UV}, v{Z}
          v_fma_f32 v{Z+1}, -v{GR+4}, v{UV+2}, v{Z+1}
          v_fma_f32 v{Z}, v{Z}, v{GR+1}, v{UV+1}
          v_fma_f32 v{Z+1}, v{Z+1}, v{GR+1}, v{UV+3}
          v_cvt_pk_bf16_f32 v{Z+1}, v{Z}, v{Z+1}
          v_lshlrev_b32 v{Z}, 16, v{Z+1}
          v_and_b32 v{Z+1}, 0xffff0000, v{Z+1}""")
    k2 = -2*0.7978845608028654*LOG2E
    s(f"""v_mul_f32 v{Z+2}, v{Z}, v{Z}
          v_mov_b32 v{Z+3}, {fb(k2)}
          v_fmac_f32 v{Z+3}, {fb(k2*0.044715)}, v{Z+2}
          v_mul_f32 v{Z+3}, v{Z+3}, v{Z}
          v_exp_f32 v{Z+3}, v{Z+3}
          v_add_f32 v{Z+3}, 1.0, v{Z+3}
          v_rcp_f32 v{Z+3}, v{Z+3}
          v_mul_f32 v{Z}, v{Z}, v{Z+3}""")
    s.bfr(Z, Z)
    s(f"""v_mul_f32 v{Z}, v{Z}, v{Z+1}
          v_mov_b32_dpp v{Z+1}, v{Z} quad_perm:[1,0,3,2] row_mask:0xf bank_mask:0xf
          v_cvt_pk_bf16_f32 v{AV}, v{Z}, v{Z+1}
          v_mov_b32_dpp v{AV+1}, v{AV} row_ror:14 row_mask:0xf bank_mask:0xf
          v_mov_b32_dpp v{AV+2}, v{AV} row_ror:12 row_mask:0xf bank_mask:0xf
          v_mov_b32_dpp v{AV+3}, v{AV} row_ror:10 row_mask:0xf bank_mask:0xf""")
    YV=96
    for i in range(8): s(f'{MF} {vr(YV+4*i,4)}, {vr(AV,4)}, {ar(GW+4*i,4)}, 0')
    s(f'{MF} {vr(YV+32,4)}, {ar(GW+32,4)}, {vr(AV,4)}, 0')
    for i in range(4):
        s(f'v_cndmask_b32 v{Z+i}, v{YV+4*i}, v{YV+16+4*i}, s[{sT+6}:{sT+7}]')
        s.tag32(Z+i, Z+i)
    s.setexec(0xffff, 0xffff)
    s(f'buffer_store_dwordx4 {vr(Z,4)}, v22, s[{rWS}:{rWS+3}], s{sT+4} offen sc1')
    s.setexec(0x10001, 0x10001)
    for i in range(4): s.tag32(YV+32+i, YV+32+i)
    s(f'buffer_store_dwordx4 {vr(YV+32,4)}, v23, s[{rWS}:{rWS+3}], s{sT+4} offen offset:512 sc1')
    s.fullexec()
    s.ts(8)
    s('s_branch L_done')

Y_WQ=0; Y_WUK=41472; Y_WUV=110592; Y_H=147456; Y_F=147968; Y_O=150016; Y_S=150272; Y_Q=152576; Y_CP=65536
def role_y(s):
    s(f"""s_lshl_b32 s{sU}, s{sG}, 2
          s_lshr_b32 s{sT}, s{sI}, 2
          s_add_u32 s{sU}, s{sU}, s{sT}
          s_and_b32 s{sX}, s{sI}, 3""")
    s.srd(r1, 'wq'); s.srd(r2, 'wuk'); s.srd(r3, 'x')
    s(f"""v_lshlrev_b32 v8, 2, v{vL}
          v_min_u32 v9, 35, v{vL}
          s_mul_i32 s{sT}, s{sW}, 36
          v_add_u32 v9, s{sT}, v9
          s_mul_i32 s{sT}, s{sX}, 144
          v_add_u32 v10, s{sT}, v9
          v_lshlrev_b32 v11, 1, v10
          buffer_load_dwordx4 v[12:15], v{vL16}, s[{r3}:{r3+3}], 0 offen
          buffer_load_dword v16, v8, s[{r3}:{r3+3}], 0 offen offset:1024
          buffer_load_ushort v17, v11, s[{r3}:{r3+3}], 0 offen""")
    s.voff256(18, 19, 8192)
    s(f"""s_mul_i32 s{sT}, s{sX}, {144*8192}
          s_lshl_b32 s{sT+1}, s{sU}, 8
          s_add_u32 s{sT}, s{sT}, s{sT+1}
          s_lshl_b32 s{sT+1}, s{sW}, 18
          s_add_u32 s{sT+1}, s{sT+1}, s{sT}
          s_mul_i32 s{sT+2}, s{sW}, {8*1152}""")
    for i in range(8):
        s(f"""s_add_u32 s{sT+3}, s{sT+1}, {(8*(i&3)+4*(i>>2))*8192}
              s_add_u32 m0, s{sT+2}, {Y_WQ+i*1152}""")
        s.dma(18, r1, sT+3, 'nt')
    s(f"""s_lshl_b32 s{sT+3}, s{sW}, 15
          s_add_u32 s{sT+3}, s{sT+3}, s{sT}
          s_add_u32 s{sT+3}, s{sT+3}, {128*8192}
          s_mul_i32 s{sT+2}, s{sW}, 1152
          s_add_u32 m0, s{sT+2}, {Y_WQ+32*1152}""")
    s.dma(18, r1, sT+3, 'nt')
    s(f"""s_lshl_b32 s{sT}, s{sI}, 18
          s_lshl_b32 s{sT+1}, s{sW}, 16
          s_add_u32 s{sT}, s{sT}, s{sT+1}
          s_lshl_b32 s{sT+1}, s{sG}, 10
          s_add_u32 s{sT}, s{sT}, s{sT+1}
          s_mul_i32 s{sT+2}, s{sW}, {8*1040}""")
    for i in range(8):
        s(f"""s_add_u32 s{sT+3}, s{sT}, {i*8192}
              s_add_u32 m0, s{sT+2}, {Y_WUK+i*1040}""")
        s.dma(vL16, r2, sT+3, 'nt')
    s('s_waitcnt vmcnt(17)')
    s('v_mov_b32 v20, 0\nv_mov_b32 v21, 0')
    for q in range(5):
        s(f"""v_lshlrev_b32 v22, 16, v{12+q}
              v_and_b32 v23, 0xffff0000, v{12+q}
              v_add_f32 v20, v20, v22
              v_fmac_f32 v21, v22, v22
              v_add_f32 v20, v20, v23
              v_fmac_f32 v21, v23, v23""")
    s.wave_red('v_add_f32', 20, 22); s.wave_red('v_add_f32', 21, 22)
    s(f"""v_mul_f32 v20, {fb(1/576)}, v20
          v_mul_f32 v21, {fb(1/576)}, v21
          v_fma_f32 v21, -v20, v20, v21""")
    s.bfr(20, 20); s.bfr(21, 21)
    s(f'v_add_f32 v21, {fb(1e-5)}, v21'); s.bfr(21, 21)
    s('v_sqrt_f32 v21, v21'); s.bfr(21, 21)
    s("""v_rcp_f32 v21, v21
         v_lshlrev_b32 v17, 16, v17
         v_sub_f32 v17, v17, v20""")
    s.bfr(17, 17)
    s('v_mul_f32 v17, v17, v21'); s.bfr(17, 17)
    s.tags()
    s(f"""s_lshl_b32 s{sT}, s{sW}, 1
          s_add_u32 s{sT+1}, s{sT}, 1""")
    s.tr256(20, 22, f's{sT}', Y_WQ); s.tr256(21, 22, f's{sT+1}', Y_WQ)
    s("""s_waitcnt vmcnt(8)
         s_barrier""")
    for c in range(2):
        for kt in range(4):
            for hh in range(2):
                s(f'ds_read_b64_tr_b16 {ar(c*20+kt*4+2*hh,2)}, v{20+c} offset:{(8*kt+4*hh)*1152}')
        s(f'ds_read_b64_tr_b16 {ar(c*20+16,2)}, v{20+c} offset:{32*1152}')
    s(f"""s_and_b32 s{sT}, s{sW}, 1
          s_mul_i32 s{sT}, s{sT}, {16*1040}
          s_add_u32 s{sT}, s{sT}, {Y_WUK}
          v_mul_u32_u24 v22, 1040, v{vP}
          v_lshl_add_u32 v22, v{vGQ}, 3, v22
          v_add_u32 v22, s{sT}, v22
          s_waitcnt vmcnt(0)
          s_barrier""")
    s.ts(1)
    for hd in range(4):
        for st in range(4):
            o = (hd*256+st*64)//8
            s(f'ds_read2_b64 {ar(64+(hd*4+st)*4,4)}, v22 offset0:{o} offset1:{o+4}')
    s('v_lshlrev_b32 v10, 2, v10')
    for kp in range(6): s(f's_mov_b32 s{sT+kp}, {MODP+kp*4608}')
    s(f"""v_lshlrev_b32 v9, 1, v9
          v_add_u32 v9, {Y_H}, v9
          v_lshlrev_b32 v11, 4, v{vGQ}
          v_add_u32 v18, {Y_H}, v11
          v_lshlrev_b32 v19, 3, v{vGQ}
          v_add_u32 v19, {Y_H+256}, v19
          s_lshl_b32 s{sT+6}, s{sU}, 10
          s_lshl_b32 s{sT+7}, s{sX}, 8
          s_add_u32 s{sT+6}, s{sT+6}, s{sT+7}
          s_lshl_b32 s{sT+7}, s{sW}, 6
          s_add_u32 s{sT+6}, s{sT+6}, s{sT+7}
          s_add_u32 s{sT+6}, s{sT+6}, {QP}""")
    lp = s.lab('mp')
    s(f'{lp}:')
    for kp in range(6):
        s(f'buffer_load_dword v{24+kp}, v10, s[{rWS}:{rWS+3}], s{sT+kp} offen sc1')
        s(f'buffer_load_dword v{30+kp}, v10, s[{rWS}:{rWS+3}], s{sT+kp} offen offset:2304 sc1')
    s('s_waitcnt vmcnt(0)')
    s.chk32(8, list(range(24,36)))
    s.retry(8, '0xff', lp)
    s.ts(2)
    for b in (24, 30):
        s(f"""v_add_f32 v{b}, v{b}, v{b+1}
              v_add_f32 v{b+2}, v{b+2}, v{b+3}
              v_add_f32 v{b+4}, v{b+4}, v{b+5}
              v_add_f32 v{b}, v{b}, v{b+2}
              v_add_f32 v{b}, v{b}, v{b+4}""")
    s("""v_cvt_pk_bf16_f32 v24, v24, v30
         v_and_b32 v30, 0xffff0000, v24
         v_lshlrev_b32 v24, 16, v24
         v_add_f32 v30, 1.0, v30""")
    s.bfr(30, 30)
    s('v_mul_f32 v30, v30, v17'); s.bfr(30, 30)
    s("""v_add_f32 v30, v30, v24
         v_cvt_pk_bf16_f32 v30, v30, v30
         ds_write_b16 v9, v30
         s_waitcnt lgkmcnt(0)
         s_barrier""")
    for kt in range(4): s(f'ds_read_b128 {vr(24+4*kt,4)}, v18 offset:{kt*64}')
    s('ds_read_b64 v[40:41], v19\ns_waitcnt lgkmcnt(0)')
    for kt in range(4):
        for c in range(2):
            d = vr(44+4*c,4)
            s(f'{MF} {d}, {ar(c*20+kt*4,4)}, {vr(24+4*kt,4)}, {d if kt else 0}')
    for c in range(2):
        d = vr(44+4*c,4)
        s(f'v_mfma_f32_16x16x16_bf16 {d}, {ar(c*20+16,2)}, v[40:41], {d}')
    for d in range(4): s.packtag(12+d, 44+2*d, 45+2*d, d)
    s.setexec(0x10001, 0x10001)
    s(f'buffer_store_dwordx4 v[12:15], v11, s[{rWS}:{rWS+3}], s{sT+6} offen sc1')
    s.fullexec()
    s.ts(3)
    if s.stop <= 2: s('s_branch L_done'); return
    cdone = s.lab('cdone')
    s(f"""s_cmp_ge_u32 s{sW}, 2
          s_cbranch_scc1 {cdone}
          s_lshl_b32 s{sT}, s{sG}, 12
          s_add_u32 s{sT}, s{sT}, {QP}
          s_lshl_b32 s{sT+1}, s{sW}, 12
          s_add_u32 s{sT+1}, s{sT+1}, {Y_Q}
          v_and_b32 v8, 3, v{vP}
          v_lshrrev_b32 v9, 2, v{vP}
          v_lshl_add_u32 v9, v8, 2, v9
          v_lshlrev_b32 v9, 6, v9
          v_lshl_add_u32 v9, v{vGQ}, 4, v9
          v_add_u32 v9, s{sT+1}, v9
          v_lshrrev_b32 v10, 1, v{vGQ}
          v_lshlrev_b32 v10, 6, v10
          v_lshl_add_u32 v10, v8, 4, v10
          s_lshl_b32 s{sT+3}, s{sI}, 11
          s_lshl_b32 s{sT+4}, s{sG}, 8
          s_add_u32 s{sT+3}, s{sT+3}, s{sT+4}
          s_lshl_b32 s{sT+4}, s{sW}, 7
          s_add_u32 s{sT+3}, s{sT+3}, s{sT+4}
          s_add_u32 s{sT+3}, s{sT+3}, {QA}
          s_mov_b32 s{sT+4}, 0xaaaaaaaa
          s_mov_b32 s{sT+5}, 0xaaaaaaaa
          s_mov_b32 s{sT+6}, 0xcccccccc
          s_mov_b32 s{sT+7}, 0xcccccccc""")
    lp = s.lab('qp')
    s(f'{lp}:')
    for st in range(4):
        s(f"""s_add_u32 s{sT+2}, s{sT}, {st*64}
              s_add_u32 m0, s{sT+1}, {st*1024}""")
        s.dma(vACT, rWS, sT+2, 'sc1')
    s('s_waitcnt vmcnt(0)')
    for st in range(4): s(f'ds_read_b128 {vr(24+4*st,4)}, v9 offset:{st*1024}')
    s('s_waitcnt lgkmcnt(0)')
    s.chk16(8, 24, 16)
    s.retry(8, '0x10001', lp)
    s.ts(4)
    for st in range(4):
        for hd in range(4):
            d = vr(44+4*hd,4)
            s(f'{MF} {d}, {ar(64+(hd*4+st)*4,4)}, {vr(24+4*st,4)}, {d if st else 0}')
    for r in range(4):
        s(f'v_cndmask_b32 v{44+r}, v{44+r}, v{48+r}, s[{sT+4}:{sT+5}]')
        s(f'v_cndmask_b32 v{52+r}, v{52+r}, v{56+r}, s[{sT+4}:{sT+5}]')
    for r in range(4): s(f'v_cndmask_b32 v{44+r}, v{44+r}, v{52+r}, s[{sT+6}:{sT+7}]')
    for k in (4, 8):
        for r in range(4): s(f'v_add_f32_dpp v{44+r}, v{44+r}, v{44+r} row_ror:{k} row_mask:0xf bank_mask:0xf')
    for r in range(4): s(f'v_mul_f32 v{44+r}, {fb(128**-0.5*LOG2E)}, v{44+r}')
    s(f"""v_perm_b32 v12, v45, v44, s{sPERM}
          v_perm_b32 v13, v47, v46, s{sPERM}
          v_mov_b32 v14, v12
          v_mov_b32 v15, v13
          v_permlane16_swap_b32 v12, v14
          v_permlane16_swap_b32 v13, v15""")
    for d in range(4): s.tag16(12+d, d)
    s.setexec(0xf, 0xf)
    s(f'buffer_store_dwordx4 v[12:15], v10, s[{rWS}:{rWS+3}], s{sT+3} offen sc1')
    s.fullexec()
    s.ts(5)
    s(f'{cdone}:\ns_waitcnt lgkmcnt(0)\ns_barrier')
    if s.stop <= 4: s('s_branch L_done'); return
    s.srd(r4, 'wuv')
    s.voff256(18, 19, 16*8192)
    s(f"""s_lshl_b32 s{sT}, s{sX}, 20
          s_lshl_b32 s{sT+1}, s{sW}, 15
          s_add_u32 s{sT}, s{sT}, s{sT+1}
          s_lshl_b32 s{sT+1}, s{sU}, 8
          s_add_u32 s{sT}, s{sT}, s{sT+1}
          s_mul_i32 s{sT+2}, s{sW}, {8*1152}""")
    for i in range(8):
        s(f"""s_add_u32 s{sT+3}, s{sT}, {(64*(i>>2)+(i&3))*8192}
              s_add_u32 m0, s{sT+2}, {Y_WUV+i*1152}""")
        s.dma(18, r4, sT+3, 'nt')
    s(f's_mov_b32 s3, s{sU}\ns_mov_b32 s101, s{sX}')
    lE = s.lab('ldE'); lA2 = s.lab('ldA2'); lF = s.lab('ldF'); lD = s.lab('D')
    s(f"""s_cmp_lt_u32 s{sI}, 9
          s_cbranch_scc1 {lE}
          s_cmp_lt_u32 s{sI}, 14
          s_cbranch_scc1 {lA2}""")
    s(f"""s_mul_i32 s{sU}, s{sG}, 18
          s_add_u32 s{sU}, s{sU}, s{sI}
          s_add_u32 s{sU}, s{sU}, 2""")
    ffn_load(s)
    s(f's_branch {lD}')
    s(f'{lE}:')
    s.srd(r1, 'wo')
    s.voff128(8, 9, 1152, 1, 16)
    s(f"""s_lshl_b32 s{sT}, s{sG}, 2
          s_add_u32 s{sT}, s{sT}, s{sW}
          s_mul_i32 s{sT}, s{sT}, {128*1152}
          s_lshl_b32 s{sT+1}, s{sI}, 7
          s_add_u32 s{sT}, s{sT}, s{sT+1}
          s_lshl_b32 s{sT+2}, s{sW}, 14""")
    for kt in range(4):
        for i in range(4):
            s(f"""s_add_u32 s{sT+3}, s{sT}, {(64*(i>>1)+2*(i&1)+4*kt)*1152}
                  s_add_u32 m0, s{sT+2}, {kt*4096+i*1024}""")
            s.dma(8, r1, sT+3, 'nt')
    s(f's_branch {lD}')
    s(f"""{lA2}:
          s_sub_u32 s{sU}, s{sI}, 9
          s_lshl_b32 s{sU}, s{sU}, 3
          s_add_u32 s{sU}, s{sU}, s{sG}
          s_cmp_ge_u32 s{sU}, 36
          s_cbranch_scc1 {lD}""")
    s.srd(r1, 'wmod'); s.srd(r2, 'c')
    s(f"""v_lshlrev_b32 v8, 2, v0
          buffer_load_dword v16, v8, s[{r2}:{r2+3}], 0 offen
          buffer_load_dword v17, v8, s[{r2}:{r2+3}], 0 offen offset:1024""")
    s.voff128(9, 10, 6912, 8, 1)
    s(f"""s_and_b32 s{sT}, s{sW}, 1
          s_lshl_b32 s{sT}, s{sT}, 4
          s_and_b32 s{sT+1}, s{sW}, 2
          s_lshl_b32 s{sT+1}, s{sT+1}, 1
          s_add_u32 s{sT}, s{sT}, s{sT+1}
          s_mul_i32 s{sT}, s{sT}, 6912
          s_lshl_b32 s{sT+1}, s{sU}, 7
          s_add_u32 s{sT}, s{sT}, s{sT+1}
          s_add_u32 s{sT}, s{sT}, 2304
          s_lshl_b32 m0, s{sW}, 10
          s_mov_b32 s{sT+2}, 0""")
    lp = s.lab('a2')
    s(f'{lp}:')
    s.dma(9, r1, sT, 'nt')
    s(f"""s_add_u32 s{sT}, s{sT}, {32*6912}
          s_add_u32 m0, m0, 4096
          s_add_u32 s{sT+2}, s{sT+2}, 1
          s_cmp_lt_u32 s{sT+2}, 18
          s_cbranch_scc1 {lp}
          s_waitcnt vmcnt(18)""")
    s.silu(16, 10); s.silu(17, 10)
    s(f"""v_add_u32 v8, {Y_S}, v8
          ds_write_b32 v8, v16
          ds_write_b32 v8, v17 offset:1024
          s_waitcnt vmcnt(0) lgkmcnt(0)
          s_barrier""")
    s.tr128(20, 22, f's{sW}', 0)
    s(f"""v_add_u32 v21, 0x8000, v20
          v_lshlrev_b32 v23, 4, v{vGQ}
          v_add_u32 v22, {Y_S}, v23""")
    for kt in range(18):
        for hh in range(2):
            off = kt*4096+hh*2048
            s(f'ds_read_b64_tr_b16 {ar(128+4*kt+2*hh,2)}, v{20 if off<0x8000 else 21} offset:{off if off<0x8000 else off-0x8000}')
        s(f'ds_read_b128 {vr(64+4*kt,4)}, v22 offset:{kt*64}')
    s('s_waitcnt lgkmcnt(0)')
    for kt in range(18):
        s(f'{MF} v[12:15], {ar(128+4*kt,4)}, {vr(64+4*kt,4)}, {"v[12:15]" if kt else 0}')
    for r in range(4):
        s.bfr(12+r, 12+r); s(f'v_or_b32 v{12+r}, s{sT8}, v{12+r}')
    s(f"""s_lshl_b32 s{sT}, s{sU}, 8
          s_lshl_b32 s{sT+1}, s{sW}, 6
          s_add_u32 s{sT}, s{sT}, s{sT+1}
          s_add_u32 s{sT}, s{sT}, {MOD2}""")
    s.setexec(0x10001, 0x10001)
    s(f'buffer_store_dwordx4 v[12:15], v23, s[{rWS}:{rWS+3}], s{sT} offen sc1')
    s.fullexec()
    s(f'{lD}:')
    s(f's_mul_i32 s{sT}, s{sW}, {8*1152}\ns_add_u32 s{sT}, s{sT}, {Y_WUV}')
    s.tr256(20, 22, 0, f's{sT}')
    s('s_waitcnt vmcnt(0)')
    s.ts(6)
    for cg in range(8):
        if cg: s.tr256(20, 22, cg, f's{sT}')
        for hh in range(2):
            s(f'ds_read_b64_tr_b16 {ar(4*cg+2*hh,2)}, v20 offset:{4*hh*1152}')
    s(f"""s_and_b32 s{sT}, s3, 15
          s_lshl_b32 s{sT}, s{sT}, 4
          s_lshr_b32 s{sT+1}, s3, 4
          s_lshl_b32 s{sT+1}, s{sT+1}, 3
          s_add_u32 s{sT}, s{sT}, s{sT+1}
          s_add_u32 s{sT}, s{sT}, {ML}
          s_add_u32 s{sT+1}, s{sT}, 16384
          v_lshlrev_b32 v8, 8, v{vL}
          s_lshl_b32 s{sT+2}, s{sW}, 9
          s_add_u32 s{sT+2}, s{sT+2}, {Y_F}
          v_lshlrev_b32 v9, 5, v{vP}
          v_lshl_add_u32 v9, v{vGQ}, 2, v9
          v_add_u32 v9, s{sT+2}, v9
          v_lshrrev_b32 v10, 2, v{vL}
          v_lshlrev_b32 v10, 5, v10
          v_add_u32 v10, s{sT+2}, v10""")
    lp = s.lab('ml')
    s(f"""{lp}:
          buffer_load_dwordx2 v[12:13], v8, s[{rWS}:{rWS+3}], s{sT} offen sc1
          buffer_load_dwordx2 v[14:15], v8, s[{rWS}:{rWS+3}], s{sT+1} offen sc1
          s_waitcnt vmcnt(0)""")
    s.chk32(11, [12,13,14,15])
    s.retry(11, '0xff', lp)
    s(f"""v_and_b32 v12, v12, v{vMF}
          v_and_b32 v14, v14, v{vMF}
          v_max_f32 v16, v12, v14""")
    s.wave_red('v_max_f32', 16, 17)
    s("""v_sub_f32 v12, v12, v16
         v_sub_f32 v14, v14, v16
         v_cvt_i32_f32 v12, v12
         v_cvt_i32_f32 v14, v14
         v_ldexp_f32 v12, 1.0, v12
         v_ldexp_f32 v14, 1.0, v14
         v_and_b32 v12, 0xffff0000, v12
         v_and_b32 v14, 0xffff0000, v14
         ds_write_b32 v9, v12
         ds_write_b32 v9, v14 offset:16
         v_mul_f32 v16, v12, v13
         v_fmac_f32 v16, v14, v15""")
    s.wave_red('v_add_f32', 16, 17)
    s(f"""v_rcp_f32 v16, v16
          s_waitcnt lgkmcnt(0)
          ds_read_b128 v[24:27], v10
          ds_read_b128 v[28:31], v10 offset:16
          s_lshl_b32 s{sT}, s3, 2
          s_add_u32 s{sT}, s{sT}, s101
          s_lshl_b32 s{sT+1}, s{sT}, 15
          s_lshl_b32 s{sT+2}, s{sW}, 6
          s_add_u32 s{sT+1}, s{sT+1}, s{sT+2}
          s_add_u32 s{sT+1}, s{sT+1}, {OP}
          s_lshl_b32 s{sT}, s{sT}, 10
          s_lshl_b32 s{sT+3}, s{sW}, 8
          s_add_u32 s{sT}, s{sT}, s{sT+3}
          s_add_u32 s{sT}, s{sT}, {CP}
          s_add_u32 s{sT+2}, s{sT+2}, {Y_O}
          v_and_b32 v9, 3, v{vL}
          v_lshlrev_b32 v9, 4, v9
          v_lshl_add_u32 v9, v{vGQ}, 2, v9
          v_add_u32 v9, s{sT+2}, v9
          v_lshlrev_b32 v10, 4, v{vGQ}
          v_add_u32 v10, s{sT+2}, v10
          s_waitcnt lgkmcnt(0)""")
    for i in range(8): s(f'v_lshrrev_b32 v{32+i}, 16, v{24+i}')
    lp = s.lab('op')
    s(f'{lp}:')
    for i in range(8):
        s(f's_add_u32 s{sT+3}, s{sT+1}, {i*4096}')
        s(f'buffer_load_dwordx4 {vr(64+4*i,4)}, v{vACT}, s[{rWS}:{rWS+3}], s{sT+3} offen sc1')
    s('s_waitcnt vmcnt(0)')
    s.chk16(11, 64, 32)
    s.retry(11, '0x10001', lp)
    s.ts(7)
    for e in range(8): s(f'v_mov_b32 v{40+e}, 0')
    for i in range(8):
        for d in range(4):
            s(f'v_dot2c_f32_bf16 v{40+2*d}, v{64+4*i+d}, v{32+i}')
            s(f'v_dot2c_f32_bf16 v{41+2*d}, v{64+4*i+d}, v{24+i}')
    for e in range(4): s(f'v_permlane32_swap_b32 v{40+e}, v{44+e}')
    for e in range(4): s(f'v_add_f32 v{40+e}, v{40+e}, v{44+e}')
    for e in range(2): s(f'v_permlane16_swap_b32 v{40+e}, v{42+e}')
    for e in range(2): s(f'v_add_f32 v{40+e}, v{40+e}, v{42+e}')
    for k in (4, 8):
        for e in range(2): s(f'v_add_f32_dpp v{40+e}, v{40+e}, v{40+e} row_ror:{k} row_mask:0xf bank_mask:0xf')
    s("""v_cvt_pk_bf16_f32 v40, v40, v41
         ds_write_b32 v9, v40
         s_waitcnt lgkmcnt(0)
         ds_read_b128 v[44:47], v10
         s_waitcnt lgkmcnt(0)""")
    for cg in range(8): s(f'{MF} {vr(64+4*cg,4)}, v[44:47], {ar(4*cg,4)}, 0')
    for cg in range(8): s(f'v_mul_f32 v{64+4*cg}, v{64+4*cg}, v16')
    for d in range(4): s.packtag(12+d, 64+8*d, 68+8*d, d)
    s.setexec(0xffff, 0)
    s(f'buffer_store_dwordx4 v[12:15], v{vL16}, s[{rWS}:{rWS+3}], s{sT} offen sc1')
    s.fullexec()
    s.ts(8)
    if s.stop <= 5: s('s_branch L_done'); return
    lFin = s.lab('fin')
    s(f"""s_cmp_ge_u32 s{sI}, 14
          s_cbranch_scc1 {'L_ffn' if s.stop > 6 else 'L_done'}
          s_cmp_ge_u32 s{sI}, 9
          s_cbranch_scc1 {lFin}""")
    s('s_barrier')
    s.tr128(20, 22, f's{sW}', 0)
    s('v_add_u32 v21, 0x8000, v20')
    for kt in range(16):
        for hh in range(2):
            off = kt*4096+hh*2048
            s(f'ds_read_b64_tr_b16 {ar(128+4*kt+2*hh,2)}, v{20 if off<0x8000 else 21} offset:{off if off<0x8000 else off-0x8000}')
    s(f"""s_lshl_b32 s{sT}, s{sI}, 6
          s_lshl_b32 s{sT+1}, s{sW}, 4
          s_add_u32 s{sT}, s{sT}, s{sT+1}
          s_lshl_b32 s{sT+1}, s{sT}, 2
          s_add_u32 s{sT+2}, s{sT+1}, {MOD2}
          s_add_u32 s{sT+3}, s{sT+1}, {MOD2+4608}
          s_lshl_b32 s{sT}, s{sT}, 1
          v_lshlrev_b32 v8, 4, v{vGQ}
          v_lshlrev_b32 v9, 3, v{vGQ}
          buffer_load_dwordx2 v[18:19], v9, s[{r3}:{r3+3}], s{sT} offen""")
    lp = s.lab('ga')
    s(f"""{lp}:
          buffer_load_dwordx4 v[24:27], v8, s[{rWS}:{rWS+3}], s{sT+2} offen sc1
          buffer_load_dwordx4 v[28:31], v8, s[{rWS}:{rWS+3}], s{sT+3} offen sc1
          s_waitcnt vmcnt(0)""")
    s.chk32(11, list(range(24,32)))
    s.retry(11, '0xff', lp)
    for r in range(4):
        s(f"""v_and_b32 v{24+r}, 0xffff0000, v{24+r}
              v_and_b32 v{28+r}, 0xffff0000, v{28+r}
              v_add_f32 v{28+r}, 1.0, v{28+r}""")
        s.bfr(28+r, 28+r)
    s(f"""s_cmp_eq_u32 s{sG}, 0
          s_cselect_b32 s{sT+4}, -1, 0
          v_and_b32 v18, s{sT+4}, v18
          v_and_b32 v19, s{sT+4}, v19
          v_lshlrev_b32 v32, 16, v18
          v_and_b32 v33, 0xffff0000, v18
          v_lshlrev_b32 v34, 16, v19
          v_and_b32 v35, 0xffff0000, v19""")
    s(f"""v_and_b32 v10, 1, v{vGQ}
          v_mul_u32_u24 v10, {8*1152}, v10
          v_lshrrev_b32 v11, 1, v{vGQ}
          v_lshl_add_u32 v10, v11, 4, v10
          s_mul_i32 s{sT+4}, s{sG}, 1152
          s_add_u32 s{sT}, s{sT}, s{sT+4}
          s_add_u32 s{sT}, s{sT}, {TR}
          s_lshl_b32 s{sT+4}, s{sT+4}, 1
          s_add_u32 s{sT+1}, s{sT+1}, s{sT+4}
          s_add_u32 s{sT+1}, s{sT+1}, {T32}
          s_lshl_b32 s{sT+2}, s{sG}, 2
          s_add_u32 s{sT+2}, s{sT+2}, s{sW}
          s_lshl_b32 s{sT+2}, s{sT+2}, 12
          s_add_u32 s{sT+2}, s{sT+2}, {CP}
          s_lshl_b32 s{sT+3}, s{sW}, 12
          s_add_u32 s{sT+3}, s{sT+3}, {Y_CP}
          v_lshlrev_b32 v12, 6, v{vP}
          v_lshl_add_u32 v12, v{vGQ}, 4, v12
          v_add_u32 v13, s{sT+3}, v12
          v_add_u32 v12, {Y_CP}, v12""")
    lp = s.lab('cp')
    s(f'{lp}:')
    for kt in range(4):
        s(f"""s_add_u32 s{sT+4}, s{sT+2}, {kt*64}
              s_add_u32 m0, s{sT+3}, {kt*1024}""")
        s.dma(vACT, rWS, sT+4, 'sc1')
    s('s_waitcnt vmcnt(0)')
    for kt in range(4): s(f'ds_read_b128 {vr(40+4*kt,4)}, v13 offset:{kt*1024}')
    s('s_waitcnt lgkmcnt(0)')
    s.chk16(11, 40, 16)
    s.retry(11, '0x10001', lp)
    s('s_barrier')
    for kt in range(16): s(f'ds_read_b128 {vr(64+4*kt,4)}, v12 offset:{kt*1024}')
    for kt in range(16):
        s(f's_waitcnt lgkmcnt({15-kt})')
        s(f'{MF} v[40:43], {ar(128+4*kt,4)}, {vr(64+4*kt,4)}, {"v[40:43]" if kt else 0}')
    for k in (8, 4, 2, 1):
        for r in range(4): s(f'v_add_f32_dpp v{40+r}, v{40+r}, v{40+r} row_ror:{k} row_mask:0xf bank_mask:0xf')
    for r in range(4): s(f'v_fma_f32 v{40+r}, v{40+r}, v{24+r}, v{32+r}')
    for r in range(4): s(f'v_mul_f32 v{44+r}, v{40+r}, v{28+r}')
    s(f"""v_perm_b32 v48, v41, v40, s{sPERM}
          v_perm_b32 v49, v43, v42, s{sPERM}
          v_perm_b32 v50, v45, v44, s{sPERM}
          v_perm_b32 v51, v47, v46, s{sPERM}
          v_permlane16_swap_b32 v48, v50
          v_permlane16_swap_b32 v49, v51""")
    for d in range(4): s.tag16(48+d, d)
    for r in range(4): s.tag32(40+r, 40+r)
    s.setexec(0x10001, 0x10001)
    s(f'buffer_store_dwordx4 v[48:51], v10, s[{rWS}:{rWS+3}], s{sT} offen sc1')
    s(f'buffer_store_dwordx4 v[40:43], v8, s[{rWS}:{rWS+3}], s{sT+1} offen sc1')
    s.fullexec()
    s.ts(5)
    s('s_branch L_done')
    s(f"""{lFin}:
          s_cmp_ge_u32 s{sU}, 36
          s_cbranch_scc1 L_done
          s_cmp_lg_u32 s{sW}, 0
          s_cbranch_scc1 L_done""")
    if s.stop <= 7: s('s_branch L_done'); return
    s.srd(r1, 'out')
    s(f"""s_mul_i32 s{sT}, s{sU}, 7282
          s_lshr_b32 s{sT}, s{sT}, 16
          s_mul_i32 s{sT+1}, s{sT}, 9
          s_sub_u32 s{sT+1}, s{sU}, s{sT+1}
          s_mul_i32 s{sT}, s{sT}, 144
          s_lshr_b32 s{sT+2}, s{sT+1}, 2
          s_lshl_b32 s{sT+2}, s{sT+2}, 6
          s_add_u32 s{sT}, s{sT}, s{sT+2}
          s_and_b32 s{sT+2}, s{sT+1}, 3
          s_lshl_b32 s{sT+2}, s{sT+2}, 2
          s_add_u32 s{sT}, s{sT}, s{sT+2}
          s_cmp_eq_u32 s{sT+1}, 8
          s_cselect_b32 s{sT+2}, 4, 1
          s_cselect_b32 s{sT+3}, 1, 16
          v_and_b32 v8, 3, v{vL}
          v_mul_u32_u24 v9, s{sT+2}, v8
          v_add_u32 v9, s{sT}, v9
          v_add_u32 v10, s{sT+3}, v9
          v_add_u32 v11, s{sT+3}, v10
          v_add_u32 v12, s{sT+3}, v11
          v_lshrrev_b32 v13, 2, v{vL}
          v_and_b32 v14, 7, v13
          v_mul_u32_u24 v14, 2304, v14
          v_mul_u32_u24 v13, 2304, v13
          v_lshl_add_u32 v13, v8, 4, v13
          s_mov_b32 s{sT+4}, {T32}
          s_mov_b32 s{sT+5}, {MOD2+3*2304}""")
    for i in range(4):
        s(f'v_lshlrev_b32 v{16+i}, 2, v{9+i}\nv_add_u32 v{20+i}, v{16+i}, v14\nv_lshlrev_b32 v{9+i}, 1, v{9+i}')
    lp = s.lab('t32')
    s(f'{lp}:')
    for i in range(4):
        s(f'buffer_load_dword v{24+i}, v{20+i}, s[{rWS}:{rWS+3}], s{sT+4} offen sc1')
        s(f'buffer_load_dword v{28+i}, v{16+i}, s[{rWS}:{rWS+3}], s{sT+5} offen sc1')
    s('s_waitcnt vmcnt(0)')
    s.chk32(15, list(range(24,32)))
    s.retry(15, '0xff', lp)
    for k in (4, 8):
        for i in range(4): s(f'v_add_f32_dpp v{24+i}, v{24+i}, v{24+i} row_ror:{k} row_mask:0xf bank_mask:0xf')
    for i in range(4):
        s(f"""v_mov_b32 v15, v{24+i}
              v_permlane16_swap_b32 v{24+i}, v15
              v_add_f32 v{24+i}, v{24+i}, v15""")
        s.bfr(24+i, 24+i)
        s(f'v_and_b32 v{28+i}, 0xffff0000, v{28+i}')
    s(f"""s_lshl_b32 s{sT}, s{sU}, 6
          s_add_u32 s{sT}, s{sT}, {YP}""")
    lp = s.lab('yp')
    s(f'{lp}:')
    for i in range(9):
        s(f's_add_u32 s{sT+1}, s{sT}, {i*16*2304}')
        s(f'buffer_load_dwordx4 {vr(64+4*i,4)}, v13, s[{rWS}:{rWS+3}], s{sT+1} offen sc1')
    s('s_waitcnt vmcnt(0)')
    s.chk32(15, list(range(64,100)))
    s.retry(15, '0xff', lp)
    s.ts(4)
    for i in range(1, 9):
        for e in range(4): s(f'v_add_f32 v{64+e}, v{64+e}, v{64+4*i+e}')
    for k in (4, 8):
        for e in range(4): s(f'v_add_f32_dpp v{64+e}, v{64+e}, v{64+e} row_ror:{k} row_mask:0xf bank_mask:0xf')
    for sw in ('v_permlane16_swap_b32', 'v_permlane32_swap_b32'):
        for e in range(4): s(f'v_mov_b32 v{68+e}, v{64+e}')
        for e in range(4): s(f'{sw} v{64+e}, v{68+e}')
        for e in range(4): s(f'v_add_f32 v{64+e}, v{64+e}, v{68+e}')
    for e in range(4):
        s.bfr(64+e, 64+e)
        s(f'v_mul_f32 v{64+e}, v{64+e}, v{28+e}')
        s.bfr(64+e, 64+e)
        s(f'v_add_f32 v{64+e}, v{64+e}, v{24+e}')
        s(f'v_cvt_pk_bf16_f32 v{64+e}, v{64+e}, v{64+e}')
    s.setexec(0xf, 0)
    for e in range(4): s(f'buffer_store_short v{64+e}, v{9+e}, s[{r1}:{r1+3}], 0 offen')
    s(f"""s_cmp_lg_u32 s{sU}, 0
          s_cbranch_scc1 L_done
          s_mov_b64 exec, 1
          v_mov_b32 v8, 0
          v_mov_b32 v9, s{sE}
          buffer_store_dword v9, v8, s[{rWS}:{rWS+3}], 0 offen sc1
          s_branch L_done""")

def build(diag=False, stop=99):
    s = G(diag, stop)
    prologue(s)
    role_y(s)
    role_x(s)
    if stop > 4:
        s('L_ffn_load:')
        if stop > 6:
            s('s_barrier')
            ffn_load(s)
            ffn_compute(s)
    epilogue(s)
    body = s.finalize(verbose=True)
    hdr = open('cdna_kernels/'+NAME+'.s.ref').read().split('\n')
    head = [l for l in hdr[:17]]
    txt = '\n'.join(head) + f"""
; @launch grid=(256,1,1) block=(256,1,1) lds=163840
.amdgcn_target "amdgcn-amd-amdhsa--gfx950"
.text
.globl {NAME}_kernel
.p2align 8
.type {NAME}_kernel,@function
{NAME}_kernel:
""" + body + f""".section .rodata,"a"
.p2align 6
.amdhsa_kernel {NAME}_kernel
  .amdhsa_next_free_vgpr 512
  .amdhsa_next_free_sgpr 102
  .amdhsa_accum_offset 256
  .amdhsa_group_segment_fixed_size 0
  .amdhsa_kernarg_size 120
  .amdhsa_user_sgpr_count 2
  .amdhsa_user_sgpr_kernarg_segment_ptr 1
  .amdhsa_system_sgpr_workgroup_id_x 1
.end_amdhsa_kernel
"""
    return txt

if __name__ == '__main__':
    ap = argparse.ArgumentParser()
    ap.add_argument('out'); ap.add_argument('--diag', action='store_true'); ap.add_argument('--stop', type=int, default=99)
    a = ap.parse_args()
    open(a.out, 'w').write(build(a.diag, a.stop))
```

```python
import sys, argparse
from asmlib import NAME, SIZES
from asmgen import Asm, vr, ar, sr

MODP=0x1000; QP=0x8000; QA=0x10000; ML=0x18000; CP=0x20000; MOD2=0x40000; TR=0x44000; T32=0x49000
YP=0x50000; OP=0x100000; DBGT=0x500000; WS_USED=0x600000
PTR = dict(x=4, ckv=6, wq=8, wuk=10, wuv=12, wo=14, bx=16, wg=18, wu=20, wd=22, c=24, wmod=26, out=28, dbg=30, ws=32)
sE=34; sW=35; sG=36; sI=37; sPERM=38; sT8=39; sTD=40; sKD=44
rWS=48; r1=52; r2=56; r3=60; r4=64
sT=68
sTS=76
sSPIN=96; sU=97; sX=98
vL=1; vGQ=2; vP=3; vL16=4; vMB=5; vMF=6; vACT=7
SPIN_LIMIT=40000
LOG2E=1.4426950408889634
import struct
def fb(x): return '0x%08x' % struct.unpack('<I', struct.pack('<f', x))[0]

class G(Asm):
    def __init__(s, diag=False, stop=99):
        super().__init__(); s.diag=diag; s.stop=stop
    def srd(s, r, name, size=None):
        p = PTR[name]; size = size if size is not None else SIZES[name]
        s(f"""s_mov_b32 s{r}, s{p}
              s_mov_b32 s{r+1}, s{p+1}
              s_mov_b32 s{r+2}, {size}
              s_mov_b32 s{r+3}, 0x20000""")
    def ts(s, k):
        if s.diag: s(f's_memrealtime s[{sTS+2*k}:{sTS+2*k+1}]')
    def dma(s, voff, srd, soff, flags):
        s(f'buffer_load_dwordx4 v{voff}, s[{srd}:{srd+3}], s{soff} offen {flags} lds')
    def packtag(s, dst, lo, hi, d):
        s(f'v_perm_b32 v{dst}, v{hi}, v{lo}, s{sPERM}')
        s.tag16(dst, d)
    def tag16(s, dst, d):
        s(f"""v_add_u32 v{dst}, s{sKD+d}, v{dst}
              v_and_or_b32 v{dst}, v{dst}, v{vMB}, s{sTD+d}""")
    def tag32(s, dst, src):
        s(f'v_and_or_b32 v{dst}, v{src}, v{vMF}, s{sT8}')
    def chk16(s, acc, base, n, first=True):
        for i in range(n):
            if first and i == 0: s(f'v_xor_b32 v{acc}, s{sTD}, v{base}')
            else: s(f'v_bitop3_b32 v{acc}, v{base+i}, s{sTD+(i&3)}, v{acc} bitop3:0xbe')
    def chk32(s, acc, regs, first=True):
        for i, r in enumerate(regs):
            if first and i == 0: s(f'v_xor_b32 v{acc}, s{sT8}, v{r}')
            else: s(f'v_bitop3_b32 v{acc}, v{r}, s{sT8}, v{acc} bitop3:0xbe')
    def retry(s, acc, mask, loop):
        done = s.lab('ok')
        s(f"""v_and_b32 v{acc}, {mask}, v{acc}
              v_cmp_ne_u32 vcc, 0, v{acc}
              s_cbranch_vccz {done}
              s_add_u32 s{sSPIN}, s{sSPIN}, 1
              s_cmp_lt_u32 s{sSPIN}, {SPIN_LIMIT}
              s_cbranch_scc1 {loop}
              {done}:""")
    def setexec(s, lo, hi):
        s(f's_mov_b32 exec_lo, {lo:#x}\ns_mov_b32 exec_hi, {hi:#x}')
    def fullexec(s): s('s_mov_b64 exec, -1')
    def bfr(s, dst, src):
        s(f"""v_cvt_pk_bf16_f32 v{dst}, v{src}, v{src}
              v_and_b32 v{dst}, 0xffff0000, v{dst}""")
    def wave_red(s, op, r, t):
        for k in (8, 4, 2, 1):
            s(f'{op}_dpp v{r}, v{r}, v{r} row_ror:{k} row_mask:0xf bank_mask:0xf')
        s(f"""v_mov_b32 v{t}, v{r}
              v_permlane16_swap_b32 v{r}, v{t}
              {op} v{r}, v{r}, v{t}
              v_mov_b32 v{t}, v{r}
              v_permlane32_swap_b32 v{r}, v{t}
              {op} v{r}, v{r}, v{t}""")
    def tags(s):
        s(f"""s_waitcnt lgkmcnt(0)
              s_add_u32 s{sE}, s{sE}, 1
              s_and_b32 s{sT8}, s{sE}, 0xff""")
        for d in range(4):
            s(f"""s_bfe_u32 s{sT}, s{sT8}, {(2*d)|(1<<16):#x}
                  s_bfe_u32 s{sT+1}, s{sT8}, {(2*d+1)|(1<<16):#x}
                  s_lshl_b32 s{sT+1}, s{sT+1}, 16
                  s_or_b32 s{sTD+d}, s{sT}, s{sT+1}
                  s_xor_b32 s{sKD+d}, s{sTD+d}, 0x10001""")
    def silu(s, src, t):
        s(f"""v_lshlrev_b32 v{t}, 16, v{src}
              v_and_b32 v{t+1}, 0xffff0000, v{src}
              v_mul_f32 v{t+2}, {fb(-LOG2E)}, v{t}
              v_mul_f32 v{t+3}, {fb(-LOG2E)}, v{t+1}
              v_exp_f32 v{t+2}, v{t+2}
              v_exp_f32 v{t+3}, v{t+3}
              v_add_f32 v{t+2}, 1.0, v{t+2}
              v_add_f32 v{t+3}, 1.0, v{t+3}
              v_rcp_f32 v{t+2}, v{t+2}
              v_rcp_f32 v{t+3}, v{t+3}
              v_mul_f32 v{t}, v{t}, v{t+2}
              v_mul_f32 v{t+1}, v{t+1}, v{t+3}
              v_cvt_pk_bf16_f32 v{src}, v{t}, v{t+1}""")
    def voff128(s, dst, t, RS, a, b):
        s(f"""v_lshrrev_b32 v{t}, 3, v{vL}
              v_and_b32 v{dst}, 6, v{t}
              v_xor_b32 v{dst}, v{dst}, v{vL}
              v_and_b32 v{dst}, 7, v{dst}
              v_lshlrev_b32 v{dst}, 4, v{dst}
              v_lshrrev_b32 v{t+1}, 2, v{t}
              v_and_b32 v{t}, 3, v{t}
              v_mov_b32 v{t+2}, {a*RS}
              v_mad_u32_u24 v{dst}, v{t+1}, v{t+2}, v{dst}
              v_mov_b32 v{t+2}, {b*RS}
              v_mad_u32_u24 v{dst}, v{t}, v{t+2}, v{dst}""")
    def tr128(s, dst, t, cg, base):
        s(f"""v_lshrrev_b32 v{t}, 2, v{vL}
              v_lshlrev_b32 v{dst}, 7, v{t}
              v_lshrrev_b32 v{t}, 1, v{t}
              v_and_b32 v{t}, 3, v{t}
              v_xor_b32 v{t}, {cg}, v{t}
              v_lshl_add_u32 v{dst}, v{t}, 5, v{dst}
              v_and_b32 v{t}, 3, v{vL}
              v_lshl_add_u32 v{dst}, v{t}, 3, v{dst}""")
        if base: s(f'v_add_u32 v{dst}, {base}, v{dst}')
    def voff256(s, dst, t, RSL):
        s(f"""v_lshlrev_b32 v{t}, 1, v{vGQ}
              v_xor_b32 v{dst}, v{t}, v{vP}
              v_lshlrev_b32 v{dst}, 4, v{dst}
              v_mov_b32 v{t}, {RSL}
              v_mad_u32_u24 v{dst}, v{vGQ}, v{t}, v{dst}""")
    def tr256(s, dst, t, cg, base):
        s(f"""v_lshrrev_b32 v{t}, 2, v{vP}
              v_mul_u32_u24 v{dst}, 1152, v{vGQ}
              v_lshl_add_u32 v{dst}, v{t}, 8, v{dst}
              v_xor_b32 v{t}, {cg}, v{t}
              v_lshl_add_u32 v{dst}, v{t}, 5, v{dst}
              v_and_b32 v{t}, 3, v{vL}
              v_lshl_add_u32 v{dst}, v{t}, 3, v{dst}""")
        if base: s(f'v_add_u32 v{dst}, {base}, v{dst}')

MF='v_mfma_f32_16x16x32_bf16'

def prologue(s):
    s(f"""s_cmp_ge_u32 s2, 256
          s_cbranch_scc1 L_end
          s_load_dwordx16 s[4:19], s[0:1], 0
          s_load_dwordx8 s[20:27], s[0:1], 64
          s_load_dwordx4 s[28:31], s[0:1], 96
          s_load_dwordx2 s[32:33], s[0:1], 112""")
    s.ts(0)
    s(f"""v_lshrrev_b32 v8, 6, v0
          v_and_b32 v{vL}, 63, v0
          v_readfirstlane_b32 s{sW}, v8
          v_lshrrev_b32 v{vGQ}, 4, v{vL}
          v_and_b32 v{vP}, 15, v{vL}
          v_lshlrev_b32 v{vL16}, 4, v{vL}
          v_mov_b32 v{vMB}, 0xfffefffe
          v_mov_b32 v{vMF}, 0xffffff00
          v_lshrrev_b32 v8, 2, v{vL}
          v_and_b32 v9, 3, v{vL}
          v_lshlrev_b32 v9, 4, v9
          v_lshl_add_u32 v{vACT}, v8, 8, v9
          s_mov_b32 s{sPERM}, 0x07060302
          s_mov_b32 s{sSPIN}, 0
          s_and_b32 s{sG}, s2, 7
          s_lshr_b32 s{sI}, s2, 4
          s_waitcnt lgkmcnt(0)
          s_load_dword s{sE}, s[32:33], 0""")
    s.srd(rWS, 'ws', WS_USED)
    s(f"""s_bitcmp1_b32 s2, 3
          s_cbranch_scc1 L_X""")

def epilogue(s):
    s('L_done:')
    if s.diag:
        s(f"""s_memrealtime s[{sTS+18}:{sTS+19}]
              s_waitcnt lgkmcnt(0)
              s_lshl_b32 s{sT}, s2, 2
              s_add_u32 s{sT}, s{sT}, s{sW}
              s_lshl_b32 s{sT}, s{sT}, 6
              s_add_u32 s{sT}, s{sT}, {DBGT}
              s_mov_b64 exec, 1
              v_mov_b32 v8, 0""")
        for k in range(10): s(f'v_mov_b32 v{12+k}, s{sTS+2*k}')
        s(f"""v_mov_b32 v22, s{sSPIN}
              s_getreg_b32 s{sT+1}, hwreg(HW_REG_XCC_ID)
              v_mov_b32 v23, s{sT+1}
              buffer_store_dwordx4 v[12:15], v8, s[{rWS}:{rWS+3}], s{sT} offen
              buffer_store_dwordx4 v[16:19], v8, s[{rWS}:{rWS+3}], s{sT} offen offset:16
              buffer_store_dwordx4 v[20:23], v8, s[{rWS}:{rWS+3}], s{sT} offen offset:32""")
    if s.diag:
        for wg, off in ((144, 0), (12, 32)):
            l = s.lab('dbg')
            s(f"""s_cmp_lg_u32 s2, {wg}
                  s_cbranch_scc1 {l}
                  s_cmp_lg_u32 s{sW}, 0
                  s_cbranch_scc1 {l}""")
            s.srd(r1, 'dbg')
            for k in range(1, 10): s(f'v_subrev_u32 v{12+k}, v12, v{12+k}')
            s(f"""buffer_store_dwordx4 v[12:15], v8, s[{r1}:{r1+3}], 0 offen offset:{off}
                  buffer_store_dwordx4 v[18:21], v8, s[{r1}:{r1+3}], 0 offen offset:{off+16}
                  {l}:""")
    s('L_end:\ns_endpgm')

def gemv128(s, nk, LW, LA, D, areg, vreg, t):
    s.tr128(t, t+2, f's{sW}', LW)
    s(f'v_add_u32 v{t+1}, 0x8000, v{t}')
    s(f'v_lshlrev_b32 v{t+2}, 4, v{vGQ}')
    for kt in range(nk):
        for hh in range(2):
            off = kt*4096+hh*2048
            b = t if off < 0x8000 else t+1
            if off >= 0x8000: off -= 0x8000
            s(f'ds_read_b64_tr_b16 {ar(areg+4*kt+2*hh,2)}, v{b} offset:{off}')
        s(f'ds_read_b128 {vr(vreg+4*kt,4)}, v{t+2} offset:{LA+kt*64}' if LA+kt*64 < 65536 else 'BAD')
    s('s_waitcnt lgkmcnt(0)')
    for kt in range(nk):
        s(f'{MF} {vr(D,4)}, {ar(areg+4*kt,4)}, {vr(vreg+4*kt,4)}, {vr(D,4) if kt else 0}')

X_XS=135168; X_PA=151552; X_MX=159744; X_SA=160256
def role_x(s):
    s('L_X:')
    s(f"""s_lshl_b32 s{sU}, s{sI}, 3
          s_add_u32 s{sU}, s{sU}, s{sG}""")
    s.srd(r1, 'ckv'); s.srd(r2, 'wmod'); s.srd(r3, 'c')
    noA = s.lab('noA')
    s(f"""s_cmp_ge_u32 s{sU}, 108
          s_cbranch_scc1 {noA}
          s_mul_i32 s{sT}, s{sU}, 3641
          s_lshr_b32 s{sT}, s{sT}, 16
          s_mul_i32 s{sT+1}, s{sT}, 18
          s_sub_u32 s{sT+1}, s{sU}, s{sT+1}""")
    s(f"""v_lshlrev_b32 v8, 2, v0
          s_mul_i32 s{sT+2}, s{sT}, 192
          buffer_load_dword v16, v8, s[{r3}:{r3+3}], s{sT+2} offen""")
    s.voff128(9, 10, 6912, 8, 1)
    s(f"""s_mul_i32 s{sT+2}, s{sT}, {96*6912}
          s_lshl_b32 s{sT+3}, s{sT+1}, 7
          s_add_u32 s{sT+2}, s{sT+2}, s{sT+3}
          s_mul_i32 s{sT+3}, s{sW}, 3""")
    for j in range(3):
        s(f"""s_add_u32 s{sT+4}, s{sT+3}, {j}
              s_lshr_b32 s{sT+5}, s{sT+4}, 2
              s_lshl_b32 s{sT+5}, s{sT+5}, 5
              s_and_b32 s{sT+6}, s{sT+4}, 1
              s_lshl_b32 s{sT+6}, s{sT+6}, 4
              s_add_u32 s{sT+5}, s{sT+5}, s{sT+6}
              s_and_b32 s{sT+6}, s{sT+4}, 2
              s_lshl_b32 s{sT+6}, s{sT+6}, 1
              s_add_u32 s{sT+5}, s{sT+5}, s{sT+6}
              s_mul_i32 s{sT+5}, s{sT+5}, 6912
              s_add_u32 s{sT+5}, s{sT+5}, s{sT+2}
              s_lshl_b32 s{sT+4}, s{sT+4}, 10
              s_add_u32 m0, s{sT+4}, {X_XS}""")
        s.dma(9, r2, sT+5, 'nt')
    s(f"""s_mul_i32 s{sX}, s{sT}, 4608
          s_lshl_b32 s{sT+1}, s{sT+1}, 8
          s_add_u32 s{sX}, s{sX}, s{sT+1}
          s_lshl_b32 s{sT+1}, s{sW}, 6
          s_add_u32 s{sX}, s{sX}, s{sT+1}
          s_add_u32 s{sX}, s{sX}, {MODP}""")
    s('s_waitcnt vmcnt(3)')
    s.silu(16, 10)
    s(f"""v_add_u32 v8, {X_SA}, v8
          ds_write_b32 v8, v16""")
    s.tags()
    s("""s_waitcnt vmcnt(0) lgkmcnt(0)
         s_barrier""")
    s.tr128(20, 22, f's{sW}', X_XS)
    s(f"""v_lshlrev_b32 v21, 4, v{vGQ}
          v_add_u32 v22, {X_SA}, v21""")
    for kt in range(3):
        for hh in range(2):
            s(f'ds_read_b64_tr_b16 {vr(24+4*kt+2*hh,2)}, v20 offset:{kt*4096+hh*2048}')
        s(f'ds_read_b128 {vr(36+4*kt,4)}, v22 offset:{kt*64}')
    s('s_waitcnt lgkmcnt(0)')
    for kt in range(3):
        s(f'{MF} v[12:15], {vr(24+4*kt,4)}, {vr(36+4*kt,4)}, {"v[12:15]" if kt else 0}')
    for r in range(4): s.tag32(12+r, 12+r)
    s.setexec(0x00010001, 0x00010001)
    s(f'buffer_store_dwordx4 v[12:15], v21, s[{rWS}:{rWS+3}], s{sX} offen sc1')
    s.fullexec()
    s.ts(1)
    j = s.lab('j')
    s(f's_branch {j}\n{noA}:')
    s.tags()
    s(f'{j}:')
    if s.stop <= 1: s('s_branch L_done'); return
    lp = s.lab('ckv')
    s(f"""s_lshl_b32 s{sT}, s{sU}, 17
          s_lshl_b32 s{sT+1}, s{sW}, 10
          s_add_u32 s{sT}, s{sT}, s{sT+1}
          s_mul_i32 s{sT+1}, s{sW}, 1056
          s_mov_b32 m0, s{sT+1}
          s_mov_b32 s{sT+2}, 0
          {lp}:""")
    s.dma(vL16, r1, sT, 'nt')
    s(f"""s_add_u32 s{sT}, s{sT}, 4096
          s_add_u32 m0, m0, {4*1056}
          s_add_u32 s{sT+2}, s{sT+2}, 1
          s_cmp_lt_u32 s{sT+2}, 32
          s_cbranch_scc1 {lp}""")
    s(f"""s_lshr_b32 s{sT}, s{sW}, 1
          s_and_b32 s{sT+1}, s{sW}, 1
          s_mul_i32 s{sT+2}, s{sT}, {64*1056}
          s_lshl_b32 s{sT+3}, s{sT+1}, 9
          s_add_u32 s{sT+2}, s{sT+2}, s{sT+3}
          s_mul_i32 s{sT+3}, s{sT+1}, {2*16896}
          s_add_u32 s{sT+4}, s{sT+2}, s{sT+3}
          s_sub_u32 s{sT+5}, s{sT+2}, s{sT+3}
          s_add_u32 s{sT+5}, s{sT+5}, {2*16896}
          v_mul_u32_u24 v8, 1056, v{vP}
          v_lshl_add_u32 v8, v{vGQ}, 4, v8
          v_add_u32 v9, s{sT+5}, v8
          v_add_u32 v8, s{sT+4}, v8
          v_lshrrev_b32 v10, 2, v{vL}
          v_mul_u32_u24 v10, 1056, v10
          v_and_b32 v11, 3, v{vL}
          v_lshl_add_u32 v10, v11, 3, v10
          s_lshl_b32 s{sT+2}, s{sW}, 8
          v_add_u32 v10, s{sT+2}, v10
          v_add_u32 v11, {64*1056}, v10""")
    s(f"""v_lshrrev_b32 v12, 2, v{vP}
          v_lshlrev_b32 v12, 8, v12
          v_lshl_add_u32 v12, v{vGQ}, 6, v12
          v_and_b32 v13, 3, v{vL}
          v_lshl_add_u32 v12, v13, 4, v12
          s_lshl_b32 s{sT+1}, s{sT+1}, 14
          s_add_u32 s{sT}, s{sT+1}, {QA}
          s_add_u32 s{sT+1}, s{sT}, 4096
          s_add_u32 s{sT+2}, s{sT}, 8192
          s_add_u32 s{sT+3}, s{sT}, 12288""")
    s("""s_waitcnt vmcnt(0)
         s_barrier""")
    s.ts(2)
    for kt in range(4):
        for st in range(8):
            s(f'ds_read_b128 {ar((kt*8+st)*4,4)}, v{8 if kt<2 else 9} offset:{(kt&1)*16896+st*64}')
    for ct in range(8):
        for ks in range(4):
            for hh in range(2):
                s(f'ds_read_b64_tr_b16 {ar(128+(ct*4+ks)*4+2*hh,2)}, v{10 if ks<2 else 11} offset:{((ks&1)*32+16*hh)*1056+32*ct}')
    QV=64; SV=32; OV=128
    lp = s.lab('qa')
    s(f'{lp}:')
    for st in range(8):
        for ht in range(2):
            s(f'buffer_load_dwordx4 {vr(QV+(st*2+ht)*4,4)}, v12, s[{rWS}:{rWS+3}], s{sT+(st>>1)} offen offset:{(st&1)*2048+ht*1024} sc1')
    s('s_waitcnt vmcnt(0)')
    s.chk16(13, QV, 64)
    s.retry(13, '0x10001', lp)
    s.ts(3)
    s('s_waitcnt lgkmcnt(0)')
    for st in range(8):
        for kt in range(4):
            for ht in range(2):
                d = vr(SV+(kt*2+ht)*4,4)
                s(f'{MF} {d}, {ar((kt*8+st)*4,4)}, {vr(QV+(st*2+ht)*4,4)}, {d if st else 0}')
    s(f"""s_lshl_b32 s{sT}, s{sW}, 12
          s_xor_b32 s{sT+1}, s{sT}, 4096
          s_add_u32 s{sT}, s{sT}, {X_XS}
          s_add_u32 s{sT+1}, s{sT+1}, {X_XS}
          v_add_u32 v14, s{sT}, v{vL16}
          v_add_u32 v15, s{sT+1}, v{vL16}""")
    for q in range(4):
        s(f'ds_write_b128 v14, {vr(SV+16+4*q,4)} offset:{q*1024}')
    s("""s_waitcnt lgkmcnt(0)
         s_barrier""")
    for q in range(4):
        s(f'ds_read_b128 {vr(SV+16+4*q,4)}, v15 offset:{q*1024}')
    s(f"""v_lshlrev_b32 v16, 5, v{vP}
          v_add_u32 v16, {X_MX}, v16
          s_lshl_b32 s{sT}, s{sW}, 3
          v_add_u32 v17, s{sT}, v16
          s_waitcnt lgkmcnt(0)""")
    for q in range(16): s(f'v_add_f32 v{SV+q}, v{SV+q}, v{SV+16+q}')
    for ht in range(2):
        a = SV+ht*4; b = SV+8+ht*4; m = 18+ht
        s(f"""v_max3_f32 v{m}, v{a}, v{a+1}, v{a+2}
              v_max3_f32 v{m}, v{m}, v{a+3}, v{b}
              v_max3_f32 v{m}, v{m}, v{b+1}, v{b+2}
              v_max_f32 v{m}, v{m}, v{b+3}""")
    s(f"""v_permlane32_swap_b32 v18, v19
          v_max_f32 v18, v18, v19
          v_mov_b32 v19, v18
          v_permlane16_swap_b32 v18, v19
          v_max_f32 v18, v18, v19
          v_mov_b32 v19, v18
          v_permlane32_swap_b32 v18, v19
          ds_write_b64 v17, v[18:19]
          s_waitcnt lgkmcnt(0)
          s_barrier
          ds_read_b128 v[20:23], v16
          ds_read_b128 v[24:27], v16 offset:16
          s_lshl_b32 s{sT}, s{sW}, 11
          s_add_u32 s{sT}, s{sT}, {X_PA}
          v_add_u32 v14, s{sT}, v{vL16}
          v_add_u32 v15, {X_PA}, v{vL16}
          s_waitcnt lgkmcnt(0)
          v_max3_f32 v18, v20, v22, v24
          v_max3_f32 v19, v21, v23, v25
          v_max_f32 v18, v18, v26
          v_max_f32 v19, v19, v27
          v_ceil_f32 v18, v18
          v_ceil_f32 v19, v19
          v_and_b32 v18, v18, v{vMF}
          v_and_b32 v19, v19, v{vMF}""")
    for ht in range(2):
        for kt in range(2):
            for r in range(4):
                x = SV+(kt*2+ht)*4+r
                s(f'v_sub_f32 v{x}, v{x}, v{18+ht}')
        for kt in range(2):
            for r in range(4):
                x = SV+(kt*2+ht)*4+r
                s(f'v_exp_f32 v{x}, v{x}')
        for kt in range(2):
            x = SV+(kt*2+ht)*4
            s(f'v_cvt_pk_bf16_f32 v{20+ht*4+kt*2}, v{x}, v{x+1}')
            s(f'v_cvt_pk_bf16_f32 v{21+ht*4+kt*2}, v{x+2}, v{x+3}')
        s(f'ds_write_b128 v14, {vr(20+ht*4,4)} offset:{ht*1024}')
    s("""s_waitcnt lgkmcnt(0)
         s_barrier""")
    PV=64
    for ks in range(4):
        for ht in range(2):
            s(f'ds_read_b128 {vr(PV+(ks*2+ht)*4,4)}, v15 offset:{(ks*2+ht)*1024}')
    s(f"""v_lshlrev_b32 v14, 19, v{vGQ}
          v_lshl_add_u32 v14, v{vP}, 4, v14
          s_lshl_b32 s{sT}, s{sW}, 15
          s_lshl_b32 s{sT+1}, s{sU}, 8
          s_add_u32 s{sT}, s{sT}, s{sT+1}
          s_add_u32 s{sT}, s{sT}, {OP}
          s_add_u32 s{sT+1}, s{sT+1}, {ML}
          v_mov_b32 v28, 0x3f803f80
          v_mov_b32 v29, v28
          v_mov_b32 v30, v28
          v_mov_b32 v31, v28
          s_waitcnt lgkmcnt(0)""")
    s.ts(4)
    nl = s.lab('nl')
    s(f"""s_cmp_lg_u32 s{sW}, 0
          s_cbranch_scc1 {nl}""")
    for ks in range(4):
        for ht in range(2):
            d = vr(20+ht*4,4)
            s(f'{MF} {d}, v[28:31], {vr(PV+(ks*2+ht)*4,4)}, {d if ks else 0}')
    s.tag32(32, 18); s.tag32(34, 19); s.tag32(33, 20); s.tag32(35, 24)
    s.setexec(0xffff, 0)
    s(f'buffer_store_dwordx4 v[32:35], v{vL16}, s[{rWS}:{rWS+3}], s{sT+1} offen sc1')
    s.fullexec()
    s(f'{nl}:')
    def ostore(ht):
        for r in range(4):
            t = 32+4*((ht*4+r)&3) + (16 if ht else 0)
            for d in range(4):
                s.packtag(t+d, OV+(ht*8+2*d)*4+r, OV+(ht*8+2*d+1)*4+r, d)
            s(f's_add_u32 s{sT+2}, s{sT}, {(16*ht+r)*131072}')
            s(f'buffer_store_dwordx4 {vr(t,4)}, v14, s[{rWS}:{rWS+3}], s{sT+2} offen sc1')
    for ht in range(2):
        for ks in range(4):
            for ct in range(8):
                d = vr(OV+(ht*8+ct)*4,4)
                s(f'{MF} {d}, {vr(PV+(ks*2+ht)*4,4)}, {ar(128+(ct*4+ks)*4,4)}, {d if ks else 0}')
    ostore(0); ostore(1)
    s.ts(5)
    if s.stop <= 4: s('s_branch L_done'); return
    s(f"""s_mul_i32 s{sU}, s{sG}, 18
          s_add_u32 s{sU}, s{sU}, s{sI}""")
    s('s_branch L_ffn_load')

LG=0; LU=36864; LD=73728; LT=110592; LCS=129024; LONE=131328; LEX=131456; LST=133504; LDUM=133632
def ffn_load(s):
    s.srd(r1, 'wg'); s.srd(r2, 'wu'); s.srd(r3, 'wd')
    s(f"""s_mul_i32 s{sX}, s{sW}, 5
          s_lshl_b32 s{sT}, s{sW}, 2
          s_add_u32 s{sT}, s{sT}, 2
          s_cmp_lt_u32 s{sW}, 2
          s_cselect_b32 s{sX}, s{sX}, s{sT}
          s_cselect_b32 s{sX+1}, 5, 4""")
    s(f"""v_and_b32 v8, 1, v{vGQ}
          v_lshlrev_b32 v8, 1, v8
          v_xor_b32 v8, v8, v{vL}
          v_and_b32 v8, 3, v8
          v_lshlrev_b32 v8, 4, v8
          v_lshrrev_b32 v9, 2, v{vP}
          v_lshl_add_u32 v9, v{vGQ}, 3, v9
          v_mov_b32 v10, 9216
          v_mad_u32_u24 v8, v9, v10, v8
          s_mul_i32 s{sT}, s{sX}, {32*9216}
          s_lshl_b32 s{sT+1}, s{sU}, 6
          s_add_u32 s{sT}, s{sT}, s{sT+1}
          s_lshl_b32 s{sT+1}, s{sX}, 11
          s_mov_b32 s{sT+2}, 0""")
    lp = s.lab('fg')
    s(f"""{lp}:
          s_add_u32 s{sT+3}, s{sT}, {4*9216}
          s_add_u32 m0, s{sT+1}, {LG}""")
    s.dma(8, r1, sT, 'nt')
    s(f's_add_u32 m0, s{sT+1}, {LG+1024}')
    s.dma(8, r1, sT+3, 'nt')
    s(f's_add_u32 m0, s{sT+1}, {LU}')
    s.dma(8, r2, sT, 'nt')
    s(f's_add_u32 m0, s{sT+1}, {LU+1024}')
    s.dma(8, r2, sT+3, 'nt')
    s(f"""s_add_u32 s{sT}, s{sT}, {32*9216}
          s_add_u32 s{sT+1}, s{sT+1}, 2048
          s_add_u32 s{sT+2}, s{sT+2}, 1
          s_cmp_lt_u32 s{sT+2}, s{sX+1}
          s_cbranch_scc1 {lp}""")
    s.voff128(9, 10, 1152, 8, 1)
    s(f"""s_and_b32 s{sT}, s{sW}, 1
          s_lshl_b32 s{sT}, s{sT}, 4
          s_and_b32 s{sT+1}, s{sW}, 2
          s_lshl_b32 s{sT+1}, s{sT+1}, 1
          s_add_u32 s{sT}, s{sT}, s{sT+1}
          s_lshl_b32 s{sT+1}, s{sU}, 5
          s_add_u32 s{sT}, s{sT}, s{sT+1}
          s_mul_i32 s{sT}, s{sT}, 1152
          s_lshl_b32 s{sT+1}, s{sW}, 10
          s_add_u32 m0, s{sT+1}, {LD}
          s_mov_b32 s{sT+2}, 0""")
    lp = s.lab('fd')
    s(f'{lp}:')
    s.dma(9, r3, sT, 'nt')
    s(f"""s_add_u32 s{sT}, s{sT}, 128
          s_add_u32 m0, m0, 4096
          s_add_u32 s{sT+2}, s{sT+2}, 1
          s_cmp_lt_u32 s{sT+2}, 9
          s_cbranch_scc1 {lp}""")

def ffn_compute(s):
    s('L_ffn:')
    FW=0; GW=80
    s(f"""v_min_u32 v8, 143, v0
          v_lshlrev_b32 v9, 4, v8
          s_mov_b32 s{sT}, {MOD2+576*4}""")
    lp = s.lab('cs')
    s(f"""{lp}:
          buffer_load_dwordx4 v[12:15], v9, s[{rWS}:{rWS+3}], s{sT} offen sc1
          buffer_load_dwordx4 v[16:19], v9, s[{rWS}:{rWS+3}], s{sT} offen offset:2304 sc1
          s_waitcnt vmcnt(0)""")
    s.chk32(10, list(range(12,20)))
    s.retry(10, '0xff', lp)
    for r in range(4):
        s(f'v_and_b32 v{16+r}, 0xffff0000, v{16+r}\nv_add_f32 v{16+r}, 1.0, v{16+r}')
    s(f"""v_perm_b32 v12, v13, v12, s{sPERM}
          v_perm_b32 v13, v15, v14, s{sPERM}
          v_cvt_pk_bf16_f32 v16, v16, v17
          v_cvt_pk_bf16_f32 v17, v18, v19
          v_lshlrev_b32 v9, 3, v8
          v_add_u32 v9, {LCS}, v9
          s_barrier
          ds_write_b64 v9, v[16:17]
          ds_write_b64 v9, v[12:13] offset:1152
          v_mov_b32 v12, 0x3f803f80
          v_lshlrev_b32 v9, 2, v{vP}
          v_add_u32 v9, {LONE}, v9
          ds_write_b32 v9, v12
          s_waitcnt lgkmcnt(0)
          s_barrier""")
    s.ts(6)
    s(f"""v_lshrrev_b32 v8, 2, v{vL}
          v_lshlrev_b32 v8, 6, v8
          v_and_b32 v9, 3, v{vL}
          v_lshl_add_u32 v8, v9, 3, v8
          s_lshl_b32 s{sT}, s{sX}, 11
          v_add_u32 v8, s{sT}, v8
          v_and_b32 v9, 1, v{vGQ}
          v_lshl_add_u32 v8, v9, 5, v8
          v_xor_b32 v9, 32, v8""")
    def fwread(k):
        for c in range(4):
            for hh in range(2):
                s(f'ds_read_b64_tr_b16 {ar(FW+(k*4+c)*4+2*hh,2)}, v{8+(c>>1)} offset:{(LU if c&1 else LG)+k*2048+hh*1024}')
    for k in range(4): fwread(k)
    l4 = s.lab('f4')
    s(f's_cmp_lt_u32 s{sX+1}, 5\ns_cbranch_scc1 {l4}')
    fwread(4)
    s(f'{l4}:')
    s(f's_mul_i32 s{sT}, s{sW}, 9')
    for i in range(9):
        s(f"""s_add_u32 s{sT+1}, s{sT}, {i}
              s_and_b32 s{sT+2}, s{sT+1}, 3
              s_lshr_b32 s{sT+1}, s{sT+1}, 2
              s_lshl_b32 s{sT+1}, s{sT+1}, 12
              s_add_u32 s{sT+1}, s{sT+1}, {LD}""")
        s.tr128(10, 11, f's{sT+2}', f's{sT+1}')
        s(f'ds_read_b64_tr_b16 {ar(GW+4*i,2)}, v10')
        s(f'ds_read_b64_tr_b16 {ar(GW+4*i+2,2)}, v10 offset:2048')
    AV=64; AV2=84; Z=32; GR=48
    s(f"""v_and_b32 v10, 1, v{vP}
          v_mul_u32_u24 v10, 1152, v10
          v_lshl_add_u32 v10, v{vGQ}, 4, v10
          s_lshl_b32 s{sT}, s{sX}, 6
          s_add_u32 s{sT}, s{sT}, {LCS}
          v_add_u32 v10, s{sT}, v10""")
    for k in range(5): s(f'ds_read_b128 {vr(AV+4*k,4)}, v10 offset:{k*64}')
    s('s_waitcnt lgkmcnt(0)')
    def fmf(k, gram=False):
        for c in range(4):
            d = vr(Z+4*c,4)
            s(f'{MF} {d}, {vr(AV+4*k,4)}, {ar(FW+(k*4+c)*4,4)}, {d if k else 0}')
        if gram:
            d = vr(GR,4)
            s(f'{MF} {d}, {vr(AV+4*k,4)}, {vr(AV2+4*k,4)}, {d if k else 0}')
    for k in range(4): fmf(k)
    l4 = s.lab('f4')
    s(f's_cmp_lt_u32 s{sX+1}, 5\ns_cbranch_scc1 {l4}')
    fmf(4)
    s(f'{l4}:')
    s(f"""v_lshlrev_b32 v11, 6, v{vP}
          s_lshl_b32 s{sT}, s{sW}, 4
          s_add_u32 s{sT}, s{sT}, {LEX}
          v_add_u32 v11, s{sT}, v11
          ds_write_b64 v11, v[{Z}:{Z+1}]
          ds_write_b64 v11, v[{Z+4}:{Z+5}] offset:8
          ds_write_b64 v11, v[{Z+8}:{Z+9}] offset:1024
          ds_write_b64 v11, v[{Z+12}:{Z+13}] offset:1032
          v_and_b32 v12, 7, v{vP}
          v_lshl_add_u32 v12, v{vGQ}, 3, v12
          v_lshlrev_b32 v13, 6, v12
          v_add_u32 v13, {LEX}, v13
          s_waitcnt lgkmcnt(0)
          s_barrier""")
    for q in range(4): s(f'ds_read_b128 {vr(Z+4*q,4)}, v13 offset:{16*q}')
    UV=24
    s(f"""v_lshrrev_b32 v14, 2, v{vL}
          v_mul_u32_u24 v14, 1152, v14
          v_and_b32 v15, 3, v{vL}
          v_lshl_add_u32 v14, v15, 4, v14
          s_lshl_b32 s{sT}, s{sX}, 10
          s_add_u32 s{sT}, s{sT}, {LT}
          v_lshlrev_b32 v15, 6, v{vP}
          v_lshl_add_u32 v15, v{vGQ}, 4, v15
          v_add_u32 v15, s{sT}, v15
          s_lshl_b32 s{sT+1}, s{sX}, 6
          s_add_u32 s{sT+1}, s{sT+1}, {TR}
          v_lshlrev_b32 v17, 5, v12
          v_add_u32 v17, {LEX}, v17
          v_mov_b32 v18, {LST}""")
    s(f"""s_lshl_b32 s{sT+2}, s{sW}, 3
          s_add_u32 s{sT+2}, s{sT+2}, {LEX-1024}
          v_lshlrev_b32 v19, 5, v{vL}
          v_add_u32 v19, s{sT+2}, v19
          v_mov_b32 v21, {LDUM}
          v_cmp_lt_u32 vcc, 31, v{vL}
          v_cndmask_b32 v19, v21, v19, vcc
          s_lshl_b32 s{sT+2}, s{sW}, 2
          s_add_u32 s{sT+2}, s{sT+2}, {LST}
          v_lshrrev_b32 v20, 3, v{vP}
          v_lshlrev_b32 v20, 4, v20
          v_add_u32 v20, s{sT+2}, v20
          v_cmp_gt_u32 vcc, 16, v{vL}
          v_cndmask_b32 v20, v21, v20, vcc
          s_waitcnt lgkmcnt(0)""")
    for e in range(4):
        s(f"""v_add_f32 v{UV+e}, v{Z+e}, v{Z+4+e}
              v_add_f32 v{Z+8+e}, v{Z+8+e}, v{Z+12+e}
              v_add_f32 v{UV+e}, v{UV+e}, v{Z+8+e}""")
    s(f"""v_lshrrev_b32 v22, 5, v{vL}
          v_lshlrev_b32 v22, 8, v22
          v_lshl_add_u32 v22, v{vP}, 4, v22
          v_lshlrev_b32 v23, 4, v{vGQ}
          s_mul_i32 s{sT+4}, s{sU}, 2304
          s_mul_i32 s{sT+5}, s{sW}, 576
          s_add_u32 s{sT+4}, s{sT+4}, s{sT+5}
          s_add_u32 s{sT+4}, s{sT+4}, {YP}
          s_mov_b32 s{sT+6}, 0
          s_mov_b32 s{sT+7}, -1
          v_cmp_lt_u32 vcc, 7, v{vP}
          s_barrier""")
    s('s_mov_b64 s[100:101], vcc')
    s('v_mov_b32 v16, 0x3f803f80')
    lp = s.lab('tr')
    s(f'{lp}:')
    for k in range(5):
        if k == 4:
            s(f"""s_sub_u32 s{sT+3}, s{sX+1}, 1
                  s_lshl_b32 s{sT+3}, s{sT+3}, 6
                  s_add_u32 s{sT+3}, s{sT+3}, s{sT+1}""")
            s(f"""s_lshl_b32 s{sT+2}, s{sW}, 10
                  s_add_u32 m0, s{sT+2}, {LDUM+256}""")
        else:
            s(f"""s_add_u32 s{sT+3}, s{sT+1}, {k*64}
                  s_add_u32 m0, s{sT}, {k*1024}""")
        s.dma(14, rWS, sT+3, 'sc1')
    s(f"""s_sub_u32 s{sT+2}, m0, s{sT}
          v_add_u32 v13, s{sT+2}, v15
          s_waitcnt vmcnt(0)""")
    for k in range(4): s(f'ds_read_b128 {vr(AV+4*k,4)}, v15 offset:{k*1024}')
    s(f'ds_read_b128 {vr(AV+16,4)}, v13')
    s('s_waitcnt lgkmcnt(0)')
    s.chk16(10, AV, 20)
    s.retry(10, '0x10001', lp)
    s.ts(7)
    for q in range(20): s(f'v_cndmask_b32 v{AV2+q}, v{AV+q}, v16, s[100:101]')
    for k in range(4): fmf(k, True)
    l4 = s.lab('f4')
    s(f's_cmp_lt_u32 s{sX+1}, 5\ns_cbranch_scc1 {l4}')
    fmf(4, True)
    s(f'{l4}:')
    for c in list(range(4))+[4]:
        b = Z+4*c
        s(f"""v_add_f32 v{b}, v{b}, v{b+1}
              v_add_f32 v{b+2}, v{b+2}, v{b+3}""")
    for c in list(range(4))+[4]:
        b = Z+4*c
        s(f'v_add_f32 v{b}, v{b}, v{b+2}')
    s(f"""v_permlane16_swap_b32 v{Z}, v{Z+8}
          v_permlane16_swap_b32 v{Z+4}, v{Z+12}
          v_add_f32_dpp v{GR}, v{GR}, v{GR} quad_perm:[1,0,3,2] row_mask:0xf bank_mask:0xf
          v_add_f32 v{Z}, v{Z}, v{Z+8}
          v_add_f32 v{Z+1}, v{Z+4}, v{Z+12}
          v_add_f32_dpp v{GR}, v{GR}, v{GR} quad_perm:[2,3,0,1] row_mask:0xf bank_mask:0xf
          ds_write_b64 v19, v[{Z}:{Z+1}]
          v_add_f32_dpp v{GR}, v{GR}, v{GR} row_half_mirror row_mask:0xf bank_mask:0xf
          v_mov_b32 v{GR+1}, v{GR}
          v_permlane16_swap_b32 v{GR}, v{GR+1}
          v_add_f32 v{GR}, v{GR}, v{GR+1}
          ds_write_b32 v20, v{GR}
          s_waitcnt lgkmcnt(0)
          s_barrier
          ds_read_b128 v[{GR}:{GR+3}], v18
          ds_read_b128 v[{GR+4}:{GR+7}], v18 offset:16
          ds_read_b128 v[{Z}:{Z+3}], v17
          ds_read_b128 v[{Z+4}:{Z+7}], v17 offset:16
          s_waitcnt lgkmcnt(2)
          v_add_f32 v{GR}, v{GR}, v{GR+1}
          v_add_f32 v{GR+2}, v{GR+2}, v{GR+3}
          v_add_f32 v{GR+4}, v{GR+4}, v{GR+5}
          v_add_f32 v{GR+6}, v{GR+6}, v{GR+7}
          v_add_f32 v{GR}, v{GR}, v{GR+2}
          v_add_f32 v{GR+4}, v{GR+4}, v{GR+6}
          v_mul_f32 v{GR+4}, {fb(1.0/(8*576))}, v{GR+4}
          v_mov_b32 v{GR+1}, {fb(1e-5)}
          v_fmac_f32 v{GR+1}, {fb(1.0/576)}, v{GR}
          v_fma_f32 v{GR+1}, -v{GR+4}, v{GR+4}, v{GR+1}
          v_rsq_f32 v{GR+1}, v{GR+1}
          s_waitcnt lgkmcnt(0)
          v_add_f32 v{Z}, v{Z}, v{Z+2}
          v_add_f32 v{Z+1}, v{Z+1}, v{Z+3}
          v_add_f32 v{Z+4}, v{Z+4}, v{Z+6}
          v_add_f32 v{Z+5}, v{Z+5}, v{Z+7}
          v_add_f32 v{Z}, v{Z}, v{Z+4}
          v_add_f32 v{Z+1}, v{Z+1}, v{Z+5}
          v_fma_f32 v{Z}, -v{GR+4}, v{UV}, v{Z}
          v_fma_f32 v{Z+1}, -v{GR+4}, v{UV+2}, v{Z+1}
          v_fma_f32 v{Z}, v{Z}, v{GR+1}, v{UV+1}
          v_fma_f32 v{Z+1}, v{Z+1}, v{GR+1}, v{UV+3}
          v_cvt_pk_bf16_f32 v{Z+1}, v{Z}, v{Z+1}
          v_lshlrev_b32 v{Z}, 16, v{Z+1}
          v_and_b32 v{Z+1}, 0xffff0000, v{Z+1}""")
    k2 = -2*0.7978845608028654*LOG2E
    s(f"""v_mul_f32 v{Z+2}, v{Z}, v{Z}
          v_mov_b32 v{Z+3}, {fb(k2)}
          v_fmac_f32 v{Z+3}, {fb(k2*0.044715)}, v{Z+2}
          v_mul_f32 v{Z+3}, v{Z+3}, v{Z}
          v_exp_f32 v{Z+3}, v{Z+3}
          v_add_f32 v{Z+3}, 1.0, v{Z+3}
          v_rcp_f32 v{Z+3}, v{Z+3}
          v_mul_f32 v{Z}, v{Z}, v{Z+3}""")
    s.bfr(Z, Z)
    s(f"""v_mul_f32 v{Z}, v{Z}, v{Z+1}
          v_mov_b32_dpp v{Z+1}, v{Z} quad_perm:[1,0,3,2] row_mask:0xf bank_mask:0xf
          v_cvt_pk_bf16_f32 v{AV}, v{Z}, v{Z+1}
          v_mov_b32_dpp v{AV+1}, v{AV} row_ror:14 row_mask:0xf bank_mask:0xf
          v_mov_b32_dpp v{AV+2}, v{AV} row_ror:12 row_mask:0xf bank_mask:0xf
          v_mov_b32_dpp v{AV+3}, v{AV} row_ror:10 row_mask:0xf bank_mask:0xf""")
    YV=96
    for i in range(8): s(f'{MF} {vr(YV+4*i,4)}, {vr(AV,4)}, {ar(GW+4*i,4)}, 0')
    s(f'{MF} {vr(YV+32,4)}, {ar(GW+32,4)}, {vr(AV,4)}, 0')
    for i in range(4):
        s(f'v_cndmask_b32 v{Z+i}, v{YV+4*i}, v{YV+16+4*i}, s[{sT+6}:{sT+7}]')
        s.tag32(Z+i, Z+i)
    s.setexec(0xffff, 0xffff)
    s(f'buffer_store_dwordx4 {vr(Z,4)}, v22, s[{rWS}:{rWS+3}], s{sT+4} offen sc1')
    s.setexec(0x10001, 0x10001)
    for i in range(4): s.tag32(YV+32+i, YV+32+i)
    s(f'buffer_store_dwordx4 {vr(YV+32,4)}, v23, s[{rWS}:{rWS+3}], s{sT+4} offen offset:512 sc1')
    s.fullexec()
    s.ts(8)
    s('s_branch L_done')

Y_WQ=0; Y_WUK=41472; Y_WUV=110592; Y_H=147456; Y_F=147968; Y_O=150016; Y_S=150272; Y_Q=152576; Y_CP=65536
def role_y(s):
    s(f"""s_lshl_b32 s{sU}, s{sG}, 2
          s_lshr_b32 s{sT}, s{sI}, 2
          s_add_u32 s{sU}, s{sU}, s{sT}
          s_and_b32 s{sX}, s{sI}, 3""")
    s.srd(r1, 'wq'); s.srd(r2, 'wuk'); s.srd(r3, 'x')
    s(f"""v_lshlrev_b32 v8, 2, v{vL}
          v_min_u32 v9, 35, v{vL}
          s_mul_i32 s{sT}, s{sW}, 36
          v_add_u32 v9, s{sT}, v9
          s_mul_i32 s{sT}, s{sX}, 144
          v_add_u32 v10, s{sT}, v9
          v_lshlrev_b32 v11, 1, v10
          buffer_load_dwordx4 v[12:15], v{vL16}, s[{r3}:{r3+3}], 0 offen
          buffer_load_dword v16, v8, s[{r3}:{r3+3}], 0 offen offset:1024
          buffer_load_ushort v17, v11, s[{r3}:{r3+3}], 0 offen""")
    s.voff256(18, 19, 8192)
    s(f"""s_mul_i32 s{sT}, s{sX}, {144*8192}
          s_lshl_b32 s{sT+1}, s{sU}, 8
          s_add_u32 s{sT}, s{sT}, s{sT+1}
          s_lshl_b32 s{sT+1}, s{sW}, 18
          s_add_u32 s{sT+1}, s{sT+1}, s{sT}
          s_mul_i32 s{sT+2}, s{sW}, {8*1152}""")
    for i in range(8):
        s(f"""s_add_u32 s{sT+3}, s{sT+1}, {(8*(i&3)+4*(i>>2))*8192}
              s_add_u32 m0, s{sT+2}, {Y_WQ+i*1152}""")
        s.dma(18, r1, sT+3, 'nt')
    s(f"""s_lshl_b32 s{sT+3}, s{sW}, 15
          s_add_u32 s{sT+3}, s{sT+3}, s{sT}
          s_add_u32 s{sT+3}, s{sT+3}, {128*8192}
          s_mul_i32 s{sT+2}, s{sW}, 1152
          s_add_u32 m0, s{sT+2}, {Y_WQ+32*1152}""")
    s.dma(18, r1, sT+3, 'nt')
    s(f"""s_lshl_b32 s{sT}, s{sI}, 18
          s_lshl_b32 s{sT+1}, s{sW}, 16
          s_add_u32 s{sT}, s{sT}, s{sT+1}
          s_lshl_b32 s{sT+1}, s{sG}, 10
          s_add_u32 s{sT}, s{sT}, s{sT+1}
          s_mul_i32 s{sT+2}, s{sW}, {8*1040}""")
    for i in range(8):
        s(f"""s_add_u32 s{sT+3}, s{sT}, {i*8192}
              s_add_u32 m0, s{sT+2}, {Y_WUK+i*1040}""")
        s.dma(vL16, r2, sT+3, 'nt')
    s('s_waitcnt vmcnt(17)')
    s('v_mov_b32 v20, 0\nv_mov_b32 v21, 0')
    for q in range(5):
        s(f"""v_lshlrev_b32 v22, 16, v{12+q}
              v_and_b32 v23, 0xffff0000, v{12+q}
              v_add_f32 v20, v20, v22
              v_fmac_f32 v21, v22, v22
              v_add_f32 v20, v20, v23
              v_fmac_f32 v21, v23, v23""")
    s.wave_red('v_add_f32', 20, 22); s.wave_red('v_add_f32', 21, 22)
    s(f"""v_mul_f32 v20, {fb(1/576)}, v20
          v_mul_f32 v21, {fb(1/576)}, v21
          v_fma_f32 v21, -v20, v20, v21""")
    s.bfr(20, 20); s.bfr(21, 21)
    s(f'v_add_f32 v21, {fb(1e-5)}, v21'); s.bfr(21, 21)
    s('v_sqrt_f32 v21, v21'); s.bfr(21, 21)
    s("""v_rcp_f32 v21, v21
         v_lshlrev_b32 v17, 16, v17
         v_sub_f32 v17, v17, v20""")
    s.bfr(17, 17)
    s('v_mul_f32 v17, v17, v21'); s.bfr(17, 17)
    s.tags()
    s(f"""s_lshl_b32 s{sT}, s{sW}, 1
          s_add_u32 s{sT+1}, s{sT}, 1""")
    s.tr256(20, 22, f's{sT}', Y_WQ); s.tr256(21, 22, f's{sT+1}', Y_WQ)
    s("""s_waitcnt vmcnt(8)
         s_barrier""")
    for c in range(2):
        for kt in range(4):
            for hh in range(2):
                s(f'ds_read_b64_tr_b16 {ar(c*20+kt*4+2*hh,2)}, v{20+c} offset:{(8*kt+4*hh)*1152}')
        s(f'ds_read_b64_tr_b16 {ar(c*20+16,2)}, v{20+c} offset:{32*1152}')
    s(f"""s_and_b32 s{sT}, s{sW}, 1
          s_mul_i32 s{sT}, s{sT}, {16*1040}
          s_add_u32 s{sT}, s{sT}, {Y_WUK}
          v_mul_u32_u24 v22, 1040, v{vP}
          v_lshl_add_u32 v22, v{vGQ}, 3, v22
          v_add_u32 v22, s{sT}, v22
          s_waitcnt vmcnt(0)
          s_barrier""")
    s.ts(1)
    for hd in range(4):
        for st in range(4):
            o = (hd*256+st*64)//8
            s(f'ds_read2_b64 {ar(64+(hd*4+st)*4,4)}, v22 offset0:{o} offset1:{o+4}')
    s('v_lshlrev_b32 v10, 2, v10')
    for kp in range(6): s(f's_mov_b32 s{sT+kp}, {MODP+kp*4608}')
    s(f"""v_lshlrev_b32 v9, 1, v9
          v_add_u32 v9, {Y_H}, v9
          v_lshlrev_b32 v11, 4, v{vGQ}
          v_add_u32 v18, {Y_H}, v11
          v_lshlrev_b32 v19, 3, v{vGQ}
          v_add_u32 v19, {Y_H+256}, v19
          s_lshl_b32 s{sT+6}, s{sU}, 10
          s_lshl_b32 s{sT+7}, s{sX}, 8
          s_add_u32 s{sT+6}, s{sT+6}, s{sT+7}
          s_lshl_b32 s{sT+7}, s{sW}, 6
          s_add_u32 s{sT+6}, s{sT+6}, s{sT+7}
          s_add_u32 s{sT+6}, s{sT+6}, {QP}""")
    lp = s.lab('mp')
    s(f'{lp}:')
    for kp in range(6):
        s(f'buffer_load_dword v{24+kp}, v10, s[{rWS}:{rWS+3}], s{sT+kp} offen sc1')
        s(f'buffer_load_dword v{30+kp}, v10, s[{rWS}:{rWS+3}], s{sT+kp} offen offset:2304 sc1')
    s('s_waitcnt vmcnt(0)')
    s.chk32(8, list(range(24,36)))
    s.retry(8, '0xff', lp)
    s.ts(2)
    for b in (24, 30):
        s(f"""v_add_f32 v{b}, v{b}, v{b+1}
              v_add_f32 v{b+2}, v{b+2}, v{b+3}
              v_add_f32 v{b+4}, v{b+4}, v{b+5}
              v_add_f32 v{b}, v{b}, v{b+2}
              v_add_f32 v{b}, v{b}, v{b+4}""")
    s("""v_cvt_pk_bf16_f32 v24, v24, v30
         v_and_b32 v30, 0xffff0000, v24
         v_lshlrev_b32 v24, 16, v24
         v_add_f32 v30, 1.0, v30""")
    s.bfr(30, 30)
    s('v_mul_f32 v30, v30, v17'); s.bfr(30, 30)
    s("""v_add_f32 v30, v30, v24
         v_cvt_pk_bf16_f32 v30, v30, v30
         ds_write_b16 v9, v30
         s_waitcnt lgkmcnt(0)
         s_barrier""")
    for kt in range(4): s(f'ds_read_b128 {vr(24+4*kt,4)}, v18 offset:{kt*64}')
    s('ds_read_b64 v[40:41], v19\ns_waitcnt lgkmcnt(0)')
    for kt in range(4):
        for c in range(2):
            d = vr(44+4*c,4)
            s(f'{MF} {d}, {ar(c*20+kt*4,4)}, {vr(24+4*kt,4)}, {d if kt else 0}')
    for c in range(2):
        d = vr(44+4*c,4)
        s(f'v_mfma_f32_16x16x16_bf16 {d}, {ar(c*20+16,2)}, v[40:41], {d}')
    for d in range(4): s.packtag(12+d, 44+2*d, 45+2*d, d)
    s.setexec(0x10001, 0x10001)
    s(f'buffer_store_dwordx4 v[12:15], v11, s[{rWS}:{rWS+3}], s{sT+6} offen sc1')
    s.fullexec()
    s.ts(3)
    if s.stop <= 2: s('s_branch L_done'); return
    cdone = s.lab('cdone')
    s(f"""s_cmp_ge_u32 s{sW}, 2
          s_cbranch_scc1 {cdone}
          s_lshl_b32 s{sT}, s{sG}, 12
          s_add_u32 s{sT}, s{sT}, {QP}
          s_lshl_b32 s{sT+1}, s{sW}, 12
          s_add_u32 s{sT+1}, s{sT+1}, {Y_Q}
          v_and_b32 v8, 3, v{vP}
          v_lshrrev_b32 v9, 2, v{vP}
          v_lshl_add_u32 v9, v8, 2, v9
          v_lshlrev_b32 v9, 6, v9
          v_lshl_add_u32 v9, v{vGQ}, 4, v9
          v_add_u32 v9, s{sT+1}, v9
          v_lshrrev_b32 v10, 1, v{vGQ}
          v_lshlrev_b32 v10, 6, v10
          v_lshl_add_u32 v10, v8, 4, v10
          s_lshl_b32 s{sT+3}, s{sI}, 11
          s_lshl_b32 s{sT+4}, s{sG}, 8
          s_add_u32 s{sT+3}, s{sT+3}, s{sT+4}
          s_lshl_b32 s{sT+4}, s{sW}, 7
          s_add_u32 s{sT+3}, s{sT+3}, s{sT+4}
          s_add_u32 s{sT+3}, s{sT+3}, {QA}
          s_mov_b32 s{sT+4}, 0xaaaaaaaa
          s_mov_b32 s{sT+5}, 0xaaaaaaaa
          s_mov_b32 s{sT+6}, 0xcccccccc
          s_mov_b32 s{sT+7}, 0xcccccccc""")
    lp = s.lab('qp')
    s(f'{lp}:')
    for st in range(4):
        s(f"""s_add_u32 s{sT+2}, s{sT}, {st*64}
              s_add_u32 m0, s{sT+1}, {st*1024}""")
        s.dma(vACT, rWS, sT+2, 'sc1')
    s('s_waitcnt vmcnt(0)')
    for st in range(4): s(f'ds_read_b128 {vr(24+4*st,4)}, v9 offset:{st*1024}')
    s('s_waitcnt lgkmcnt(0)')
    s.chk16(8, 24, 16)
    s.retry(8, '0x10001', lp)
    s.ts(4)
    for st in range(4):
        for hd in range(4):
            d = vr(44+4*hd,4)
            s(f'{MF} {d}, {ar(64+(hd*4+st)*4,4)}, {vr(24+4*st,4)}, {d if st else 0}')
    for r in range(4):
        s(f'v_cndmask_b32 v{44+r}, v{44+r}, v{48+r}, s[{sT+4}:{sT+5}]')
        s(f'v_cndmask_b32 v{52+r}, v{52+r}, v{56+r}, s[{sT+4}:{sT+5}]')
    for r in range(4): s(f'v_cndmask_b32 v{44+r}, v{44+r}, v{52+r}, s[{sT+6}:{sT+7}]')
    for k in (4, 8):
        for r in range(4): s(f'v_add_f32_dpp v{44+r}, v{44+r}, v{44+r} row_ror:{k} row_mask:0xf bank_mask:0xf')
    for r in range(4): s(f'v_mul_f32 v{44+r}, {fb(128**-0.5*LOG2E)}, v{44+r}')
    s(f"""v_perm_b32 v12, v45, v44, s{sPERM}
          v_perm_b32 v13, v47, v46, s{sPERM}
          v_mov_b32 v14, v12
          v_mov_b32 v15, v13
          v_permlane16_swap_b32 v12, v14
          v_permlane16_swap_b32 v13, v15""")
    for d in range(4): s.tag16(12+d, d)
    s.setexec(0xf, 0xf)
    s(f'buffer_store_dwordx4 v[12:15], v10, s[{rWS}:{rWS+3}], s{sT+3} offen sc1')
    s.fullexec()
    s.ts(5)
    s(f'{cdone}:\ns_waitcnt lgkmcnt(0)\ns_barrier')
    if s.stop <= 4: s('s_branch L_done'); return
    s.srd(r4, 'wuv')
    s.voff256(18, 19, 16*8192)
    s(f"""s_lshl_b32 s{sT}, s{sX}, 20
          s_lshl_b32 s{sT+1}, s{sW}, 15
          s_add_u32 s{sT}, s{sT}, s{sT+1}
          s_lshl_b32 s{sT+1}, s{sU}, 8
          s_add_u32 s{sT}, s{sT}, s{sT+1}
          s_mul_i32 s{sT+2}, s{sW}, {8*1152}""")
    for i in range(8):
        s(f"""s_add_u32 s{sT+3}, s{sT}, {(64*(i>>2)+(i&3))*8192}
              s_add_u32 m0, s{sT+2}, {Y_WUV+i*1152}""")
        s.dma(18, r4, sT+3, 'nt')
    s(f's_mov_b32 s3, s{sU}\ns_mov_b32 s101, s{sX}')
    lE = s.lab('ldE'); lA2 = s.lab('ldA2'); lF = s.lab('ldF'); lD = s.lab('D')
    s(f"""s_cmp_lt_u32 s{sI}, 9
          s_cbranch_scc1 {lE}
          s_cmp_lt_u32 s{sI}, 14
          s_cbranch_scc1 {lA2}""")
    s(f"""s_mul_i32 s{sU}, s{sG}, 18
          s_add_u32 s{sU}, s{sU}, s{sI}
          s_add_u32 s{sU}, s{sU}, 2""")
    ffn_load(s)
    s(f's_branch {lD}')
    s(f'{lE}:')
    s.srd(r1, 'wo')
    s.voff128(8, 9, 1152, 1, 16)
    s(f"""s_lshl_b32 s{sT}, s{sG}, 2
          s_add_u32 s{sT}, s{sT}, s{sW}
          s_mul_i32 s{sT}, s{sT}, {128*1152}
          s_lshl_b32 s{sT+1}, s{sI}, 7
          s_add_u32 s{sT}, s{sT}, s{sT+1}
          s_lshl_b32 s{sT+2}, s{sW}, 14""")
    for kt in range(4):
        for i in range(4):
            s(f"""s_add_u32 s{sT+3}, s{sT}, {(64*(i>>1)+2*(i&1)+4*kt)*1152}
                  s_add_u32 m0, s{sT+2}, {kt*4096+i*1024}""")
            s.dma(8, r1, sT+3, 'nt')
    s(f's_branch {lD}')
    s(f"""{lA2}:
          s_sub_u32 s{sU}, s{sI}, 9
          s_lshl_b32 s{sU}, s{sU}, 3
          s_add_u32 s{sU}, s{sU}, s{sG}
          s_cmp_ge_u32 s{sU}, 36
          s_cbranch_scc1 {lD}""")
    s.srd(r1, 'wmod'); s.srd(r2, 'c')
    s(f"""v_lshlrev_b32 v8, 2, v0
          buffer_load_dword v16, v8, s[{r2}:{r2+3}], 0 offen
          buffer_load_dword v17, v8, s[{r2}:{r2+3}], 0 offen offset:1024""")
    s.voff128(9, 10, 6912, 8, 1)
    s(f"""s_and_b32 s{sT}, s{sW}, 1
          s_lshl_b32 s{sT}, s{sT}, 4
          s_and_b32 s{sT+1}, s{sW}, 2
          s_lshl_b32 s{sT+1}, s{sT+1}, 1
          s_add_u32 s{sT}, s{sT}, s{sT+1}
          s_mul_i32 s{sT}, s{sT}, 6912
          s_lshl_b32 s{sT+1}, s{sU}, 7
          s_add_u32 s{sT}, s{sT}, s{sT+1}
          s_add_u32 s{sT}, s{sT}, 2304
          s_lshl_b32 m0, s{sW}, 10
          s_mov_b32 s{sT+2}, 0""")
    lp = s.lab('a2')
    s(f'{lp}:')
    s.dma(9, r1, sT, 'nt')
    s(f"""s_add_u32 s{sT}, s{sT}, {32*6912}
          s_add_u32 m0, m0, 4096
          s_add_u32 s{sT+2}, s{sT+2}, 1
          s_cmp_lt_u32 s{sT+2}, 18
          s_cbranch_scc1 {lp}
          s_waitcnt vmcnt(18)""")
    s.silu(16, 10); s.silu(17, 10)
    s(f"""v_add_u32 v8, {Y_S}, v8
          ds_write_b32 v8, v16
          ds_write_b32 v8, v17 offset:1024
          s_waitcnt vmcnt(0) lgkmcnt(0)
          s_barrier""")
    s.tr128(20, 22, f's{sW}', 0)
    s(f"""v_add_u32 v21, 0x8000, v20
          v_lshlrev_b32 v23, 4, v{vGQ}
          v_add_u32 v22, {Y_S}, v23""")
    for kt in range(18):
        for hh in range(2):
            off = kt*4096+hh*2048
            s(f'ds_read_b64_tr_b16 {ar(128+4*kt+2*hh,2)}, v{20 if off<0x8000 else 21} offset:{off if off<0x8000 else off-0x8000}')
        s(f'ds_read_b128 {vr(64+4*kt,4)}, v22 offset:{kt*64}')
    s('s_waitcnt lgkmcnt(0)')
    for kt in range(18):
        s(f'{MF} v[12:15], {ar(128+4*kt,4)}, {vr(64+4*kt,4)}, {"v[12:15]" if kt else 0}')
    for r in range(4):
        s.bfr(12+r, 12+r); s(f'v_or_b32 v{12+r}, s{sT8}, v{12+r}')
    s(f"""s_lshl_b32 s{sT}, s{sU}, 8
          s_lshl_b32 s{sT+1}, s{sW}, 6
          s_add_u32 s{sT}, s{sT}, s{sT+1}
          s_add_u32 s{sT}, s{sT}, {MOD2}""")
    s.setexec(0x10001, 0x10001)
    s(f'buffer_store_dwordx4 v[12:15], v23, s[{rWS}:{rWS+3}], s{sT} offen sc1')
    s.fullexec()
    s(f'{lD}:')
    s(f's_mul_i32 s{sT}, s{sW}, {8*1152}\ns_add_u32 s{sT}, s{sT}, {Y_WUV}')
    s.tr256(20, 22, 0, f's{sT}')
    s('s_waitcnt vmcnt(0)')
    s.ts(6)
    for cg in range(8):
        if cg: s.tr256(20, 22, cg, f's{sT}')
        for hh in range(2):
            s(f'ds_read_b64_tr_b16 {ar(4*cg+2*hh,2)}, v20 offset:{4*hh*1152}')
    s(f"""s_and_b32 s{sT}, s3, 15
          s_lshl_b32 s{sT}, s{sT}, 4
          s_lshr_b32 s{sT+1}, s3, 4
          s_lshl_b32 s{sT+1}, s{sT+1}, 3
          s_add_u32 s{sT}, s{sT}, s{sT+1}
          s_add_u32 s{sT}, s{sT}, {ML}
          s_add_u32 s{sT+1}, s{sT}, 16384
          v_lshlrev_b32 v8, 8, v{vL}
          s_lshl_b32 s{sT+2}, s{sW}, 9
          s_add_u32 s{sT+2}, s{sT+2}, {Y_F}
          v_lshlrev_b32 v9, 5, v{vP}
          v_lshl_add_u32 v9, v{vGQ}, 2, v9
          v_add_u32 v9, s{sT+2}, v9
          v_lshrrev_b32 v10, 2, v{vL}
          v_lshlrev_b32 v10, 5, v10
          v_add_u32 v10, s{sT+2}, v10""")
    lp = s.lab('ml')
    s(f"""{lp}:
          buffer_load_dwordx2 v[12:13], v8, s[{rWS}:{rWS+3}], s{sT} offen sc1
          buffer_load_dwordx2 v[14:15], v8, s[{rWS}:{rWS+3}], s{sT+1} offen sc1
          s_waitcnt vmcnt(0)""")
    s.chk32(11, [12,13,14,15])
    s.retry(11, '0xff', lp)
    s(f"""v_and_b32 v12, v12, v{vMF}
          v_and_b32 v14, v14, v{vMF}
          v_max_f32 v16, v12, v14""")
    s.wave_red('v_max_f32', 16, 17)
    s("""v_sub_f32 v12, v12, v16
         v_sub_f32 v14, v14, v16
         v_cvt_i32_f32 v12, v12
         v_cvt_i32_f32 v14, v14
         v_ldexp_f32 v12, 1.0, v12
         v_ldexp_f32 v14, 1.0, v14
         v_and_b32 v12, 0xffff0000, v12
         v_and_b32 v14, 0xffff0000, v14
         ds_write_b32 v9, v12
         ds_write_b32 v9, v14 offset:16
         v_mul_f32 v16, v12, v13
         v_fmac_f32 v16, v14, v15""")
    s.wave_red('v_add_f32', 16, 17)
    s(f"""v_rcp_f32 v16, v16
          s_waitcnt lgkmcnt(0)
          ds_read_b128 v[24:27], v10
          ds_read_b128 v[28:31], v10 offset:16
          s_lshl_b32 s{sT}, s3, 2
          s_add_u32 s{sT}, s{sT}, s101
          s_lshl_b32 s{sT+1}, s{sT}, 15
          s_lshl_b32 s{sT+2}, s{sW}, 6
          s_add_u32 s{sT+1}, s{sT+1}, s{sT+2}
          s_add_u32 s{sT+1}, s{sT+1}, {OP}
          s_lshl_b32 s{sT}, s{sT}, 10
          s_lshl_b32 s{sT+3}, s{sW}, 8
          s_add_u32 s{sT}, s{sT}, s{sT+3}
          s_add_u32 s{sT}, s{sT}, {CP}
          s_add_u32 s{sT+2}, s{sT+2}, {Y_O}
          v_and_b32 v9, 3, v{vL}
          v_lshlrev_b32 v9, 4, v9
          v_lshl_add_u32 v9, v{vGQ}, 2, v9
          v_add_u32 v9, s{sT+2}, v9
          v_lshlrev_b32 v10, 4, v{vGQ}
          v_add_u32 v10, s{sT+2}, v10
          s_waitcnt lgkmcnt(0)""")
    for i in range(8): s(f'v_lshrrev_b32 v{32+i}, 16, v{24+i}')
    lp = s.lab('op')
    s(f'{lp}:')
    for i in range(8):
        s(f's_add_u32 s{sT+3}, s{sT+1}, {i*4096}')
        s(f'buffer_load_dwordx4 {vr(64+4*i,4)}, v{vACT}, s[{rWS}:{rWS+3}], s{sT+3} offen sc1')
    s('s_waitcnt vmcnt(0)')
    s.chk16(11, 64, 32)
    s.retry(11, '0x10001', lp)
    s.ts(7)
    for e in range(8): s(f'v_mov_b32 v{40+e}, 0')
    for i in range(8):
        for d in range(4):
            s(f'v_dot2c_f32_bf16 v{40+2*d}, v{64+4*i+d}, v{32+i}')
            s(f'v_dot2c_f32_bf16 v{41+2*d}, v{64+4*i+d}, v{24+i}')
    for e in range(4): s(f'v_permlane32_swap_b32 v{40+e}, v{44+e}')
    for e in range(4): s(f'v_add_f32 v{40+e}, v{40+e}, v{44+e}')
    for e in range(2): s(f'v_permlane16_swap_b32 v{40+e}, v{42+e}')
    for e in range(2): s(f'v_add_f32 v{40+e}, v{40+e}, v{42+e}')
    for k in (4, 8):
        for e in range(2): s(f'v_add_f32_dpp v{40+e}, v{40+e}, v{40+e} row_ror:{k} row_mask:0xf bank_mask:0xf')
    s("""v_cvt_pk_bf16_f32 v40, v40, v41
         ds_write_b32 v9, v40
         s_waitcnt lgkmcnt(0)
         ds_read_b128 v[44:47], v10
         s_waitcnt lgkmcnt(0)""")
    for cg in range(8): s(f'{MF} {vr(64+4*cg,4)}, v[44:47], {ar(4*cg,4)}, 0')
    for cg in range(8): s(f'v_mul_f32 v{64+4*cg}, v{64+4*cg}, v16')
    for d in range(4): s.packtag(12+d, 64+8*d, 68+8*d, d)
    s.setexec(0xffff, 0)
    s(f'buffer_store_dwordx4 v[12:15], v{vL16}, s[{rWS}:{rWS+3}], s{sT} offen sc1')
    s.fullexec()
    s.ts(8)
    if s.stop <= 5: s('s_branch L_done'); return
    lFin = s.lab('fin')
    s(f"""s_cmp_ge_u32 s{sI}, 14
          s_cbranch_scc1 {'L_ffn' if s.stop > 6 else 'L_done'}
          s_cmp_ge_u32 s{sI}, 9
          s_cbranch_scc1 {lFin}""")
    s('s_barrier')
    s.tr128(20, 22, f's{sW}', 0)
    s('v_add_u32 v21, 0x8000, v20')
    for kt in range(16):
        for hh in range(2):
            off = kt*4096+hh*2048
            s(f'ds_read_b64_tr_b16 {ar(128+4*kt+2*hh,2)}, v{20 if off<0x8000 else 21} offset:{off if off<0x8000 else off-0x8000}')
    s(f"""s_lshl_b32 s{sT}, s{sI}, 6
          s_lshl_b32 s{sT+1}, s{sW}, 4
          s_add_u32 s{sT}, s{sT}, s{sT+1}
          s_lshl_b32 s{sT+1}, s{sT}, 2
          s_add_u32 s{sT+2}, s{sT+1}, {MOD2}
          s_add_u32 s{sT+3}, s{sT+1}, {MOD2+4608}
          s_lshl_b32 s{sT}, s{sT}, 1
          v_lshlrev_b32 v8, 4, v{vGQ}
          v_lshlrev_b32 v9, 3, v{vGQ}
          buffer_load_dwordx2 v[18:19], v9, s[{r3}:{r3+3}], s{sT} offen""")
    lp = s.lab('ga')
    s(f"""{lp}:
          buffer_load_dwordx4 v[24:27], v8, s[{rWS}:{rWS+3}], s{sT+2} offen sc1
          buffer_load_dwordx4 v[28:31], v8, s[{rWS}:{rWS+3}], s{sT+3} offen sc1
          s_waitcnt vmcnt(0)""")
    s.chk32(11, list(range(24,32)))
    s.retry(11, '0xff', lp)
    for r in range(4):
        s(f"""v_and_b32 v{24+r}, 0xffff0000, v{24+r}
              v_and_b32 v{28+r}, 0xffff0000, v{28+r}
              v_add_f32 v{28+r}, 1.0, v{28+r}""")
        s.bfr(28+r, 28+r)
    s(f"""s_cmp_eq_u32 s{sG}, 0
          s_cselect_b32 s{sT+4}, -1, 0
          v_and_b32 v18, s{sT+4}, v18
          v_and_b32 v19, s{sT+4}, v19
          v_lshlrev_b32 v32, 16, v18
          v_and_b32 v33, 0xffff0000, v18
          v_lshlrev_b32 v34, 16, v19
          v_and_b32 v35, 0xffff0000, v19""")
    s(f"""v_and_b32 v10, 1, v{vGQ}
          v_mul_u32_u24 v10, {8*1152}, v10
          v_lshrrev_b32 v11, 1, v{vGQ}
          v_lshl_add_u32 v10, v11, 4, v10
          s_mul_i32 s{sT+4}, s{sG}, 1152
          s_add_u32 s{sT}, s{sT}, s{sT+4}
          s_add_u32 s{sT}, s{sT}, {TR}
          s_lshl_b32 s{sT+4}, s{sT+4}, 1
          s_add_u32 s{sT+1}, s{sT+1}, s{sT+4}
          s_add_u32 s{sT+1}, s{sT+1}, {T32}
          s_lshl_b32 s{sT+2}, s{sG}, 2
          s_add_u32 s{sT+2}, s{sT+2}, s{sW}
          s_lshl_b32 s{sT+2}, s{sT+2}, 12
          s_add_u32 s{sT+2}, s{sT+2}, {CP}
          s_lshl_b32 s{sT+3}, s{sW}, 12
          s_add_u32 s{sT+3}, s{sT+3}, {Y_CP}
          v_lshlrev_b32 v12, 6, v{vP}
          v_lshl_add_u32 v12, v{vGQ}, 4, v12
          v_add_u32 v13, s{sT+3}, v12
          v_add_u32 v12, {Y_CP}, v12""")
    lp = s.lab('cp')
    s(f'{lp}:')
    for kt in range(4):
        s(f"""s_add_u32 s{sT+4}, s{sT+2}, {kt*64}
              s_add_u32 m0, s{sT+3}, {kt*1024}""")
        s.dma(vACT, rWS, sT+4, 'sc1')
    s('s_waitcnt vmcnt(0)')
    for kt in range(4): s(f'ds_read_b128 {vr(40+4*kt,4)}, v13 offset:{kt*1024}')
    s('s_waitcnt lgkmcnt(0)')
    s.chk16(11, 40, 16)
    s.retry(11, '0x10001', lp)
    s('s_barrier')
    for kt in range(16): s(f'ds_read_b128 {vr(64+4*kt,4)}, v12 offset:{kt*1024}')
    for kt in range(16):
        s(f's_waitcnt lgkmcnt({15-kt})')
        s(f'{MF} v[40:43], {ar(128+4*kt,4)}, {vr(64+4*kt,4)}, {"v[40:43]" if kt else 0}')
    for k in (8, 4, 2, 1):
        for r in range(4): s(f'v_add_f32_dpp v{40+r}, v{40+r}, v{40+r} row_ror:{k} row_mask:0xf bank_mask:0xf')
    for r in range(4): s(f'v_fma_f32 v{40+r}, v{40+r}, v{24+r}, v{32+r}')
    for r in range(4): s(f'v_mul_f32 v{44+r}, v{40+r}, v{28+r}')
    s(f"""v_perm_b32 v48, v41, v40, s{sPERM}
          v_perm_b32 v49, v43, v42, s{sPERM}
          v_perm_b32 v50, v45, v44, s{sPERM}
          v_perm_b32 v51, v47, v46, s{sPERM}
          v_permlane16_swap_b32 v48, v50
          v_permlane16_swap_b32 v49, v51""")
    for d in range(4): s.tag16(48+d, d)
    for r in range(4): s.tag32(40+r, 40+r)
    s.setexec(0x10001, 0x10001)
    s(f'buffer_store_dwordx4 v[48:51], v10, s[{rWS}:{rWS+3}], s{sT} offen sc1')
    s(f'buffer_store_dwordx4 v[40:43], v8, s[{rWS}:{rWS+3}], s{sT+1} offen sc1')
    s.fullexec()
    s.ts(5)
    s('s_branch L_done')
    s(f"""{lFin}:
          s_cmp_ge_u32 s{sU}, 36
          s_cbranch_scc1 L_done
          s_cmp_lg_u32 s{sW}, 0
          s_cbranch_scc1 L_done""")
    if s.stop <= 7: s('s_branch L_done'); return
    s.srd(r1, 'out')
    s(f"""s_mul_i32 s{sT}, s{sU}, 7282
          s_lshr_b32 s{sT}, s{sT}, 16
          s_mul_i32 s{sT+1}, s{sT}, 9
          s_sub_u32 s{sT+1}, s{sU}, s{sT+1}
          s_mul_i32 s{sT}, s{sT}, 144
          s_lshr_b32 s{sT+2}, s{sT+1}, 2
          s_lshl_b32 s{sT+2}, s{sT+2}, 6
          s_add_u32 s{sT}, s{sT}, s{sT+2}
          s_and_b32 s{sT+2}, s{sT+1}, 3
          s_lshl_b32 s{sT+2}, s{sT+2}, 2
          s_add_u32 s{sT}, s{sT}, s{sT+2}
          s_cmp_eq_u32 s{sT+1}, 8
          s_cselect_b32 s{sT+2}, 4, 1
          s_cselect_b32 s{sT+3}, 1, 16
          v_and_b32 v8, 3, v{vL}
          v_mul_u32_u24 v9, s{sT+2}, v8
          v_add_u32 v9, s{sT}, v9
          v_add_u32 v10, s{sT+3}, v9
          v_add_u32 v11, s{sT+3}, v10
          v_add_u32 v12, s{sT+3}, v11
          v_lshrrev_b32 v13, 2, v{vL}
          v_and_b32 v14, 7, v13
          v_mul_u32_u24 v14, 2304, v14
          v_mul_u32_u24 v13, 2304, v13
          v_lshl_add_u32 v13, v8, 4, v13
          s_mov_b32 s{sT+4}, {T32}
          s_mov_b32 s{sT+5}, {MOD2+3*2304}""")
    for i in range(4):
        s(f'v_lshlrev_b32 v{16+i}, 2, v{9+i}\nv_add_u32 v{20+i}, v{16+i}, v14\nv_lshlrev_b32 v{9+i}, 1, v{9+i}')
    lp = s.lab('t32')
    s(f'{lp}:')
    for i in range(4):
        s(f'buffer_load_dword v{24+i}, v{20+i}, s[{rWS}:{rWS+3}], s{sT+4} offen sc1')
        s(f'buffer_load_dword v{28+i}, v{16+i}, s[{rWS}:{rWS+3}], s{sT+5} offen sc1')
    s('s_waitcnt vmcnt(0)')
    s.chk32(15, list(range(24,32)))
    s.retry(15, '0xff', lp)
    for k in (4, 8):
        for i in range(4): s(f'v_add_f32_dpp v{24+i}, v{24+i}, v{24+i} row_ror:{k} row_mask:0xf bank_mask:0xf')
    for i in range(4):
        s(f"""v_mov_b32 v15, v{24+i}
              v_permlane16_swap_b32 v{24+i}, v15
              v_add_f32 v{24+i}, v{24+i}, v15""")
        s.bfr(24+i, 24+i)
        s(f'v_and_b32 v{28+i}, 0xffff0000, v{28+i}')
    s(f"""s_lshl_b32 s{sT}, s{sU}, 6
          s_add_u32 s{sT}, s{sT}, {YP}""")
    lp = s.lab('yp')
    s(f'{lp}:')
    for i in range(9):
        s(f's_add_u32 s{sT+1}, s{sT}, {i*16*2304}')
        s(f'buffer_load_dwordx4 {vr(64+4*i,4)}, v13, s[{rWS}:{rWS+3}], s{sT+1} offen sc1')
    s('s_waitcnt vmcnt(0)')
    s.chk32(15, list(range(64,100)))
    s.retry(15, '0xff', lp)
    s.ts(4)
    for i in range(1, 9):
        for e in range(4): s(f'v_add_f32 v{64+e}, v{64+e}, v{64+4*i+e}')
    for k in (4, 8):
        for e in range(4): s(f'v_add_f32_dpp v{64+e}, v{64+e}, v{64+e} row_ror:{k} row_mask:0xf bank_mask:0xf')
    for sw in ('v_permlane16_swap_b32', 'v_permlane32_swap_b32'):
        for e in range(4): s(f'v_mov_b32 v{68+e}, v{64+e}')
        for e in range(4): s(f'{sw} v{64+e}, v{68+e}')
        for e in range(4): s(f'v_add_f32 v{64+e}, v{64+e}, v{68+e}')
    for e in range(4):
        s.bfr(64+e, 64+e)
        s(f'v_mul_f32 v{64+e}, v{64+e}, v{28+e}')
        s.bfr(64+e, 64+e)
        s(f'v_add_f32 v{64+e}, v{64+e}, v{24+e}')
        s(f'v_cvt_pk_bf16_f32 v{64+e}, v{64+e}, v{64+e}')
    s.setexec(0xf, 0)
    for e in range(4): s(f'buffer_store_short v{64+e}, v{9+e}, s[{r1}:{r1+3}], 0 offen')
    s(f"""s_cmp_lg_u32 s{sU}, 0
          s_cbranch_scc1 L_done
          s_mov_b64 exec, 1
          v_mov_b32 v8, 0
          v_mov_b32 v9, s{sE}
          buffer_store_dword v9, v8, s[{rWS}:{rWS+3}], 0 offen sc1
          s_branch L_done""")

def build(diag=False, stop=99):
    s = G(diag, stop)
    prologue(s)
    role_y(s)
    role_x(s)
    if stop > 4:
        s('L_ffn_load:')
        if stop > 6:
            s('s_barrier')
            ffn_load(s)
            ffn_compute(s)
    epilogue(s)
    body = s.finalize(verbose=True)
    hdr = open('cdna_kernels/'+NAME+'.s.ref').read().split('\n')
    head = [l for l in hdr[:17]]
    txt = '\n'.join(head) + f"""
; @launch grid=(256,1,1) block=(256,1,1) lds=163840
.amdgcn_target "amdgcn-amd-amdhsa--gfx950"
.text
.globl {NAME}_kernel
.p2align 8
.type {NAME}_kernel,@function
{NAME}_kernel:
""" + body + f""".section .rodata,"a"
.p2align 6
.amdhsa_kernel {NAME}_kernel
  .amdhsa_next_free_vgpr 512
  .amdhsa_next_free_sgpr 102
  .amdhsa_accum_offset 256
  .amdhsa_group_segment_fixed_size 0
  .amdhsa_kernarg_size 120
  .amdhsa_user_sgpr_count 2
  .amdhsa_user_sgpr_kernarg_segment_ptr 1
  .amdhsa_system_sgpr_workgroup_id_x 1
.end_amdhsa_kernel
"""
    return txt

if __name__ == '__main__':
    ap = argparse.ArgumentParser()
    ap.add_argument('out'); ap.add_argument('--diag', action='store_true'); ap.add_argument('--stop', type=int, default=99)
    a = ap.parse_args()
    open(a.out, 'w').write(build(a.diag, a.stop))
```

```python
import re
from asmlib import NAME

TRANS = ('v_exp_', 'v_log_', 'v_rcp_', 'v_rsq_', 'v_sqrt_', 'v_sin_', 'v_cos_')

def _regs(tok):
    tok = tok.strip()
    if tok.startswith('-'): tok = tok[1:]
    if tok.startswith('|') and tok.endswith('|'): tok = tok[1:-1]
    m = re.fullmatch(r'([vas])(\d+)', tok)
    if m:
        k, i = m.group(1), int(m.group(2))
        return [('v', i + 256)] if k == 'a' else [(k, i)]
    m = re.fullmatch(r'([vas])\[(\d+):(\d+)\]', tok)
    if m:
        k, a, b = m.group(1), int(m.group(2)), int(m.group(3))
        o = 256 if k == 'a' else 0
        k = 'v' if k == 'a' else k
        return [(k, i + o) for i in range(a, b + 1)]
    if tok == 'vcc': return [('s', 106), ('s', 107)]
    if tok == 'vcc_lo': return [('s', 106)]
    if tok == 'vcc_hi': return [('s', 107)]
    if tok == 'exec': return [('s', 126), ('s', 127)]
    if tok == 'exec_lo': return [('s', 126)]
    if tok == 'exec_hi': return [('s', 127)]
    if tok == 'm0': return [('s', 124)]
    return []

class Ins:
    def __init__(self, text):
        self.text = text
        t = text.split(';')[0].strip()
        self.label = t.endswith(':')
        self.op = ''
        self.dst = set(); self.src = set(); self.srcC = set(); self.srcAB = set(); self.sdata = set()
        self.kind = 'other'; self.states = 1
        self.dpp = False; self.lds = False
        if self.label or not t or t.startswith('.'):
            self.states = 0; self.kind = 'none'; return
        parts = t.split(None, 1)
        op = self.op = parts[0]
        rest = parts[1] if len(parts) > 1 else ''
        ops = []; depth = 0; cur = ''
        for ch in rest:
            if ch == '[': depth += 1
            if ch == ']': depth -= 1
            if ch == ',' and depth == 0: ops.append(cur); cur = ''
            else: cur += ch
        ops.append(cur)
        mods = ''
        if ops:
            l = ops[-1].strip().split(None, 1)
            if l:
                ops[-1] = l[0]; mods = l[1] if len(l) > 1 else ''
        self.ops = [o.strip() for o in ops]; self.mods = mods
        R = [_regs(o) for o in self.ops]
        flat = lambda L: set(x for l in L for x in l)
        if op == 's_nop':
            self.kind = 'nop'; self.states = int(self.ops[0], 0) + 1; return
        if op.startswith('v_mfma'):
            self.kind = 'mfma'
            self.dst = set(R[0]); self.srcAB = flat(R[1:3]); self.srcC = set(R[3]); self.src = self.srcAB | self.srcC
            self.passes = 8 if '32x32' in op else 4
            if op.endswith('_f32') and 'x4_f32' in op: raise ValueError('sgemm not modelled')
            return
        if op.startswith('v_'):
            self.kind = 'valu'
            self.dpp = ('_dpp' in op) or ('row_' in mods) or ('quad_perm' in mods)
            if op.startswith('v_permlane'):
                self.dst = flat(R[:2]); self.src = flat(R[:2])
            elif op.startswith('v_cmp'):
                self.dst = set(R[0]); self.src = flat(R[1:])
                if op.startswith('v_cmpx'): raise ValueError('no cmpx')
            elif '_co_' in op:
                self.dst = flat(R[:2]); self.src = flat(R[2:])
            else:
                self.dst = set(R[0]); self.src = flat(R[1:])
                if op.startswith(('v_fmac', 'v_mac', 'v_dot2c', 'v_writelane')) or self.dpp: self.src |= set(R[0])
                if op.startswith('v_dot'):
                    self.srcC = set(R[0]) if op.startswith('v_dot2c') else set(R[3])
                    self.srcAB = flat(R[1:3])
            return
        if op.startswith(('buffer_', 'global_')):
            self.kind = 'vmem'
            self.lds = bool(re.search(r'\blds\b', mods)) or '_lds_' in op
            if 'store' in op or 'atomic' in op:
                self.src = flat(R)
                di = 0 if op.startswith('buffer_') else 1
                if 'x3' in op or 'x4' in op: self.sdata = set(R[di])
            elif self.lds:
                self.src = flat(R) | {('s', 124)}
            else:
                self.dst = set(R[0]); self.src = flat(R[1:])
            return
        if op.startswith('ds_'):
            self.kind = 'ds'
            if op.startswith(('ds_read', 'ds_bpermute', 'ds_permute', 'ds_swizzle')):
                self.dst = set(R[0]); self.src = flat(R[1:])
            else:
                self.src = flat(R)
            return
        if op.startswith('s_'):
            self.kind = 'salu'
            if op.startswith(('s_cmp', 's_bitcmp', 's_cbranch', 's_branch', 's_waitcnt', 's_barrier', 's_endpgm', 's_setprio', 's_sleep')):
                self.src = flat(R)
            else:
                self.dst = set(R[0]) if R else set(); self.src = flat(R[1:])
            return
        raise ValueError('unknown op ' + text)

def need(p, c):
    n = 0
    V = lambda S: {x for x in S if x[0] == 'v'}
    Sg = lambda S: {x for x in S if x[0] == 's'}
    if p.kind == 'valu':
        pv = V(p.dst); ps = Sg(p.dst)
        isdot = p.op.startswith('v_dot')
        if c.kind == 'mfma' and pv & c.src: n = max(n, 3 if isdot else 2)
        if c.kind == 'valu':
            if c.dpp and pv & c.src: n = max(n, 2)
            if c.op.startswith('v_permlane') and pv & c.src: n = max(n, 2)
            if c.op.startswith(('v_readlane', 'v_readfirstlane')) and pv & c.src: n = max(n, 1)
            if ps & c.src: n = max(n, 4 if c.op.startswith(('v_readlane', 'v_writelane')) else 2)
            if p.op.startswith(TRANS) and pv & c.src: n = max(n, 1)
            if 'op_sel' in p.mods or 'sdwa' in p.op or 'dst_sel' in p.mods:
                if pv & (c.src | c.dst): n = max(n, 1)
        if isdot:
            if c.op == p.op:
                if pv & c.srcAB: n = max(n, 3)
            elif pv & (c.src | c.dst): n = max(n, 3)
        if c.kind == 'vmem' and ps & c.src: n = max(n, 5)
    if p.kind == 'mfma':
        big = p.passes == 8
        if c.kind == 'mfma':
            if p.dst & c.srcAB: n = max(n, 12 if big else 8)
            if p.dst & c.srcC:
                if not (p.dst == c.srcC and p.passes == c.passes): n = max(n, 10 if big else 6)
            if (p.dst & c.dst) and not (p.dst == c.srcC and p.passes == c.passes): n = max(n, 12 if big else 8)
        elif c.kind in ('valu', 'vmem', 'ds'):
            if p.dst & (c.src | c.dst): n = max(n, 12 if big else 8)
            if c.kind == 'valu' and p.srcC & c.dst: n = max(n, 7 if big else 3)
    if p.kind == 'vmem' and p.sdata:
        if p.sdata & c.dst: n = max(n, 2)
    if p.kind == 'salu' and ('s', 124) in p.dst and c.kind == 'vmem' and c.lds: n = max(n, 1)
    return n

MFAST = True
class Asm:
    def __init__(self):
        self.lines = []
        self.uid = 0
    def __call__(self, text):
        for l in text.split('\n'):
            l = l.strip()
            if l: self.lines.append(l)
    def lab(self, p='L'):
        self.uid += 1
        return f'{p}_{self.uid}'
    def finalize(self, verbose=False):
        ins = [Ins(l) for l in self.lines]
        out = []
        W = 14
        def mdist(hist, k):
            t = 0; last = 0; gap = 4 if '16x16x32' in hist[k].op else 2
            for q in hist[k+1:]:
                if q.kind == 'none': continue
                if q.kind == 'mfma':
                    t = max(t + 1, last + gap); last = t; gap = 4 if '16x16x32' in q.op else 2
                else: t += q.states
            return t
        def fix(hist, c):
            d = 0; req = 0
            for k in range(len(hist)-1, -1, -1):
                p = hist[k]
                if d >= W: break
                if p.kind in ('none',): continue
                n = need(p, c)
                if n > d:
                    dd = max(d, mdist(hist, k)) if (p.kind == 'mfma' and MFAST) else d
                    r = n - dd
                    if r > req: req = r
                d += p.states
            return req
        nn = 0
        for c in ins:
            if c.kind != 'none':
                hist = []
                for p in reversed(out[-60:]):
                    if p.op in ('s_branch', 's_endpgm'): break
                    hist.append(p)
                hist.reverse()
                r = fix(hist, c)
                if r > 0:
                    out.append(Ins(f's_nop {r-1}')); nn += 1
            out.append(c)
        labels = {i.text.split(':')[0].strip(): k for k, i in enumerate(out) if i.label}
        changed = True
        while changed:
            changed = False
            labels = {i.text.split(':')[0].strip(): k for k, i in enumerate(out) if i.label}
            for k, b in enumerate(out):
                if b.op.startswith(('s_cbranch', 's_branch')):
                    tgt = labels[b.ops[0]]
                    hist = [p for p in out[max(0, k-40):k+1]]
                    worst = 0; h = list(hist); d = 0
                    for c in out[tgt:tgt+40]:
                        if c.kind == 'none': continue
                        if d >= W: break
                        dd = d;
                        for p in reversed(hist):
                            if dd >= W: break
                            if p.kind == 'none': continue
                            r = need(p, c) - dd
                            worst = max(worst, r)
                            dd += p.states
                        d += c.states
                        if c.op in ('s_branch', 's_endpgm'): break
                    if worst > 0:
                        out.insert(k, Ins(f's_nop {worst-1}')); nn += 1
                        changed = True
                        break
        if verbose: print('inserted nops', nn, 'instrs', sum(1 for i in out if i.kind != 'none'))
        return '\n'.join((i.text if i.label else '    ' + i.text) for i in out) + '\n'

def vr(b, n=1): return f'v{b}' if n == 1 else f'v[{b}:{b+n-1}]'
def ar(b, n=1): return f'a{b}' if n == 1 else f'a[{b}:{b+n-1}]'
def sr(b, n=1): return f's{b}' if n == 1 else f's[{b}:{b+n-1}]'
```

```python
import sys, argparse, struct
from asmlib import NAME, SIZES
from asmgen import Asm, vr, ar, sr

MODP=0x1000; QPL=0x8000; QA=0x10000; ML=0x18000; CPL=0x20000; QPG=0x28000; CPG=0x30000; MOD2=0x40000; TR=0x44000; T32=0x49000
YP=0x50000; OP=0x100000; DBGT=0x500000; WS_USED=0x600000
PTR = dict(x=4, ckv=6, wq=8, wuk=10, wuv=12, wo=14, bx=16, wg=18, wu=20, wd=22, c=24, wmod=26, out=28, dbg=30, ws=32)
sE=34; sW=35; sG=36; sI=37; sC=38; sT8=39; sTD=40; sH=44; sQ=45; sK=46; sN=47
rWS=48; r1=52; r2=56; r3=60; r4=64
sT=68
sTS=76
sSPIN=96; sU=97; sX=98; sFG=99; sM=100
sFL=3; sFA=30; sFB=31
sPM=4
vL=1; vGQ=2; vP=3; vL16=4; vMB=5; vMF=6; vTL=7
vFO=244; vFH=245; vGO=246
SPIN_LIMIT=40000
NLOC=24
LOG2E=1.4426950408889634
def fb(x): return '0x%08x' % struct.unpack('<I', struct.pack('<f', x))[0]
MF='v_mfma_f32_16x16x32_bf16'
MH='v_mfma_f32_16x16x16_bf16'
DPP='row_mask:0xf bank_mask:0xf'
def fsw(p): return ((((p & 7) ^ ((p >> 3) * 4)) << 1) | (p >> 3))

def weave(mf, other, per=2):
    out = []; o = list(other)
    for i, m in enumerate(mf):
        out.append(m)
        n = 0
        while o and n < per:
            x = o.pop(0)
            if x is None: break
            out.append(x); n += 2 if x.startswith(('v_exp', 'v_rcp', 'v_rsq')) else 1
    out += [x for x in o if x is not None]
    return out

class G(Asm):
    def __init__(s, P):
        super().__init__(); s.P = P; s.diag = P.diag; s.tsmap = P.tsmap
    def cap(s, fn, *a):
        old = s.lines; s.lines = []; fn(*a); r = s.lines; s.lines = old; return r
    def emit(s, L):
        for l in L: s(l)
    def srd(s, r, name, size=None):
        p = PTR[name]; size = size if size is not None else SIZES[name]
        s(f"""s_mov_b64 s[{r}:{r+1}], s[{p}:{p+1}]
              s_mov_b32 s{r+2}, {size}
              s_mov_b32 s{r+3}, 0x20000""")
    def ts(s, name):
        if s.diag and name in s.tsmap:
            k = s.tsmap[name]; s(f'{s.P.tsop} s[{sTS+2*k}:{sTS+2*k+1}]')
    def dma(s, voff, srd, soff, flags='nt', off=0):
        s(f'buffer_load_dwordx4 v{voff}, s[{srd}:{srd+3}], s{soff} offen {"offset:%d " % off if off else ""}{flags} lds')
    def wld(s, dst, n, voff, soff, off=0):
        op = {1: 'dword', 2: 'dwordx2', 4: 'dwordx4'}[n]
        s(f'buffer_load_{op} {vr(dst,n)}, v{voff}, s[{rWS}:{rWS+3}], s{soff} offen {"offset:%d " % off if off else ""}sc1')
    def wst(s, src, n, voff, soff, off=0, fl='sc1'):
        op = {1: 'dword', 2: 'dwordx2', 4: 'dwordx4'}[n]
        s(f'buffer_store_{op} {vr(src,n)}, v{voff}, s[{rWS}:{rWS+3}], s{soff} offen {"offset:%d " % off if off else ""}{fl}')
    def packtag(s, dst, lo, hi, d):
        s(f"""v_cvt_pk_bf16_f32 v{dst}, v{lo}, v{hi}
              v_and_or_b32 v{dst}, v{dst}, v{vMB}, s{sTD+d}""")
    def gather8(s, dst, src):
        s(f"""v_mov_b32_dpp v{dst+1}, v{src} quad_perm:[1,0,3,2] {DPP}
              v_cvt_pk_bf16_f32 v{dst}, v{src}, v{dst+1}
              v_and_or_b32 v{dst}, v{dst}, v{vMB}, v{vTL}
              v_mov_b32_dpp v{dst+1}, v{dst} row_ror:14 {DPP}
              v_mov_b32_dpp v{dst+2}, v{dst} row_ror:12 {DPP}
              v_mov_b32_dpp v{dst+3}, v{dst} row_ror:10 {DPP}""")
    def tag32(s, dst, src):
        s(f'v_and_or_b32 v{dst}, v{src}, v{vMF}, s{sT8}')
    def chk16(s, acc, regs, first=True):
        for i, (r, d) in enumerate(regs):
            if first and i == 0: s(f'v_xor_b32 v{acc}, s{sTD+d}, v{r}')
            else: s(f'v_bitop3_b32 v{acc}, v{r}, s{sTD+d}, v{acc} bitop3:0xbe')
    def chk32(s, acc, regs, first=True):
        for i, r in enumerate(regs):
            if first and i == 0: s(f'v_xor_b32 v{acc}, s{sT8}, v{r}')
            else: s(f'v_bitop3_b32 v{acc}, v{r}, s{sT8}, v{acc} bitop3:0xbe')
    def test(s, acc, mask, dst='vcc'):
        s(f"""v_and_b32 v{acc}, {mask}, v{acc}
              v_cmp_ne_u32 {dst}, 0, v{acc}""")
    def spin(s):
        s(f's_add_u32 s{sSPIN}, s{sSPIN}, 1\ns_cmp_ge_u32 s{sSPIN}, {SPIN_LIMIT}\ns_cbranch_scc1 L_done')
    def again(s, loop): s(f's_cbranch_vccnz {loop}')
    def againq(s, loop):
        s(f"""s_wqm_b64 exec, vcc
              s_cbranch_execnz {loop}
              s_mov_b64 exec, -1""")
    def setexec(s, lo, hi):
        s(f's_mov_b32 exec_lo, {lo:#x}\ns_mov_b32 exec_hi, {hi:#x}')
    def fullexec(s): s('s_mov_b64 exec, -1')
    def bfr(s, dst, src):
        s(f"""v_cvt_pk_bf16_f32 v{dst}, v{src}, v{src}
              v_and_b32 v{dst}, 0xffff0000, v{dst}""")
    def xgq(s, op, r, t):
        s(f"""v_mov_b32 v{t}, v{r}
              v_permlane16_swap_b32 v{r}, v{t}
              {op} v{r}, v{r}, v{t}
              v_mov_b32 v{t}, v{r}
              v_permlane32_swap_b32 v{r}, v{t}
              {op} v{r}, v{r}, v{t}""")
    def wave_red(s, op, r, t):
        for k in (8, 4, 2, 1):
            s(f'{op}_dpp v{r}, v{r}, v{r} row_ror:{k} {DPP}')
        s.xgq(op, r, t)
    def tags(s):
        s(f"""v_mov_b32 v{vMB}, 0xfffefffe
              v_mov_b32 v{vMF}, 0xffffff00
              v_and_b32 v{vTL}, 6, v{vL}
              s_waitcnt lgkmcnt(0)
              s_add_u32 s{sE}, s{sE}, 1
              s_and_b32 s{sT8}, s{sE}, 0xff
              s_mul_i32 s{sTD+3}, s{sT8}, 0x8001
              v_lshrrev_b32 v{vTL}, v{vTL}, s{sTD+3}
              v_and_b32 v{vTL}, 0x10001, v{vTL}
              s_and_b32 s{sTD}, s{sTD+3}, 0x10001
              s_lshr_b32 s{sTD+1}, s{sTD+3}, 2
              s_and_b32 s{sTD+1}, s{sTD+1}, 0x10001
              s_lshr_b32 s{sTD+2}, s{sTD+3}, 4
              s_and_b32 s{sTD+2}, s{sTD+2}, 0x10001
              s_lshr_b32 s{sTD+3}, s{sTD+3}, 6
              s_and_b32 s{sTD+3}, s{sTD+3}, 0x10001""")
        s.srd(rWS, 'ws', WS_USED)
    def silu(s, src, t):
        s(f"""v_lshlrev_b32 v{t}, 16, v{src}
              v_and_b32 v{t+1}, 0xffff0000, v{src}
              v_mul_f32 v{t+2}, {fb(-LOG2E)}, v{t}
              v_mul_f32 v{t+3}, {fb(-LOG2E)}, v{t+1}
              v_exp_f32 v{t+2}, v{t+2}
              v_exp_f32 v{t+3}, v{t+3}
              v_add_f32 v{t+2}, 1.0, v{t+2}
              v_add_f32 v{t+3}, 1.0, v{t+3}
              v_rcp_f32 v{t+2}, v{t+2}
              v_rcp_f32 v{t+3}, v{t+3}
              v_mul_f32 v{t}, v{t}, v{t+2}
              v_mul_f32 v{t+1}, v{t+1}, v{t+3}
              v_cvt_pk_bf16_f32 v{src}, v{t}, v{t+1}""")
    def voff128(s, dst, t, RS, a, b):
        s(f"""v_lshrrev_b32 v{t}, 3, v{vL}
              v_and_b32 v{dst}, 6, v{t}
              v_xor_b32 v{dst}, v{dst}, v{vL}
              v_and_b32 v{dst}, 7, v{dst}
              v_lshlrev_b32 v{dst}, 4, v{dst}
              v_lshrrev_b32 v{t+1}, 2, v{t}
              v_and_b32 v{t}, 3, v{t}
              v_mov_b32 v{t+2}, {a*RS}
              v_mad_u32_u24 v{dst}, v{t+1}, v{t+2}, v{dst}
              v_mov_b32 v{t+2}, {b*RS}
              v_mad_u32_u24 v{dst}, v{t}, v{t+2}, v{dst}""")
    def tr128(s, dst, t, cg, base):
        s(f"""v_lshrrev_b32 v{t}, 2, v{vL}
              v_lshlrev_b32 v{dst}, 7, v{t}
              v_lshrrev_b32 v{t}, 1, v{t}
              v_and_b32 v{t}, 3, v{t}
              v_xor_b32 v{t}, {cg}, v{t}
              v_lshl_add_u32 v{dst}, v{t}, 5, v{dst}
              v_and_b32 v{t}, 3, v{vL}
              v_lshl_add_u32 v{dst}, v{t}, 3, v{dst}""")
        if base: s(f'v_add_u32 v{dst}, {base}, v{dst}')
    def voff256(s, dst, t, RSL):
        s(f"""v_lshlrev_b32 v{t}, 1, v{vGQ}
              v_xor_b32 v{dst}, v{t}, v{vP}
              v_lshlrev_b32 v{dst}, 4, v{dst}
              v_mov_b32 v{t}, {RSL}
              v_mad_u32_u24 v{dst}, v{vGQ}, v{t}, v{dst}""")
    def tr256(s, dst, t, cg, base, BS=1152):
        s(f"""v_lshrrev_b32 v{t}, 2, v{vP}
              v_mul_u32_u24 v{dst}, {BS}, v{vGQ}
              v_lshl_add_u32 v{dst}, v{t}, 8, v{dst}
              v_xor_b32 v{t}, {cg}, v{t}
              v_lshl_add_u32 v{dst}, v{t}, 5, v{dst}
              v_and_b32 v{t}, 3, v{vL}
              v_lshl_add_u32 v{dst}, v{t}, 3, v{dst}""")
        if base: s(f'v_add_u32 v{dst}, {base}, v{dst}')
    def fsw(s, dst, src, t):
        s(f"""v_lshrrev_b32 v{t}, 3, v{src}
              v_mul_u32_u24 v{t}, 9, v{t}
              v_lshlrev_b32 v{dst}, 1, v{src}
              v_and_b32 v{dst}, 14, v{dst}
              v_xor_b32 v{dst}, v{dst}, v{t}""")
    def rowsel(s, dst, t):
        s(f"""s_and_b32 s{dst}, s{sW}, 1
              s_lshl_b32 s{dst}, s{dst}, 4
              s_and_b32 s{t}, s{sW}, 2
              s_lshl_b32 s{t}, s{t}, 1
              s_add_u32 s{dst}, s{dst}, s{t}""")
    def headq(s):
        s(f"""s_lshr_b32 s{sX}, s{sI}, 2
              s_lshl2_add_u32 s{sH}, s{sG}, s{sX}
              s_and_b32 s{sQ}, s{sI}, 3
              s_lshl2_add_u32 s{sX}, s{sG}, s{sW}
              s_lshl4_add_u32 s{sX}, s{sX}, s{sI}
              s_lshl_b32 s{sX}, s{sX}, 6""")
    def column(s, dst, slot, t):
        s(f"""s_sub_u32 s{t}, 3, s{sG}
              s_and_b32 s{t}, s{t}, 7
              s_add_u32 s{t}, s{t}, {slot}
              s_sub_u32 s{dst}, s{t}, 9
              s_cmp_ge_u32 s{t}, 9
              s_cselect_b32 s{t}, s{dst}, s{t}
              s_mul_i32 s{dst}, s{sG}, 9
              s_add_u32 s{dst}, s{dst}, s{t}""")

def prologue(s):
    s(f"""s_cmp_ge_u32 s2, 256
          s_cbranch_scc1 L_end
          s_load_dwordx16 s[4:19], s[0:1], 0
          s_load_dwordx8 s[20:27], s[0:1], 64
          s_load_dwordx4 s[28:31], s[0:1], 96
          s_load_dwordx2 s[32:33], s[0:1], 112""")
    s.ts('start')
    s(f"""v_lshrrev_b32 v8, 6, v0
          v_and_b32 v{vL}, 63, v0
          v_readfirstlane_b32 s{sW}, v8
          v_lshrrev_b32 v{vGQ}, 4, v{vL}
          v_and_b32 v{vP}, 15, v{vL}
          v_lshlrev_b32 v{vL16}, 4, v{vL}
          s_mov_b32 s{sSPIN}, 0
          s_and_b32 s{sG}, s2, 7
          s_lshr_b32 s{sI}, s2, 4
          s_bitcmp0_b32 s2, 3
          s_cbranch_scc1 L_Y""")

def epilogue(s):
    s('L_done:')
    if s.diag:
        s(f"""{s.P.tsop} s[{sTS+18}:{sTS+19}]
              s_waitcnt lgkmcnt(0)
              s_lshl_b32 s{sT}, s2, 2
              s_add_u32 s{sT}, s{sT}, s{sW}
              s_lshl_b32 s{sT}, s{sT}, 6
              s_add_u32 s{sT}, s{sT}, {DBGT}
              s_mov_b64 exec, 1
              v_mov_b32 v8, 0""")
        for k in range(10): s(f'v_mov_b32 v{12+k}, s{sTS+2*k}')
        s(f"""v_mov_b32 v22, s{sSPIN}
              s_getreg_b32 s{sT+1}, hwreg(HW_REG_XCC_ID)
              v_mov_b32 v23, s{sT+1}
              buffer_store_dwordx4 v[12:15], v8, s[{rWS}:{rWS+3}], s{sT} offen
              buffer_store_dwordx4 v[16:19], v8, s[{rWS}:{rWS+3}], s{sT} offen offset:16
              buffer_store_dwordx4 v[20:23], v8, s[{rWS}:{rWS+3}], s{sT} offen offset:32""")
    s('L_end:\ns_endpgm')

FB=18432; GBASE=110592; A2B=73728; A2S=147456; LEX=149504; LZ=LEX+2048; LST=LZ+1024
def ffn_setup(s, t):
    l = s.lab('fs'); j = s.lab('fj')
    s(f's_bitcmp1_b32 s{sU}, 0\ns_cbranch_scc1 {l}')
    s.srd(r1, 'wg'); s.srd(r2, 'wu')
    s(f's_branch {j}\n{l}:')
    s.srd(r1, 'wu'); s.srd(r2, 'wg')
    s(f'{j}:')
    s.srd(r3, 'wd')
    s(f"""v_and_b32 v{t}, 1, v{vGQ}
          v_lshlrev_b32 v{t}, 1, v{t}
          v_xor_b32 v{t}, v{t}, v{vL}
          v_and_b32 v{t}, 3, v{t}
          v_lshlrev_b32 v{t}, 4, v{t}
          v_lshrrev_b32 v{t+1}, 2, v{vP}
          v_lshl_add_u32 v{t+1}, v{vGQ}, 3, v{t+1}
          v_mov_b32 v{t+2}, 9216
          v_mad_u32_u24 v{vFO}, v{t+1}, v{t+2}, v{t}
          v_lshrrev_b32 v{t+1}, 2, v{vL}
          v_mad_u32_u24 v{vFH}, v{t+1}, v{t+2}, v{t}
          s_mul_i32 s{sFG}, s{sW}, {144*9216}
          s_lshl_b32 s{sT}, s{sU}, 6
          s_add_u32 s{sFG}, s{sFG}, s{sT}
          s_mul_i32 s{sFL}, s{sW}, {FB}
          s_and_b32 s{sT}, s{sU}, 1
          s_mul_i32 s{sT}, s{sT}, 9216
          s_add_u32 s{sFA}, s{sFL}, s{sT}
          s_sub_u32 s{sFB}, s{sFL}, s{sT}
          s_add_u32 s{sFB}, s{sFB}, 9216""")
    s.voff128(vGO, t, 1152, 8, 1)

def ffn_dma(s, m, i, st):
    s(f"""s_add_u32 m0, s{sFB if m else sFA}, {i*1024}
          s_add_u32 s{st}, s{sFG}, {(32*(i>>1)+4*(i&1))*9216}""")
    s.dma(vFO if i < 8 else vFH, r2 if m else r1, st, s.P.ffl2 if m else s.P.ffl)
FORD = None
def ffn_tile(s, k, st):
    order = [(m, i) for m in range(2) for i in range(9)] if s.P.phase else [(m, i) for i in range(9) for m in range(2)]
    for m, i in order[3*k:3*k+3]: ffn_dma(s, m, i, st)
def ffn_g(s):
    s.rowsel(sT, sT+1)
    s(f"""s_lshl_b32 s{sT+1}, s{sU}, 5
          s_add_u32 s{sT}, s{sT}, s{sT+1}
          s_mul_i32 s{sT}, s{sT}, 1152
          s_lshl_b32 s{sT+1}, s{sW}, 10""")
    for b in range(9):
        s(f's_add_u32 m0, s{sT+1}, {GBASE+b*4096 - b*128}')
        s.dma(vGO, r3, sT, 'nt', b*128)

def ffn_compute(s):
    for k in range(6):
        s(f'L_ft{k}:'); ffn_tile(s, k, sT)
    s('L_ft6:')
    FW=0; GW=80
    CS=64; AV=112; AV2=132; Z=32; GR=48; UV=24
    ffn_g(s)
    s(f"""v_and_b32 v8, 1, v{vP}
          v_mul_u32_u24 v8, 2304, v8
          v_sub_u32 v8, 2304, v8
          v_lshl_add_u32 v9, v{vGQ}, 4, v8
          v_lshl_add_u32 v8, v{vGQ}, 5, v8
          s_mul_i32 s{sT+2}, s{sW}, 576
          s_add_u32 s{sT+2}, s{sT+2}, {MOD2+2304}
          v_lshrrev_b32 v10, 2, v{vL}
          v_lshlrev_b32 v10, 6, v10
          v_and_b32 v11, 3, v{vL}
          v_lshl_add_u32 v10, v11, 3, v10
          v_add_u32 v10, s{sFL}, v10
          v_and_b32 v11, 1, v{vGQ}
          v_lshl_add_u32 v10, v11, 5, v10
          v_xor_b32 v11, 32, v10
          s_mov_b32 s{sC}, 0x07060302
          s_waitcnt vmcnt(9)""")
    s.ts('f_data')
    for k in range(4):
        for c in range(4):
            for hh in range(2):
                s(f'ds_read_b64_tr_b16 {ar(FW+(k*4+c)*4+2*hh,2)}, v{10+(c>>1)} offset:{k*2048+(c&1)*9216+hh*1024}')
    for c in range(4):
        s(f'ds_read_b64_tr_b16 {ar(FW+64+2*c,2)}, v{10+(c>>1)} offset:{8192+(c&1)*9216}')
    lp = s.lab('cs')
    s(f'{lp}:')
    for k in range(4):
        s.wld(CS+8*k, 4, 8, sT+2, k*128); s.wld(CS+8*k+4, 4, 8, sT+2, k*128+16)
    s.wld(CS+32, 4, 9, sT+2, 512)
    s.spin()
    s('s_waitcnt vmcnt(0)')
    s.chk32(12, list(range(CS, CS+36))); s.test(12, '0xff'); s.ts('f_g'); s.again(lp)
    for i in range(18): s(f'v_perm_b32 v{AV+i}, v{CS+2*i+1}, v{CS+2*i}, s{sC}')
    s('s_waitcnt lgkmcnt(0)')
    def fmf(k):
        L = []
        for c in range(4):
            d = vr(Z+4*c, 4)
            if k < 4: L.append(f'{MF} {d}, {vr(AV+4*k,4)}, {ar(FW+(k*4+c)*4,4)}, {d if k else 0}')
            else: L.append(f'{MH} {d}, {vr(AV+16,2)}, {ar(FW+64+2*c,2)}, {d}')
        return L
    def gram(k):
        d = vr(GR, 4)
        if k < 4: return f'{MF} {d}, {vr(AV+4*k,4)}, {vr(AV2+4*k,4)}, {d if k else 0}'
        return f'{MH} {d}, {vr(AV+16,2)}, {vr(AV2+16,2)}, {d}'
    for k in range(5): s.emit(fmf(k))
    s(f"""v_lshlrev_b32 v11, 6, v{vP}
          s_lshl_b32 s{sT}, s{sW}, 4
          s_add_u32 s{sT}, s{sT}, {LEX}
          v_add_u32 v11, s{sT}, v11
          v_and_b32 v12, 7, v{vP}
          v_lshl_add_u32 v12, v{vGQ}, 3, v12
          v_lshlrev_b32 v13, 6, v12
          v_add_u32 v13, {LEX}, v13
          ds_write_b64 v11, v[{Z}:{Z+1}]
          ds_write_b64 v11, v[{Z+4}:{Z+5}] offset:8
          ds_write_b64 v11, v[{Z+8}:{Z+9}] offset:1024
          ds_write_b64 v11, v[{Z+12}:{Z+13}] offset:1032""")
    s(f"""v_lshrrev_b32 v14, 2, v{vP}
          v_lshlrev_b32 v14, 7, v14
          v_and_b32 v15, 1, v{vP}
          v_lshl_add_u32 v14, v15, 6, v14
          v_and_b32 v15, 2, v{vP}
          v_xor_b32 v15, 2, v15
          v_lshl_add_u32 v14, v15, 4, v14
          v_lshl_add_u32 v15, v{vGQ}, 3, v14
          v_add_u32 v15, 4096, v15
          v_and_b32 v16, 1, v{vGQ}
          v_lshl_add_u32 v14, v16, 4, v14
          v_cmp_eq_u32 vcc, 1, v16
          v_lshrrev_b32 v16, 1, v{vGQ}
          v_lshl_add_u32 v14, v16, 9, v14
          v_mov_b32 v8, s{sTD}
          v_mov_b32 v16, s{sTD+2}
          v_cndmask_b32 v8, v8, v16, vcc
          v_mov_b32 v9, s{sTD+1}
          v_mov_b32 v16, s{sTD+3}
          v_cndmask_b32 v9, v9, v16, vcc
          s_mul_i32 s{sT+1}, s{sW}, {9*512}
          s_add_u32 s{sT+1}, s{sT+1}, {TR}""")
    s(f"""v_lshrrev_b32 v19, 1, v{vGQ}
          v_lshl_add_u32 v19, v19, 4, v{vP}
          v_lshlrev_b32 v19, 5, v19
          v_and_b32 v16, 1, v{vGQ}
          v_lshl_add_u32 v19, v16, 4, v19
          s_lshl_b32 s{sT+4}, s{sW}, 2
          s_add_u32 s{sT+5}, s{sT+4}, {LZ}
          v_add_u32 v19, s{sT+5}, v19
          v_lshlrev_b32 v17, 5, v12
          v_add_u32 v17, {LZ}, v17
          v_and_b32 v20, 2, v{vP}
          v_lshlrev_b32 v20, 3, v20
          s_add_u32 s{sT+5}, s{sT+4}, {LST}
          v_add_u32 v20, s{sT+5}, v20
          v_mov_b32 v18, {LST}
          v_lshrrev_b32 v22, 5, v{vL}
          v_lshrrev_b32 v16, 2, v{vP}
          v_lshl_add_u32 v22, v22, 2, v16
          v_mul_u32_u24 v22, 9216, v22
          v_and_b32 v16, 3, v{vP}
          v_lshl_add_u32 v22, v16, 4, v22
          v_lshlrev_b32 v23, 4, v{vGQ}
          v_add_u32 v23, {8*9216}, v23
          s_lshl_b32 s{sT+4}, s{sU}, 6
          s_mul_i32 s{sT+5}, s{sW}, {9*9216}
          s_add_u32 s{sT+4}, s{sT+4}, s{sT+5}
          s_add_u32 s{sT+4}, s{sT+4}, {YP}
          s_mov_b32 s{sT+6}, 0
          s_mov_b32 s{sT+7}, -1
          s_mov_b32 s{sM}, 0x33333333
          s_mov_b32 s{sM+1}, 0x33333333
          v_mov_b32 v16, 0x3f803f80""")
    s.tr128(10, 11, 0, GBASE)
    s("""s_waitcnt lgkmcnt(0)
         s_barrier""")
    s.ts('f_ready')
    for q in range(4): s(f'ds_read_b128 {vr(Z+4*q,4)}, v13 offset:{16*q}')
    s(f's_mul_i32 s{sT}, s{sW}, 9')
    for i in range(9):
        s(f"""s_add_u32 s{sT+2}, s{sT}, {i}
              s_and_b32 s{sT+3}, s{sT+2}, 3
              s_lshl_b32 s{sT+3}, s{sT+3}, 5
              s_lshr_b32 s{sT+2}, s{sT+2}, 2
              s_lshl_b32 s{sT+2}, s{sT+2}, 12
              v_xor_b32 v11, s{sT+3}, v10
              v_add_u32 v11, s{sT+2}, v11
              ds_read_b64_tr_b16 {ar(GW+4*i,2)}, v11
              ds_read_b64_tr_b16 {ar(GW+4*i+2,2)}, v11 offset:2048""")
        if i == 5:
            s('s_waitcnt lgkmcnt(12)')
            for e in range(4):
                s(f"""v_add_f32 v{UV+e}, v{Z+e}, v{Z+4+e}
                      v_add_f32 v{Z+8+e}, v{Z+8+e}, v{Z+12+e}
                      v_add_f32 v{UV+e}, v{UV+e}, v{Z+8+e}""")
    if s.P.gate:
        s('L_tg2:\ns_mov_b64 exec, 1')
        s.wld(AV, 4, 14, sT+1, 0)
        s.spin()
        s('s_waitcnt vmcnt(0)')
        s.chk16(12, [(AV+i, i) for i in range(4)]); s.test(12, '0x10001'); s.again('L_tg2')
        s.fullexec()
    lp = s.lab('tr')
    s(f'{lp}:')
    for k in range(4): s.wld(AV+4*k, 4, 14, sT+1, k*1024)
    s.wld(AV+16, 2, 15, sT+1)
    s.spin()
    s('s_waitcnt vmcnt(0)')
    ck = s.cap(s.chk16, 12, [(AV+i, i & 3) for i in range(16)]) + [f'v_bitop3_b32 v12, v{AV+16}, v8, v12 bitop3:0xbe', f'v_bitop3_b32 v12, v{AV+17}, v9, v12 bitop3:0xbe'] + s.cap(s.test, 12, '0x10001')
    s.emit(weave(fmf(0)+fmf(1)[:2], ck, 3))
    s.again(lp)
    s.ts('f_tr')
    cm = [f'v_cndmask_b32 v{AV2+q}, v{AV+q}, v16, s[{sM}:{sM+1}]' for q in range(18)]
    rest = fmf(1)[2:] + [gram(0), fmf(2)[0], gram(1), fmf(2)[1], gram(2), fmf(2)[2], gram(3), fmf(2)[3], gram(4)]
    s.emit(weave(rest, cm, 2))
    gr = [None, f'v_add_f32 v{GR}, v{GR+2}, v{GR+3}', None,
          f'v_add_f32_dpp v{GR}, v{GR}, v{GR} quad_perm:[1,0,3,2] {DPP}', None,
          f'v_add_f32_dpp v{GR}, v{GR}, v{GR} row_ror:4 {DPP}', None,
          f'v_add_f32_dpp v{GR}, v{GR}, v{GR} row_ror:8 {DPP}', f'v_mov_b32 v{GR+1}, v{GR}',
          f'v_permlane16_swap_b32 v{GR}, v{GR+1}', f'v_add_f32 v{GR}, v{GR}, v{GR+1}', f'v_mov_b32 v{GR+1}, v{GR}', None,
          f'v_permlane32_swap_b32 v{GR}, v{GR+1}', f'v_add_f32 v{GR}, v{GR}, v{GR+1}', f'ds_write_b32 v20, v{GR}']
    s.emit(weave(fmf(3)+fmf(4), gr, 2))
    for c in range(4): s(f'v_add_f32 v{Z+4*c}, v{Z+4*c}, v{Z+4*c+1}')
    s(f"""v_permlane32_swap_b32 v{Z}, v{Z+8}
          v_permlane32_swap_b32 v{Z+4}, v{Z+12}
          v_add_f32 v{Z}, v{Z}, v{Z+8}
          v_add_f32 v{Z+4}, v{Z+4}, v{Z+12}
          v_permlane16_swap_b32 v{Z}, v{Z+4}
          v_add_f32 v{Z}, v{Z}, v{Z+4}
          ds_write_b32 v19, v{Z}
          v_mov_b32 v{GR+1}, {fb(1e-5)}
          s_waitcnt lgkmcnt(0)
          s_barrier
          ds_read_b128 v[{GR+4}:{GR+7}], v18
          ds_read_b128 v[{GR+8}:{GR+11}], v18 offset:16
          ds_read_b128 v[{Z}:{Z+3}], v17
          ds_read_b128 v[{Z+4}:{Z+7}], v17 offset:16
          s_waitcnt lgkmcnt(2)
          v_pk_add_f32 v[{GR+4}:{GR+5}], v[{GR+4}:{GR+5}], v[{GR+6}:{GR+7}]
          v_pk_add_f32 v[{GR+8}:{GR+9}], v[{GR+8}:{GR+9}], v[{GR+10}:{GR+11}]
          v_add_f32 v{GR+4}, v{GR+4}, v{GR+5}
          v_add_f32 v{GR+8}, v{GR+8}, v{GR+9}
          v_mul_f32 v{GR+4}, {fb(1.0/(8*576))}, v{GR+4}
          v_fmac_f32 v{GR+1}, {fb(1.0/576)}, v{GR+8}
          v_fma_f32 v{GR+1}, -v{GR+4}, v{GR+4}, v{GR+1}
          v_rsq_f32 v{GR+1}, v{GR+1}
          s_waitcnt lgkmcnt(0)
          v_pk_add_f32 v[{Z}:{Z+1}], v[{Z}:{Z+1}], v[{Z+2}:{Z+3}]
          v_pk_add_f32 v[{Z+4}:{Z+5}], v[{Z+4}:{Z+5}], v[{Z+6}:{Z+7}]
          v_add_f32 v{Z}, v{Z}, v{Z+1}
          v_add_f32 v{Z+1}, v{Z+4}, v{Z+5}
          v_fma_f32 v{Z}, -v{GR+4}, v{UV}, v{Z}
          v_fma_f32 v{Z+1}, -v{GR+4}, v{UV+2}, v{Z+1}
          v_fma_f32 v{Z}, v{Z}, v{GR+1}, v{UV+1}
          v_fma_f32 v{Z+1}, v{Z+1}, v{GR+1}, v{UV+3}
          v_cvt_pk_bf16_f32 v{Z+1}, v{Z}, v{Z+1}
          v_lshlrev_b32 v{Z}, 16, v{Z+1}
          v_and_b32 v{Z+1}, 0xffff0000, v{Z+1}""")
    k2 = -2*0.7978845608028654*LOG2E
    s(f"""v_mul_f32 v{Z+2}, v{Z}, v{Z}
          v_mov_b32 v{Z+3}, {fb(k2)}
          v_fmac_f32 v{Z+3}, {fb(k2*0.044715)}, v{Z+2}
          v_mul_f32 v{Z+3}, v{Z+3}, v{Z}
          v_exp_f32 v{Z+3}, v{Z+3}
          v_add_f32 v{Z+3}, 1.0, v{Z+3}
          v_rcp_f32 v{Z+3}, v{Z+3}
          v_mul_f32 v{Z}, v{Z}, v{Z+3}""")
    s.bfr(Z, Z)
    s(f"""v_mul_f32 v{Z}, v{Z}, v{Z+1}
          v_mov_b32_dpp v{Z+1}, v{Z} quad_perm:[1,0,3,2] {DPP}
          v_cvt_pk_bf16_f32 v{AV}, v{Z}, v{Z+1}
          v_mov_b32_dpp v{AV+1}, v{AV} row_ror:14 {DPP}
          v_mov_b32_dpp v{AV+2}, v{AV} row_ror:12 {DPP}
          v_mov_b32_dpp v{AV+3}, v{AV} row_ror:10 {DPP}""")
    YV=64
    gm = [f'{MF} {vr(YV+32,4)}, {ar(GW+32,4)}, {vr(AV,4)}, 0'] + [f'{MF} {vr(YV+4*i,4)}, {vr(AV,4)}, {ar(GW+4*i,4)}, 0' for i in (0,4,1,5,2,6,3,7)]
    s.emit(gm[:4])
    s.tag32(YV+32, YV+32)
    s.emit(gm[4:6])
    def ysel(i):
        s(f'v_cndmask_b32 v{Z+i}, v{YV+4*i}, v{YV+16+4*i}, s[{sT+6}:{sT+7}]')
        if i == 0: s.tag32(Z, Z)
    ysel(0); s(gm[6]); s(gm[7]); ysel(1); s(gm[8])
    s.setexec(0x10001, 0x10001)
    s.wst(YV+32, 4, 23, sT+4)
    s.setexec(0xffff, 0xffff)
    ysel(2); ysel(3)
    s.wst(Z, 4, 22, sT+4)
    s.ts('f_yp')
    s('s_branch L_done')
```

```python
from gen3a import *

XA=131072; XS=XA+24576; XUV=131072
QS=65536; MXL=98304; DX=99328; PB=102400
def cost(x): return 2 if x.startswith(('v_exp', 'v_rcp', 'v_rsq')) else 1
def fill(items, per=2):
    out = []; cur = []; n = 0
    for x in items:
        if n + cost(x) > per and cur: out.append(cur); cur = []; n = 0
        cur.append(x); n += cost(x)
    if cur: out.append(cur)
    return out
def slots(mf, L):
    out = []
    for i, m in enumerate(mf):
        out.append(m)
        if i < len(L): out += L[i]
    for l in L[len(mf):]: out += l
    return out

def role_x(s):
    P = s.P
    KA=32; VA=48; QO=64; Q0=96; Q1=144; SV=192; PK=208; OT=212; LR=228
    s.voff128(9, 10, 6912, 8, 1)
    s(f"""s_lshl4_add_u32 s{sU}, s{sG}, s{sI}
          s_lshl2_add_u32 s{sK}, s{sI}, s{sG}
          s_cmp_ge_u32 s{sG}, 4
          s_cselect_b32 s{sK}, 99, s{sK}
          s_mul_i32 s{sT+5}, s{sK}, 3641
          s_lshr_b32 s{sT+5}, s{sT+5}, 16
          s_mul_i32 s{sT+6}, s{sT+5}, 18
          s_sub_u32 s{sT+6}, s{sK}, s{sT+6}
          v_lshlrev_b32 v8, 2, v0""")
    s.rowsel(sT+2, sT+3)
    s(f"""s_mul_i32 s{sT+3}, s{sT+5}, 192
          s_add_u32 s{sT+2}, s{sT+2}, s{sT+3}
          s_mul_i32 s{sT+2}, s{sT+2}, 6912
          s_lshl_b32 s{sT+4}, s{sT+6}, 7
          s_add_u32 s{sT+2}, s{sT+2}, s{sT+4}
          s_lshl_b32 s{sT+3}, s{sT+3}, 1
          s_lshl_b32 s{sT+4}, s{sW}, 10
          s_add_u32 m0, s{sT+4}, {XA}
          s_lshl_b32 s{sT}, s{sU}, 17
          s_lshl_b32 s{sT+1}, s{sW}, 15
          s_add_u32 s{sT}, s{sT}, s{sT+1}""")
    for i in range(16): s(f'v_xor_b32 v{32+i}, {fsw(i)<<4}, v{vL16}')
    s(f"""s_waitcnt lgkmcnt(0)
          s_load_dword s{sE}, s[32:33], 0
          s_cmp_ge_u32 s{sK}, 54
          s_cbranch_scc1 L_noA""")
    s.srd(r4, 'wmod'); s.srd(r3, 'c')
    s(f'buffer_load_dword v28, v8, s[{r3}:{r3+3}], s{sT+3} offen')
    for kt in range(6):
        s.dma(9, r4, sT+2)
        if kt < 5: s(f's_add_u32 s{sT+2}, s{sT+2}, {32*6912}\ns_add_u32 m0, m0, 4096')
    s('L_noA:')
    s.srd(r1, 'ckv')
    s(f"""s_getpc_b64 s[{r2}:{r2+1}]
          L_pc:
          s_sub_u32 s{r2}, s{r2}, L_pc-{NAME}_kernel
          s_subb_u32 s{r2+1}, s{r2+1}, 0
          s_mov_b32 s{r2+2}, CODE_BYTES
          s_mov_b32 s{r2+3}, 0x20000
          s_lshl2_add_u32 s{sT+2}, s{sI}, s{sW}
          s_lshl_b32 s{sT+2}, s{sT+2}, 10
          s_mov_b32 m0, s{sT+1}
          buffer_load_dwordx4 v[240:243], v{vL16}, s[{r2}:{r2+3}], s{sT+2} offen""")
    def ckv(i):
        if i and i % 4 == 0:
            s(f's_add_u32 s{sT}, s{sT}, 4096\ns_add_u32 m0, m0, 4096')
        if P.xw and P.xw <= i < P.xn: s(f's_waitcnt vmcnt({P.xw-1})')
        s.dma(32+(i & 15), r1, sT, 'nt', (i & 3)*1024)
    for i in range(P.na): ckv(i)
    s(f"""s_cmp_ge_u32 s{sK}, 54
          s_cbranch_scc1 L_noA2
          s_mul_i32 s{sX}, s{sT+5}, 4608
          s_lshl2_add_u32 s{sT+6}, s{sT+6}, s{sW}
          s_lshl_b32 s{sT+6}, s{sT+6}, 6
          s_add_u32 s{sX}, s{sX}, s{sT+6}
          s_add_u32 s{sX}, s{sX}, {MODP}""")
    s.tr128(20, 22, f's{sW}', XA)
    s.tags()
    s(f"""v_lshlrev_b32 v21, 4, v{vGQ}
          v_add_u32 v22, {XS}, v21
          v_add_u32 v8, {XS}, v8
          s_waitcnt vmcnt({7+P.na})""")
    s.silu(28, 24)
    s(f"""ds_write_b32 v8, v28
          s_waitcnt vmcnt({1+P.na}) lgkmcnt(0)
          s_barrier""")
    for kt in range(6):
        for hh in range(2):
            s(f'ds_read_b64_tr_b16 {vr(64+4*kt+2*hh,2)}, v20 offset:{kt*4096+hh*2048}')
        s(f'ds_read_b128 {vr(88+4*kt,4)}, v22 offset:{kt*64}')
    for kt in range(6):
        s(f's_waitcnt lgkmcnt({15-3*kt})')
        s(f'{MF} v[24:27], {vr(64+4*kt,4)}, {vr(88+4*kt,4)}, {"v[24:27]" if kt else 0}')
    for r in range(4): s.tag32(24+r, 24+r)
    s.setexec(0x00010001, 0x00010001)
    s.wst(24, 4, 21, sX)
    s.fullexec()
    s.ts('x_a')
    s('L_noA2:')
    for i in range(P.na, 32): ckv(i)
    s.ts('x_issued')
    s(f's_cmp_lt_u32 s{sK}, 54\ns_cbranch_scc1 L_tg')
    s.tags()
    s('L_tg:')
    for r in (vFO, vFH, vGO): s(f'v_mov_b32 v{r}, 0')
    s.headq()
    s.srd(r2, 'wuv'); s.srd(r1, 'wo'); s.srd(r3, 'x'); s.srd(r4, 'out')
    s.fsw(8, vP, 9)
    s(f"""v_xor_b32 v8, v8, v{vGQ}
          v_lshlrev_b32 v8, 4, v8
          v_lshl_add_u32 v8, v{vP}, 10, v8
          s_mul_i32 s{sT+2}, s{sW}, {32768+256}
          v_add_u32 v12, s{sT+2}, v8
          v_lshrrev_b32 v10, 2, v{vL}""")
    for q in range(16): s(f'v_xor_b32 v{KA+q}, {((q&3)<<6)|((q>>2)<<8)}, v12')
    s.fsw(8, 10, 9)
    s(f"""v_bfe_u32 v9, v{vL}, 1, 1
          v_xor_b32 v8, v8, v9
          v_lshlrev_b32 v8, 4, v8
          v_lshl_add_u32 v8, v10, 10, v8
          v_and_b32 v9, 1, v{vL}
          v_lshl_add_u32 v8, v9, 3, v8
          s_lshl_b32 s{sT+2}, s{sW}, 8
          v_add_u32 v{VA}, s{sT+2}, v8""")
    for ct in range(1, 8): s(f'v_xor_b32 v{VA+ct}, {ct<<5}, v{VA}')
    for ct in range(8): s(f'v_add_u32 v{VA+8+ct}, 0x10000, v{VA+ct}')
    s.voff256(23, 8, 8192)
    s(f"""v_lshrrev_b32 v13, 2, v{vP}
          v_lshlrev_b32 v13, 8, v13
          v_lshl_add_u32 v13, v{vGQ}, 6, v13
          v_and_b32 v9, 3, v{vL}
          v_lshl_add_u32 v13, v9, 4, v13
          s_lshl_b32 s{sT+2}, s{sW}, 13
          s_add_u32 s{sT+4}, s{sT+2}, {QA}
          s_add_u32 s{sT+5}, s{sT+2}, {QA+4096}
          s_add_u32 s{sT+2}, s{sT+2}, {QS}
          v_add_u32 v14, s{sT+2}, v{vL16}
          v_xor_b32 v15, 0x2000, v14
          v_xor_b32 v16, 0x4000, v14
          v_xor_b32 v17, 0x6000, v14
          v_add_u32 v19, {PB}, v{vL16}
          s_lshl_b32 s{sT+2}, s{sW}, 10
          v_add_u32 v18, s{sT+2}, v19
          v_lshlrev_b32 v20, 4, v{vP}
          v_add_u32 v20, {MXL}, v20
          s_lshl_b32 s{sT+2}, s{sW}, 2
          v_add_u32 v12, s{sT+2}, v20
          v_lshlrev_b32 v21, 17, v{vP}
          v_lshl_add_u32 v21, v{vGQ}, 4, v21
          v_lshlrev_b32 v22, 10, v{vP}
          s_lshl_b32 s{sT+6}, s{sW}, 15
          s_lshl_b32 s{sT+2}, s{sU}, 8
          s_add_u32 s{sT+6}, s{sT+6}, s{sT+2}
          s_add_u32 s{sT+6}, s{sT+6}, {OP}
          s_add_u32 s{sN}, s{sT+6}, {16*131072}
          s_and_b32 s{sT+7}, s{sU}, 64
          s_lshl_b32 s{sT+7}, s{sT+7}, 3
          s_and_b32 s{sT+2}, s{sU}, 3
          s_lshl_b32 s{sT+2}, s{sT+2}, 7
          s_add_u32 s{sT+7}, s{sT+7}, s{sT+2}
          s_and_b32 s{sT+2}, s{sU}, 0x3c
          s_lshl1_add_u32 s{sT+7}, s{sT+2}, s{sT+7}
          s_lshl_b32 s{sT+2}, s{sW}, 14
          s_add_u32 s{sT+7}, s{sT+7}, s{sT+2}
          s_add_u32 s{sT+7}, s{sT+7}, {ML}
          s_and_b32 s{sK}, s{sE}, 0xffff
          s_mov_b32 s{sC}, {fb(128**-0.5*LOG2E)}
          v_mov_b32 v24, 0x3f803f80
          v_mov_b32 v25, v24
          v_mov_b32 v26, v24
          v_mov_b32 v27, v24
          s_lshl_b32 s{sT}, s{sQ}, 20
          s_lshl_b32 s{sT+1}, s{sW}, 18
          s_add_u32 s{sT}, s{sT}, s{sT+1}
          s_lshl_b32 s{sT+1}, s{sH}, 8
          s_add_u32 s{sT}, s{sT}, s{sT+1}
          s_lshl_b32 s{sT+1}, s{sW}, 13
          s_add_u32 m0, s{sT+1}, {XUV}
          s_waitcnt vmcnt(16)
          s_barrier""")
    for i in range(8):
        s.dma(23, r2, sT)
        if i < 7: s(f's_add_u32 s{sT}, s{sT}, {4*8192}\ns_add_u32 m0, m0, 1024')
    def kread(kt):
        for q in range(16): s(f'ds_read_b128 {ar((kt*16+q)*4,4)}, v{KA+q} offset:{kt*16384}')
    def vread(hh):
        for ks in range(4):
            for ct in range(8):
                s(f'ds_read_b64_tr_b16 {ar(128+(ct*4+ks)*4+2*hh,2)}, v{VA+ct+(8 if ks>=2 else 0)} offset:{((ks&1)*32+16*hh)*1024}')
    kread(0); vread(0)
    s('s_waitcnt vmcnt(8)\ns_barrier')
    s.ts('x_landed')
    kread(1); vread(1)
    s.voff128(23, 8, 1152, 8, 1)
    s.rowsel(sT, sT+1)
    s(f"""s_lshl_b32 s{sT+1}, s{sG}, 9
          s_add_u32 s{sT}, s{sT}, s{sT+1}
          s_mul_i32 s{sT}, s{sT}, 1152
          s_lshl_b32 s{sT+1}, s{sI}, 7
          s_add_u32 s{sT}, s{sT}, s{sT+1}
          v_mov_b32 v10, 0xff800000
          v_mov_b32 v11, v10
          s_waitcnt lgkmcnt(0)
          s_barrier
          ds_write_b64 v20, v[10:11]""")
    s.ts('x_ready')
    if P.gate:
        s('L_qg:\ns_mov_b64 exec, 0xf')
        s.wld(QO, 4, 13, sT+4, 0)
        s.spin()
        s('s_waitcnt vmcnt(0)')
        s.chk16(28, [(QO+i, i) for i in range(4)]); s.test(28, '0x10001'); s.again('L_qg')
        s.fullexec()
    lp = s.lab('qa')
    s(f'{lp}:')
    for j in range(4):
        for ht in range(2):
            s.wld(QO+(j*2+ht)*4, 4, 13, sT+4+(j >> 1), (j & 1)*2048+ht*1024)
    s.fullexec(); s.spin()
    s('s_waitcnt vmcnt(0)')
    def qk(q, kt, ht, src, first=False):
        d = vr(SV+(kt*2+ht)*4, 4)
        return f'{MF} {d}, {ar((kt*16+q)*4,4)}, {vr(src,4)}, {0 if first else d}'
    own = {ht: [qk(j, kt, ht, QO+(j*2+ht)*4, j == 0) for j in range(4) for kt in range(2)] for ht in range(2)}
    wr = [f'ds_write_b128 v14, {vr(QO+4*i,4)} offset:{i*1024}' for i in (0,2,4,6,1,3,5,7)]
    ck = s.cap(s.chk16, 28, [(QO+i, i & 3) for i in range(32)]) + s.cap(s.test, 28, '0x10001')
    L = [[wr[i]] + ck[4*i:4*i+4] for i in range(8)] + [ck[32:]]
    s.emit(slots(own[0], L))
    s.againq(lp)
    s("""s_waitcnt lgkmcnt(0)
         s_barrier""")
    s.ts('x_qa')
    rd = {ht: [f'ds_read_b128 {vr((Q1 if ht else Q0)+((jq-1)*4+j)*4,4)}, v{14+jq} offset:{(j*2+ht)*1024}' for jq in range(1,4) for j in range(4)] for ht in range(2)}
    s.emit(slots(own[1][:4], [rd[0][:6], rd[0][6:]]) if False else rd[0][:4] + slots(own[1][:4], fill(rd[0][4:], 3)))
    for i in range(12):
        s(f's_waitcnt lgkmcnt(11)')
        q = 4+i
        s(qk(q, 0, 0, Q0+4*i)); s(rd[1][i]); s(qk(q, 1, 0, Q0+4*i))
    MT = {0: 28, 1: 30}
    def X8(ht): return [SV+ht*4+r for r in range(4)] + [SV+8+ht*4+r for r in range(4)]
    def smax(ht):
        X = X8(ht)
        return [f'v_max3_f32 v8, v{X[0]}, v{X[1]}, v{X[2]}', f'v_max3_f32 v9, v{X[3]}, v{X[4]}, v{X[5]}',
                f'v_max3_f32 v8, v8, v{X[6]}, v{X[7]}', 'v_max_f32 v8, v8, v9', f'ds_max_f32 v20, v8 offset:{ht*4}']
    def sexp(ht):
        X = X8(ht); m = MT[ht]
        L = [f'v_mul_f32 v{m}, s{sC}, v{m}', f'v_ceil_f32 v{m}, v{m}']
        L += [f'v_fma_f32 v{x}, v{x}, s{sC}, -v{m}' for x in X]
        L += [f'v_exp_f32 v{x}, v{x}' for x in X]
        L += [f'v_cvt_pk_bf16_f32 v{PK+i}, v{X[2*i]}, v{X[2*i+1]}' for i in range(4)]
        return L
    BAR = ['s_waitcnt lgkmcnt(0)', 's_barrier']
    def prd(ht): return [f'ds_read_b128 {vr(QO+ht*16+ks*4,4)}, v19 offset:{ht*4096+ks*1024}' for ks in range(4)]
    def phase(ht, mf, extra, late):
        m = MT[ht]; n = len(mf)
        sm = smax(ht)
        L = [[], ['s_waitcnt lgkmcnt(8)'] if ht == 0 else [], sm[:2], sm[2:], [], [], BAR + [f'ds_read_b32 v{m}, v20 offset:{ht*4}'], extra[:2], extra[2:4], extra[4:6] + [f's_waitcnt lgkmcnt({min(len(extra),6)})']]
        L += fill(sexp(ht), P.sper)
        L[-1] = L[-1] + [f'ds_write_b128 v18, {vr(PK,4)} offset:{ht*4096}', f'{MF} {vr(SV+ht*4,4)}, v[24:27], {vr(PK,4)}, 0']
        L += [[f'v_cvt_i32_f32 v{m}, v{m}', f'v_lshl_or_b32 v{m}, v{m}, 16, s{sK}'], [f'ds_write_b32 v12, v{SV+ht*4} offset:{256+ht*256}']]
        L += late
        k = max(len(L) + 1, n - P.pcov)
        while len(L) < k: L.append([])
        L[-1] = L[-1] + BAR + prd(ht) + [f'ds_read_b128 {vr(LR+4*ht,4)}, v20 offset:{256+ht*256}']
        return slots(mf, L)
    def mlst(ht):
        l = s.lab('nml'); m = MT[ht]
        b = LR+4*ht
        s(f"""s_cmp_lg_u32 s{sW}, {ht}
              s_cbranch_scc1 {l}
              v_add_f32 v{b}, v{b}, v{b+1}
              v_add_f32 v{b+2}, v{b+2}, v{b+3}
              v_add_f32 v{b}, v{b}, v{b+2}
              s_mov_b64 exec, 0xffff""")
        s.tag32(m+1, b)
        s.wst(m, 2, 22, sT+7)
        s(f's_mov_b64 exec, -1\n{l}:')
    def pv(ht, ks, ct):
        d = vr((Q1 if ht else Q0)+ct*4, 4)
        return f'{MF} {d}, {ar(128+(ct*4+ks)*4,4)}, {vr(QO+ht*16+ks*4,4)}, {d if ks else 0}'
    def pvl(ht): return [pv(ht, ks, 2*d+c) for d in range(4) for ks in range(4) for c in range(2)]
    def opk(ht, d):
        O = (Q1 if ht else Q0) + 8*d; T = OT + 4*((ht*4+d) % 4)
        L = []
        for i in range(4): L += s.cap(s.packtag, T+i, O+2*i, O+2*i+1, i)
        return L + s.cap(s.wst, T, 4, 21, sN if ht else sT+6, d*64)
    mf1 = own[1][4:] + [qk(4+i, kt, 1, Q1+4*i) for i in range(12) for kt in range(2)]
    s.emit(phase(0, mf1, [], []))
    s.ts('x_qk')
    s('s_waitcnt lgkmcnt(0)')
    uva = s.cap(lambda: (s(f's_lshl_b32 s{sT+2}, s{sW}, 1'), s.tr256(10, 11, f's{sT+2}', XUV, 1024), s('v_xor_b32 v11, 32, v10')))
    pv0 = pvl(0)
    s.emit(phase(1, pv0, [], fill(opk(0, 0), 2)))
    s('s_waitcnt lgkmcnt(0)')
    pv1 = pvl(1)
    L = [s.cap(mlst, 0), s.cap(mlst, 1)] + fill(opk(0, 1) + opk(0, 2) + opk(0, 3) + opk(1, 0) + opk(1, 1), P.oper)
    while len(L) < 26: L.append([])
    L += fill(opk(1, 2), P.oper)
    s.emit(slots(pv1, L))
    s.emit(opk(1, 3))
    s.ts('x_o')
    s(f"""s_cmp_ge_u32 s{sI}, 9
          s_cbranch_scc1 L_nE
          s_lshl_b32 m0, s{sW}, 10""")
    for kt in range(16):
        s.dma(23, r1, sT, P.wofl)
        if kt < 15: s(f's_add_u32 s{sT}, s{sT}, {32*1152}\ns_add_u32 m0, m0, 4096')
    s(f"""s_lshl2_add_u32 s{sT+4}, s{sI}, s{sW}
          s_lshl_b32 s{sT+5}, s{sT+4}, 5
          s_lshl_b32 s{sT+6}, s{sT+4}, 6
          s_add_u32 s{sT+6}, s{sT+6}, {MOD2}
          v_lshlrev_b32 v23, 1, v{vP}
          v_lshlrev_b32 v22, 2, v{vP}
          v_add_u32 v21, 4608, v22
          buffer_load_ushort v26, v23, s[{r3}:{r3+3}], s{sT+5} offen""")
    s.wld(24, 1, 22, sT+6); s.wld(25, 1, 21, sT+6)
    s(f"""s_branch L_D
          L_nE:
          s_cmp_lt_u32 s{sI}, 14
          s_cbranch_scc1 L_D""")
    s.column(sU, 4, sT)
    s(f"""s_and_b32 s{sT}, s{sI}, 1
          s_lshl1_add_u32 s{sU}, s{sU}, s{sT}""")
    ffn_setup(s, 12)
    for k in range(P.xft): ffn_tile(s, k, sT)
    s(f"""L_D:
          s_lshl_b32 s{sT}, s{sH}, 10
          s_add_u32 s{sT}, s{sT}, {ML}
          s_and_b32 s{sT+1}, s{sW}, 1
          s_lshl_b32 s{sT+1}, s{sT+1}, 6
          s_and_b32 s{sT+2}, s{sW}, 2
          s_lshl_b32 s{sT+2}, s{sT+2}, 8
          s_add_u32 s{sT+1}, s{sT+1}, s{sT+2}
          v_lshlrev_b32 v8, 3, v{vL}
          v_xor_b32 v8, s{sT+1}, v8
          v_xor_b32 v9, 512, v8
          s_lshl2_add_u32 s{sT+2}, s{sH}, s{sQ}
          s_lshl2_add_u32 s{sT+2}, s{sT+2}, s{sW}
          s_lshl_b32 s{sT+2}, s{sT+2}, 13
          s_add_u32 s{sT+1}, s{sT+2}, {OP}
          s_add_u32 s{sT+3}, s{sT+2}, {OP+4096}""")
    s.wld(12, 2, 8, sT); s.wld(14, 2, 9, sT)
    def opl(i): s.wld(64+4*i, 4, vL16, sT+1+2*(i >> 2), (i & 3)*1024)
    for i in range(8): opl(i)
    s.emit(uva)
    for j in range(4):
        for c in range(2):
            for hh in range(2):
                s(f'ds_read_b64_tr_b16 {ar((j*2+c)*4+2*hh,2)}, v{10+c} offset:{(8*j+4*hh)*1024}')
    for i in range(8): s(f's_mov_b64 s[{sPM+2*i}:{sPM+2*i+1}], -1\nv_mov_b32 v{48+i}, 0')
    s(f"""s_mul_i32 s{sT+2}, s{sW}, 272
          s_add_u32 s{sT+2}, s{sT+2}, {DX}
          v_lshlrev_b32 v18, 4, v{vP}
          v_lshl_add_u32 v18, v{vGQ}, 2, v18
          v_add_u32 v18, s{sT+2}, v18
          v_and_b32 v19, 3, v{vP}
          v_mul_u32_u24 v19, 272, v19
          v_lshl_add_u32 v19, v{vGQ}, 4, v19
          v_add_u32 v19, {DX}, v19
          v_lshlrev_b32 v20, 1, v{vL}
          s_waitcnt vmcnt(8)
          s_branch L_mlb
          L_ml:""")
    s.wld(12, 2, 8, sT); s.wld(14, 2, 9, sT)
    s.spin()
    s(f"""s_waitcnt vmcnt(0)
          L_mlb:
          v_xor_b32 v16, s{sE}, v12
          v_xor_b32 v17, s{sE}, v13
          v_bitop3_b32 v16, v14, s{sE}, v16 bitop3:0xbe
          v_bitop3_b32 v17, v15, s{sE}, v17 bitop3:0xbe
          v_lshlrev_b32 v16, 16, v16
          v_lshl_or_b32 v16, v17, 24, v16
          v_cmp_ne_u32 vcc, 0, v16
          v_max_i32 v16, v12, v14
          s_cbranch_vccnz L_ml""")
    s.ts('d_ml')
    s.wave_red('v_max_i32', 16, 17)
    s("""v_sub_u32 v12, v12, v16
         v_sub_u32 v14, v14, v16
         v_ashrrev_i32 v12, 16, v12
         v_ashrrev_i32 v14, 16, v14
         v_add_u32 v12, 127, v12
         v_add_u32 v14, 127, v14
         v_max_i32 v12, 0, v12
         v_max_i32 v14, 0, v14
         v_lshlrev_b32 v17, 7, v12
         v_lshlrev_b32 v12, 23, v12
         v_lshlrev_b32 v14, 23, v14""")
    for i in range(8):
        s(f'v_mov_b32_dpp v{40+i}, v17 row_newbcast:{i} {DPP}\nv_mov_b32_dpp v{32+i}, v12 row_newbcast:{i} {DPP}')
    s("""v_mul_f32 v16, v12, v13
         v_fmac_f32 v16, v14, v15""")
    s.wave_red('v_add_f32', 16, 17)
    s(f"""v_rcp_f32 v16, v16
          s_cmp_ge_u32 s{sI}, 9
          s_cbranch_scc1 L_opb""")
    s.tr128(10, 11, f's{sW}', 0)
    s('v_add_u32 v11, 0x8000, v10\ns_barrier')
    for kt in range(16):
        for hh in range(2):
            off = kt*4096+hh*2048
            s(f'ds_read_b64_tr_b16 {ar(32+4*kt+2*hh,2)}, v{10 if off<0x8000 else 11} offset:{off if off<0x8000 else off-0x8000}')
    s(f"""L_opb:
          s_mov_b64 s[{sM}:{sM+1}], 0""")
    for i in range(8):
        pm = f's[{sPM+2*i}:{sPM+2*i+1}]'
        s(f"""s_mov_b64 exec, {pm}
              s_cbranch_execz L_ops{i}
              s_waitcnt vmcnt({7-i})""")
        s.chk16(17, [(64+4*i+d, d) for d in range(4)]); s.test(17, '0x10001')
        s(f"""s_wqm_b64 {pm}, vcc
              s_andn2_b64 exec, exec, {pm}
              s_or_b64 s[{sM}:{sM+1}], s[{sM}:{sM+1}], vcc""")
        for d in range(4):
            s(f'v_dot2c_f32_bf16 v{48+2*d}, v{64+4*i+d}, v{40+i}')
            s(f'v_dot2c_f32_bf16 v{49+2*d}, v{64+4*i+d}, v{32+i}')
        s(f'L_ops{i}:')
    s(f"""s_cmp_lg_u64 s[{sM}:{sM+1}], 0
          s_cbranch_scc1 L_opr
          s_mov_b64 exec, -1""")
    s.ts('d_op')
    for e in range(4): s(f'v_permlane32_swap_b32 v{48+e}, v{52+e}')
    for e in range(4): s(f'v_add_f32 v{48+e}, v{48+e}, v{52+e}')
    for e in range(2): s(f'v_permlane16_swap_b32 v{48+e}, v{50+e}')
    for e in range(2): s(f'v_add_f32 v{48+e}, v{48+e}, v{50+e}')
    s(f"""v_cvt_pk_bf16_f32 v48, v48, v49
          ds_write_b32 v18, v48
          s_add_u32 s{sT+2}, s{sX}, {CPL}
          s_add_u32 s{sT+3}, s{sX}, {CPG}
          s_mov_b32 s{sM}, 0xffff0000
          s_mov_b32 s{sM+1}, 0xffff0000
          s_waitcnt lgkmcnt(0)
          s_barrier""")
    for j in range(4): s(f'ds_read_b128 {vr(32+4*j,4)}, v19 offset:{j*64}')
    for j in range(4):
        s(f's_waitcnt lgkmcnt({3-j})')
        for c in range(2):
            d = vr(48+4*c, 4)
            s(f'{MF} {d}, {vr(32+4*j,4)}, {ar((j*2+c)*4,4)}, {d if j else 0}')
    s(f"""v_add_f32 v48, v48, v49
          v_add_f32 v50, v50, v51
          v_add_f32 v52, v52, v53
          v_add_f32 v54, v54, v55
          v_add_f32 v48, v48, v50
          v_add_f32 v52, v52, v54
          v_cndmask_b32 v48, v48, v52, s[{sM}:{sM+1}]
          v_mul_f32 v48, v48, v16""")
    s.gather8(12, 48)
    s('s_mov_b64 exec, 0x01010101')
    s.wst(12, 4, 20, sT+2, 0, '')
    s.ts('d_cp')
    s(f"""s_cmp_ge_u32 s{sI}, 9
          s_cbranch_scc1 L_nE2
          s_mov_b64 exec, -1""")
    s(f"""v_lshlrev_b32 v8, 6, v{vP}
          v_lshl_add_u32 v8, v{vGQ}, 4, v8
          s_lshl_b32 s{sT}, s{sG}, 12
          s_add_u32 s{sT}, s{sT}, {CPL}""")
    def cpl():
        for st in range(4): s.wld(32+4*st, 4, 8, sT, st*1024)
    cpl()
    s(f"""s_mov_b32 s{sN}, 0
          s_lshl_b32 s{sT+5}, s{sT+4}, 9
          s_lshl_b32 s{sT+1}, s{sG}, 6
          s_add_u32 s{sT+5}, s{sT+5}, s{sT+1}
          s_add_u32 s{sT+5}, s{sT+5}, {TR}
          s_mul_i32 s{sT+1}, s{sG}, 2304
          s_lshl_b32 s{sT+4}, s{sT+4}, 6
          s_add_u32 s{sT+4}, s{sT+4}, s{sT+1}
          s_add_u32 s{sT+4}, s{sT+4}, {T32}
          s_cmp_eq_u32 s{sG}, 0
          s_cselect_b32 s{sT+1}, -1, 0
          s_mov_b32 s{sPM}, 0
          s_mov_b32 s{sPM+1}, -1
          L_m2b:""")
    s.chk32(9, [24, 25]); s.test(9, '0xff')
    s(f"""s_cbranch_vccnz L_m2
          v_lshlrev_b32 v26, 16, v26
          v_and_b32 v26, s{sT+1}, v26
          v_and_b32 v24, 0xffff0000, v24
          v_and_b32 v25, 0xffff0000, v25
          v_cndmask_b32 v25, 1.0, v25, s[{sM}:{sM+1}]
          s_branch L_cpb
          L_cp:""")
    cpl()
    s.spin()
    s(f"""s_add_u32 s{sN}, s{sN}, 1
          s_cmp_eq_u32 s{sN}, {NLOC}
          s_cbranch_scc1 L_cpg
          L_cpb:
          s_waitcnt vmcnt(0)""")
    mf = [f'{MF} {vr(48+4*hd,4)}, {vr(32+4*st,4)}, {ar(32+(hd*4+st)*4,4)}, {vr(48+4*hd,4) if st else 0}' for hd in range(4) for st in range(4)]
    ck = s.cap(s.chk16, 9, [(32+i, i & 3) for i in range(16)]) + s.cap(s.test, 9, '0x10001')
    s.emit(slots(mf[:6], fill(ck, 3)))
    s.again('L_cp')
    s.ts('e_cp')
    def sum4(b): return [f'v_add_f32 v{b}, v{b}, v{b+1}', f'v_add_f32 v{b+2}, v{b+2}, v{b+3}', f'v_add_f32 v{b}, v{b}, v{b+2}']
    L = [sum4(48)[:2], sum4(48)[2:], [], [], sum4(52)[:2], sum4(52)[2:], [f'v_cndmask_b32 v48, v48, v52, s[{sM}:{sM+1}]'], [], sum4(56)[:2], sum4(56)[2:]]
    s.emit(slots(mf[6:], L))
    s.emit(sum4(60))
    s(f"""v_cndmask_b32 v56, v56, v60, s[{sM}:{sM+1}]
          v_cndmask_b32 v48, v48, v56, s[{sPM}:{sPM+1}]""")
    s.xgq('v_add_f32', 48, 49)
    s(f"""v_fma_f32 v48, v48, v24, v26
          v_mul_f32 v49, v48, v25""")
    s.gather8(52, 49)
    s.tag32(48, 48)
    s('s_mov_b64 exec, 0x01010101')
    s.wst(52, 4, 20, sT+5)
    s.wst(12, 4, 20, sT+3)
    s('s_mov_b64 exec, 0xffff')
    s.wst(48, 1, 22, sT+4)
    s.ts('e_tr')
    s('s_branch L_done')
    s('L_opr:')
    for i in range(8):
        s(f"""s_mov_b64 exec, s[{sPM+2*i}:{sPM+2*i+1}]
              s_cbranch_execz L_opn{i}""")
        opl(i)
        s(f'L_opn{i}:')
    s.fullexec(); s.spin()
    s('s_waitcnt vmcnt(0)\ns_branch L_opb')
    s('L_m2:')
    s.wld(24, 1, 22, sT+6); s.wld(25, 1, 21, sT+6)
    s.spin()
    s('s_waitcnt vmcnt(0)\ns_branch L_m2b')
    s(f"""L_cpg:
          s_mov_b64 exec, 0x01010101""")
    s.wst(12, 4, 20, sT+3)
    s(f"""s_mov_b64 exec, -1
          s_add_u32 s{sT}, s{sT}, {CPG-CPL}
          s_branch L_cpb""")
    s('L_nE2:')
    s.wst(12, 4, 20, sT+3)
    s(f"""s_mov_b64 exec, -1
          s_cmp_ge_u32 s{sI}, 14
          s_cbranch_scc1 L_ft{P.xft}
          s_sub_u32 s{sU}, s{sI}, 9
          s_lshl3_add_u32 s{sU}, s{sU}, s{sG}
          s_cmp_ge_u32 s{sU}, 36
          s_cbranch_scc1 L_done
          s_cmp_lg_u32 s{sW}, 0
          s_cbranch_scc1 L_done""")
    s(f"""s_mul_i32 s{sT}, s{sU}, 7282
          s_lshr_b32 s{sT}, s{sT}, 16
          s_mul_i32 s{sT+1}, s{sT}, 9
          s_sub_u32 s{sT+1}, s{sU}, s{sT+1}
          s_mul_i32 s{sT}, s{sT}, 144
          s_lshr_b32 s{sT+2}, s{sT+1}, 2
          s_lshl_b32 s{sT+2}, s{sT+2}, 6
          s_add_u32 s{sT}, s{sT}, s{sT+2}
          s_and_b32 s{sT+2}, s{sT+1}, 3
          s_lshl2_add_u32 s{sT}, s{sT+2}, s{sT}
          s_cmp_eq_u32 s{sT+1}, 8
          s_cselect_b32 s{sT+2}, 4, 1
          s_cselect_b32 s{sT+3}, 1, 16
          v_and_b32 v8, 3, v{vL}
          v_mul_u32_u24 v9, s{sT+2}, v8
          v_mul_u32_u24 v8, s{sT+3}, v{vGQ}
          v_add3_u32 v9, v9, v8, s{sT}
          v_lshlrev_b32 v10, 2, v9
          v_lshlrev_b32 v9, 1, v9
          v_lshrrev_b32 v11, 2, v{vP}
          v_mul_u32_u24 v11, 2304, v11
          v_add_u32 v11, v11, v10
          s_mov_b32 s{sT+4}, {T32}
          s_mov_b32 s{sT+5}, {T32+4*2304}
          s_mov_b32 s{sT+6}, {MOD2+3*2304}
          s_mul_i32 s{sT}, s{sU}, 9216
          s_add_u32 s{sT}, s{sT}, {YP}
          s_add_u32 s{sT+1}, s{sT}, 4096
          s_add_u32 s{sT+2}, s{sT}, 8192
          L_t32:""")
    s.wld(24, 1, 11, sT+4); s.wld(25, 1, 11, sT+5); s.wld(26, 1, 10, sT+6)
    s.spin()
    s('s_waitcnt vmcnt(0)')
    s.chk32(15, [24, 25, 26]); s.test(15, '0xff'); s.again('L_t32')
    s(f"""v_add_f32 v24, v24, v25
          v_add_f32_dpp v24, v24, v24 row_ror:4 {DPP}
          v_add_f32_dpp v24, v24, v24 row_ror:8 {DPP}
          v_and_b32 v26, 0xffff0000, v26""")
    s.bfr(24, 24)
    s('L_yp:')
    for i in range(9): s.wld(64+4*i, 4, vL16, sT+(i >> 2), (i & 3)*1024)
    s.fullexec(); s.spin()
    s('s_waitcnt vmcnt(0)')
    s.chk32(15, [64+4*i for i in range(9)]); s.test(15, '0xff'); s.againq('L_yp')
    s.ts('z_yp')
    for a, b in ((0,1),(2,3),(4,5),(6,7),(0,8),(2,4),(0,6),(0,2)):
        for h in range(2): s(f'v_pk_add_f32 {vr(64+4*a+2*h,2)}, {vr(64+4*a+2*h,2)}, {vr(64+4*b+2*h,2)}')
    s(f"""v_permlane32_swap_b32 v64, v66
          v_permlane32_swap_b32 v65, v67
          v_add_f32 v64, v64, v66
          v_add_f32 v65, v65, v67
          v_permlane16_swap_b32 v64, v65
          v_add_f32 v64, v64, v65
          v_add_f32_dpp v64, v64, v64 row_ror:4 {DPP}
          v_add_f32_dpp v64, v64, v64 row_ror:8 {DPP}""")
    s.bfr(64, 64)
    s('v_mul_f32 v64, v64, v26')
    s.bfr(64, 64)
    s(f"""v_add_f32 v64, v64, v24
          v_cvt_pk_bf16_f32 v64, v64, v64""")
    s.setexec(0x000f000f, 0x000f000f)
    s(f"""buffer_store_short v64, v9, s[{r4}:{r4+3}], 0 offen
          s_cmp_lg_u32 s{sU}, 0
          s_cbranch_scc1 L_done
          s_mov_b64 exec, 1
          v_mov_b32 v8, 0
          v_mov_b32 v9, s{sE}
          buffer_store_dword v9, v8, s[{rWS}:{rWS+3}], 0 offen sc1
          s_branch L_done""")
```

```python
from gen3a import *
from gen3x import *

Y_WQ=0; Y_WUK=41472; Y_H=153600
def role_y(s):
    P = s.P
    s('L_Y:')
    s.voff256(18, 19, 8192)
    s.headq()
    s(f"""s_mul_i32 s{sT}, s{sQ}, {144*8192}
          s_lshl_b32 s{sT+1}, s{sH}, 8
          s_add_u32 s{sT}, s{sT}, s{sT+1}
          s_lshl_b32 s{sT+1}, s{sW}, 18
          s_add_u32 s{sT+1}, s{sT+1}, s{sT}
          s_mul_i32 s{sT+2}, s{sW}, {8*1152}
          v_lshlrev_b32 v20, 2, v{vL}
          v_min_u32 v9, 35, v{vL}
          s_mul_i32 s{sT+4}, s{sW}, 36
          v_add_u32 v9, s{sT+4}, v9
          s_mul_i32 s{sT+4}, s{sQ}, 144
          v_add_u32 v10, s{sT+4}, v9
          v_lshlrev_b32 v11, 1, v10
          s_waitcnt lgkmcnt(0)
          s_load_dword s{sE}, s[32:33], 0""")
    s.srd(r1, 'wq'); s.srd(r3, 'x')
    def wq(i):
        if i < 8:
            s(f"""s_add_u32 s{sT+3}, s{sT+1}, {(8*(i&3)+4*(i>>2))*8192}
                  s_add_u32 m0, s{sT+2}, {Y_WQ+i*1152}""")
        else:
            s(f"""s_lshl_b32 s{sT+3}, s{sW}, 15
                  s_add_u32 s{sT+3}, s{sT+3}, s{sT}
                  s_add_u32 s{sT+3}, s{sT+3}, {128*8192}
                  s_mul_i32 s{sT+4}, s{sW}, 1152
                  s_add_u32 m0, s{sT+4}, {Y_WQ+32*1152}""")
        s.dma(18, r1, sT+3)
    wq(0)
    s(f"""buffer_load_dwordx4 v[12:15], v{vL16}, s[{r3}:{r3+3}], 0 offen
          buffer_load_dword v16, v20, s[{r3}:{r3+3}], 0 offen offset:1024
          buffer_load_ushort v17, v11, s[{r3}:{r3+3}], 0 offen""")
    for i in range(1, 9): wq(i)
    s.srd(r2, 'wuk')
    s(f"""s_lshl_b32 s{sT}, s{sI}, 18
          s_lshl_b32 s{sT+1}, s{sW}, 16
          s_add_u32 s{sT}, s{sT}, s{sT+1}
          s_lshl_b32 s{sT+1}, s{sG}, 10
          s_add_u32 s{sT}, s{sT}, s{sT+1}
          s_mul_i32 s{sT+2}, s{sW}, {8*1040}""")
    for i in range(8):
        s(f"""s_add_u32 s{sT+3}, s{sT}, {i*8192}
              s_add_u32 m0, s{sT+2}, {Y_WUK+i*1040}""")
        s.dma(vL16, r2, sT+3)
    s.tags()
    s(f"""v_lshlrev_b32 v10, 2, v10
          s_mov_b32 s{sT+5}, {MODP}
          s_mov_b32 s{sT+6}, {MODP+4608}
          s_mov_b32 s{sT+7}, {MODP+9216}""")
    def mload():
        for kp in range(3):
            s.wld(24+kp, 1, 10, sT+5+kp); s.wld(27+kp, 1, 10, sT+5+kp, 2304)
    s('s_waitcnt vmcnt(16)')
    s('v_mov_b32 v20, 0\nv_mov_b32 v21, 0')
    for q in range(5):
        s(f"""v_lshlrev_b32 v22, 16, v{12+q}
              v_and_b32 v23, 0xffff0000, v{12+q}
              v_add_f32 v20, v20, v22
              v_fmac_f32 v21, v22, v22
              v_add_f32 v20, v20, v23
              v_fmac_f32 v21, v23, v23""")
    s.wave_red('v_add_f32', 20, 22); s.wave_red('v_add_f32', 21, 22)
    s(f"""v_mul_f32 v20, {fb(1/576)}, v20
          v_mul_f32 v21, {fb(1/576)}, v21
          v_fma_f32 v21, -v20, v20, v21""")
    s.bfr(20, 20); s.bfr(21, 21)
    s(f'v_add_f32 v21, {fb(1e-5)}, v21'); s.bfr(21, 21)
    s('v_sqrt_f32 v21, v21'); s.bfr(21, 21)
    s("""v_rcp_f32 v21, v21
         v_lshlrev_b32 v17, 16, v17
         v_sub_f32 v17, v17, v20""")
    s.bfr(17, 17)
    s('v_mul_f32 v17, v17, v21'); s.bfr(17, 17)
    mload()
    s(f's_lshl_b32 s{sT}, s{sW}, 1')
    s.tr256(20, 22, f's{sT}', Y_WQ)
    s(f"""v_xor_b32 v21, 32, v20
          v_lshlrev_b32 v9, 1, v9
          v_add_u32 v9, {Y_H}, v9
          v_lshlrev_b32 v11, 4, v{vGQ}
          v_add_u32 v18, {Y_H}, v11
          v_lshlrev_b32 v19, 3, v{vGQ}
          v_lshl_add_u32 v8, v{vP}, 6, v11
          v_and_b32 v22, 7, v{vP}
          v_mul_u32_u24 v22, 1040, v22
          v_add_u32 v22, v22, v19
          v_lshrrev_b32 v23, 3, v{vP}
          v_lshl_add_u32 v22, v23, 8, v22
          s_add_u32 s{sT+2}, s{sT+2}, {Y_WUK}
          v_add_u32 v22, s{sT+2}, v22
          v_add_u32 v19, {Y_H+256}, v19
          s_lshl_b32 s{sT}, s{sG}, 12
          s_add_u32 s{sT}, s{sT}, {QPL}
          s_add_u32 s{sT+1}, s{sX}, {QPL}
          s_add_u32 s{sT+2}, s{sX}, {QPG}
          s_lshl3_add_u32 s{sT+3}, s{sI}, s{sG}
          s_lshl2_add_u32 s{sT+3}, s{sT+3}, s{sW}
          s_lshl_b32 s{sT+3}, s{sT+3}, 6
          s_add_u32 s{sT+3}, s{sT+3}, {QA}
          s_mov_b32 s{sN}, 0
          s_mov_b32 s{sM}, 0
          s_mov_b32 s{sM+1}, -1
          s_waitcnt vmcnt(14)
          s_barrier""")
    s.ts('y_wq')
    for c in range(2):
        for kt in range(4):
            for hh in range(2):
                s(f'ds_read_b64_tr_b16 {ar(c*20+kt*4+2*hh,2)}, v{20+c} offset:{(8*kt+4*hh)*1152}')
        s(f'ds_read_b64_tr_b16 {ar(c*20+16,2)}, v{20+c} offset:{32*1152}')
    s('s_waitcnt vmcnt(6)')
    for hp in range(2):
        for st in range(4):
            o = (hp*512+st*64)//8
            s(f'ds_read2_b64 {ar(64+(hp*4+st)*4,4)}, v22 offset0:{o} offset1:{o+4}')
    s.ts('y_wuk')
    s('s_branch L_mb\nL_mp:')
    mload()
    s.spin()
    s('L_mb:\ns_waitcnt vmcnt(0)')
    s.chk32(23, list(range(24, 30))); s.test(23, '0xff')
    s("""v_add_f32 v30, v24, v25
         v_add_f32 v31, v27, v28""")
    s.again('L_mp')
    s.ts('y_mod')
    s("""v_add_f32 v31, v31, v29
         v_add_f32 v30, v30, v26
         v_cvt_pk_bf16_f32 v30, v30, v31
         v_and_b32 v31, 0xffff0000, v30
         v_add_f32 v31, 1.0, v31
         v_lshlrev_b32 v30, 16, v30""")
    s.bfr(31, 31)
    s('v_mul_f32 v31, v31, v17'); s.bfr(31, 31)
    s("""v_add_f32 v31, v31, v30
         v_cvt_pk_bf16_f32 v31, v31, v31
         ds_write_b16 v9, v31
         s_waitcnt lgkmcnt(0)
         s_barrier""")
    for kt in range(4): s(f'ds_read_b128 {vr(32+4*kt,4)}, v18 offset:{kt*64}')
    s('ds_read_b64 v[48:49], v19')
    for kt in range(4):
        s(f's_waitcnt lgkmcnt({4-kt})')
        for c in range(2):
            d = vr(52+4*c, 4)
            s(f'{MF} {d}, {ar(c*20+kt*4,4)}, {vr(32+4*kt,4)}, {d if kt else 0}')
    s('s_waitcnt lgkmcnt(0)')
    for c in range(2):
        d = vr(52+4*c, 4)
        s(f'{MH} {d}, {ar(c*20+16,2)}, v[48:49], {d}')
    for d in range(4): s.packtag(12+d, 52+2*d, 53+2*d, d)
    s.setexec(0x10001, 0x10001)
    s.wst(12, 4, 11, sT+1, 0, '')
    s.fullexec()
    s.ts('y_qp')
    s('L_qp:')
    for st in range(4): s.wld(32+4*st, 4, 8, sT, st*1024)
    s.spin()
    s(f"""s_add_u32 s{sN}, s{sN}, 1
          s_cmp_eq_u32 s{sN}, {NLOC}
          s_cbranch_scc1 L_qpg
          L_qpb:
          s_waitcnt vmcnt(0)""")
    mf = [f'{MF} {vr(48+4*hp,4)}, {vr(32+4*st,4)}, {ar(64+(hp*4+st)*4,4)}, {vr(48+4*hp,4) if st else 0}' for hp in range(2) for st in range(4)]
    ck = s.cap(s.chk16, 23, [(32+i, i & 3) for i in range(16)]) + s.cap(s.test, 23, '0x10001')
    ad = ['v_add_f32 v48, v48, v49', 'v_add_f32 v50, v50, v51', 'v_add_f32 v48, v48, v50']
    s.emit(slots(mf, fill(ck[:16], 2)) + ck[16:] + ad)
    s.again('L_qp')
    s.ts('y_qpok')
    s(f"""v_add_f32 v52, v52, v53
          v_add_f32 v54, v54, v55
          v_add_f32 v52, v52, v54
          v_cndmask_b32 v48, v48, v52, s[{sM}:{sM+1}]""")
    s.gather8(24, 48)
    s.setexec(0x01000001, 0x01000001)
    s.wst(24, 4, 11, sT+3)
    s.setexec(0x10001, 0x10001)
    s.wst(12, 4, 11, sT+2)
    s.fullexec()
    s.ts('y_qa')
    s(f"""s_lshr_b32 s{sT+1}, s{sI}, 1
          s_cmp_ge_u32 s{sT+1}, 4
          s_addc_u32 s{sT+1}, s{sT+1}, 0""")
    s.column(sU, f's{sT+1}', sT)
    s(f"""s_and_b32 s{sT}, s{sI}, 1
          s_lshl1_add_u32 s{sU}, s{sU}, s{sT}""")
    if P.ybar: s('s_barrier')
    s(f"""s_cmp_ge_u32 s{sI}, {7 if P.pf else 99}
          s_cbranch_scc1 L_pf
          s_sub_u32 s{sK}, s{sI}, 2
          s_lshl3_add_u32 s{sK}, s{sK}, s{sG}
          s_cmp_lt_u32 s{sK}, 36
          s_cbranch_scc1 L_a2""")
    ffn_setup(s, 8)
    s('s_branch L_ft0')
    s(f"""L_qpg:""")
    s.setexec(0x10001, 0x10001)
    s.wst(12, 4, 11, sT+2)
    s(f"""s_mov_b64 exec, -1
          s_add_u32 s{sT}, s{sT}, {QPG-QPL}
          s_branch L_qpb""")
    s('L_pf:')
    s.srd(r4, 'wo')
    s(f"""s_sub_u32 s{sK}, s{sI}, 7
          s_mul_i32 s{sT}, s{sG}, {512*1152}
          s_lshl_b32 s{sT+1}, s{sK}, 16
          s_add_u32 s{sT}, s{sT}, s{sT+1}
          s_add_u32 s{sT+1}, s{sT}, 32768
          v_lshlrev_b32 v12, 7, v0
          buffer_load_dword v240, v12, s[{r4}:{r4+3}], s{sT} offen {P.pffl}
          buffer_load_dword v241, v12, s[{r4}:{r4+3}], s{sT+1} offen {P.pffl}""")
    ffn_setup(s, 8)
    s.column(sT+1, 4, sT)
    s(f"""s_lshl2_add_u32 s{sK}, s{sK}, s{sW}
          s_mul_i32 s{sT+2}, s{sK}, {16*9216}
          s_lshl_b32 s{sT}, s{sT+1}, 7
          s_add_u32 s{sT+2}, s{sT+2}, s{sT}
          s_mul_i32 s{sT+3}, s{sT+1}, {64*1152}
          s_lshl_b32 s{sT}, s{sK}, 11
          s_add_u32 s{sT+3}, s{sT+3}, s{sT}
          v_mul_u32_u24 v12, 9216, v{vL}
          v_lshlrev_b32 v13, 7, v{vL}
          s_mov_b64 exec, 0xffff
          buffer_load_dword v242, v12, s[{r1}:{r1+3}], s{sT+2} offen {P.pffl}
          buffer_load_dword v243, v12, s[{r2}:{r2+3}], s{sT+2} offen {P.pffl}
          buffer_load_dword v240, v13, s[{r3}:{r3+3}], s{sT+3} offen {P.pffl}
          s_mov_b64 exec, -1
          s_branch L_ft0""")
    s('L_a2:')
    s.srd(r4, 'wmod'); s.srd(r2, 'c')
    s(f"""v_lshlrev_b32 v8, 2, v0
          buffer_load_dword v16, v8, s[{r2}:{r2+3}], 0 offen
          buffer_load_dword v17, v8, s[{r2}:{r2+3}], 0 offen offset:1024""")
    s.voff128(9, 10, 6912, 8, 1)
    s.rowsel(sT, sT+1)
    s(f"""s_mul_i32 s{sT}, s{sT}, 6912
          s_lshl_b32 s{sT+1}, s{sK}, 7
          s_add_u32 s{sT}, s{sT}, s{sT+1}
          s_add_u32 s{sT}, s{sT}, 2304
          s_lshl_b32 m0, s{sW}, 10
          s_add_u32 m0, m0, {A2B}
          s_mov_b32 s{sT+2}, 0
          L_a2l:""")
    s.dma(9, r4, sT)
    s(f"""s_add_u32 s{sT}, s{sT}, {32*6912}
          s_add_u32 m0, m0, 4096
          s_add_u32 s{sT+2}, s{sT+2}, 1
          s_cmp_lt_u32 s{sT+2}, 18
          s_cbranch_scc1 L_a2l""")
    ffn_setup(s, 12)
    for k in range(P.yft): ffn_tile(s, k, sT)
    nf = 3*P.yft
    s(f's_waitcnt vmcnt({18+nf})')
    s.silu(16, 10); s.silu(17, 10)
    s(f"""v_add_u32 v8, {A2S}, v8
          ds_write_b32 v8, v16
          ds_write_b32 v8, v17 offset:1024""")
    s.tr128(20, 22, f's{sW}', A2B)
    s(f"""v_add_u32 v21, 0x8000, v20
          v_lshlrev_b32 v23, 4, v{vGQ}
          v_add_u32 v22, {A2S}, v23
          s_waitcnt vmcnt({nf}) lgkmcnt(0)
          s_barrier""")
    for kt in range(18):
        for hh in range(2):
            off = kt*4096+hh*2048
            s(f'ds_read_b64_tr_b16 {ar(128+4*kt+2*hh,2)}, v{20 if off<0x8000 else 21} offset:{off if off<0x8000 else off-0x8000}')
        s(f'ds_read_b128 {vr(64+4*kt,4)}, v22 offset:{kt*64}')
    s(f"""s_sub_u32 s{sT}, s{sK}, 18
          s_cmp_lt_u32 s{sT}, 9
          s_cselect_b32 s{sT+2}, 1.0, 0
          s_lshl2_add_u32 s{sT}, s{sK}, s{sW}
          s_lshl_b32 s{sT}, s{sT}, 6
          s_add_u32 s{sT}, s{sT}, {MOD2}
          s_waitcnt lgkmcnt(0)
          s_barrier""")
    for kt in range(18):
        s(f'{MF} v[12:15], {ar(128+4*kt,4)}, {vr(64+4*kt,4)}, {"v[12:15]" if kt else 0}')
    for r in range(4):
        s.bfr(12+r, 12+r); s(f'v_add_f32 v{12+r}, s{sT+2}, v{12+r}')
        s.bfr(12+r, 12+r); s(f'v_or_b32 v{12+r}, s{sT8}, v{12+r}')
    s.setexec(0x10001, 0x10001)
    s.wst(12, 4, 23, sT)
    s.fullexec()
    s.ts('y_a2')
    s(f's_branch L_ft{P.yft}')

TS_A = dict(start=0, x_a=1, x_issued=2, x_landed=3, x_ready=4, x_qa=5, x_qk=6, x_o=7, d_ml=8,
            y_wq=1, y_wuk=2, y_mod=3, y_qp=4, y_qpok=5, y_qa=6, y_a2=7)
TS_B = dict(start=0, x_o=1, d_ml=2, d_op=3, d_cp=4, e_cp=5, e_tr=6, z_yp=5,
            y_qa=1, y_a2=2, f_data=3, f_g=4, f_ready=6, f_tr=7, f_yp=8)

def build(P):
    s = G(P)
    prologue(s)
    role_x(s)
    role_y(s)
    ffn_compute(s)
    epilogue(s)
    body = s.finalize(verbose=True)
    hdr = open('cdna_kernels/'+NAME+'.s.ref').read().split('\n')
    head = [l for l in hdr[:17]]
    txt = '\n'.join(head) + f"""
; @launch grid=(256,1,1) block=(256,1,1) lds=163840
.amdgcn_target "amdgcn-amd-amdhsa--gfx950"
.text
.globl {NAME}_kernel
.p2align 8
.type {NAME}_kernel,@function
{NAME}_kernel:
""" + body + f""".section .rodata,"a"
.p2align 6
.amdhsa_kernel {NAME}_kernel
  .amdhsa_next_free_vgpr 512
  .amdhsa_next_free_sgpr 102
  .amdhsa_accum_offset 256
  .amdhsa_group_segment_fixed_size 0
  .amdhsa_kernarg_size 120
  .amdhsa_user_sgpr_count 2
  .amdhsa_user_sgpr_kernarg_segment_ptr 1
  .amdhsa_system_sgpr_workgroup_id_x 1
.end_amdhsa_kernel
"""
    return txt

def code_size(txt):
    import subprocess
    open('_g.s', 'w').write(txt.replace('CODE_BYTES', '0x12345'))
    subprocess.check_call(['clang', '-x', 'assembler', '-target', 'amdgcn-amd-amdhsa', '-mcpu=gfx950', '-c', '_g.s', '-o', '_g.o'])
    out = subprocess.check_output(['llvm-objdump', '-h', '_g.o']).decode()
    for l in out.split('\n'):
        f = l.split()
        if len(f) > 2 and f[1] == '.text': return int(f[2], 16)

if __name__ == '__main__':
    ap = argparse.ArgumentParser()
    ap.add_argument('out'); ap.add_argument('--diag', default='')
    for k, v in dict(xw=0, xn=0, na=4, sper=3, pcov=4, oper=3, xft=6, yft=2, phase=0, gate=0, ybar=1, pf=1).items(): ap.add_argument('--'+k, type=int, default=v)
    ap.add_argument('--tsop', default='s_memrealtime'); ap.add_argument('--ffl', default='nt'); ap.add_argument('--ffl2', default='nt'); ap.add_argument('--wofl', default='nt'); ap.add_argument('--pffl', default='')
    P = ap.parse_args()
    P.tsmap = {'': {}, 'a': TS_A, 'b': TS_B}[P.diag]
    txt = build(P)
    n = code_size(txt)
    print('code bytes', n)
    txt = txt.replace('CODE_BYTES', str(n))
    open(P.out, 'w').write(txt)
```

```python
import sys, argparse, struct
from asmlib import NAME, SIZES
from asmgen import Asm, vr, ar, sr

MODP=0x1000; QPL=0x8000; QA=0x10000; ML=0x18000; CPL=0x20000; QPG=0x28000; CPG=0x30000; MOD2=0x38000; TR=0x44000; T32=0x49000
YP=0x50000; ZXL=0xA8000; ZXG=0x600000; OP=0x100000; DBGT=0x500000; WS_USED=0x680000
PTR = dict(x=4, ckv=6, wq=8, wuk=10, wuv=12, wo=14, bx=16, wg=18, wu=20, wd=22, c=24, wmod=26, out=28, dbg=30, ws=32)
sE=34; sW=35; sG=36; sI=37; sC=38; sT8=39; sTD=40; sH=44; sQ=45; sK=46; sN=47
rWS=48; r1=52; r2=56; r3=60; r4=64
sT=68
sTS=76
sSPIN=96; sU=97; sX=98; sFG=99; sM=100
sFL=3; sFA=30; sFB=31
sPM=4
vL=1; vGQ=2; vP=3; vL16=4; vMB=5; vMF=6; vTL=7
vFO=244; vFH=245; vGO=246
SPIN_LIMIT=40000
NLOC=24
LOG2E=1.4426950408889634
def fb(x): return '0x%08x' % struct.unpack('<I', struct.pack('<f', x))[0]
MF='v_mfma_f32_16x16x32_bf16'
MH='v_mfma_f32_16x16x16_bf16'
DPP='row_mask:0xf bank_mask:0xf'
def fsw(p): return ((((p & 7) ^ ((p >> 3) * 4)) << 1) | (p >> 3))

def weave(mf, other, per=2):
    out = []; o = list(other)
    for i, m in enumerate(mf):
        out.append(m)
        n = 0
        while o and n < per:
            x = o.pop(0)
            if x is None: break
            out.append(x); n += 2 if x.startswith(('v_exp', 'v_rcp', 'v_rsq')) else 1
    out += [x for x in o if x is not None]
    return out

class G(Asm):
    def __init__(s, P):
        super().__init__(); s.P = P; s.diag = P.diag; s.tsmap = P.tsmap
    def cap(s, fn, *a):
        old = s.lines; s.lines = []; fn(*a); r = s.lines; s.lines = old; return r
    def emit(s, L):
        for l in L: s(l)
    def srd(s, r, name, size=None):
        p = PTR[name]; size = size if size is not None else SIZES[name]
        s(f"""s_mov_b64 s[{r}:{r+1}], s[{p}:{p+1}]
              s_mov_b32 s{r+2}, {size}
              s_mov_b32 s{r+3}, 0x20000""")
    def ts(s, name):
        if s.diag and name in s.tsmap:
            k = s.tsmap[name]; s(f'{s.P.tsop} s[{sTS+2*k}:{sTS+2*k+1}]')
        if s.diag and name in (s.P.xstop, s.P.ystop): s('s_waitcnt vmcnt(0) lgkmcnt(0)\ns_branch L_done')
    def dma(s, voff, srd, soff, flags='nt', off=0):
        s(f'buffer_load_dwordx4 v{voff}, s[{srd}:{srd+3}], s{soff} offen {"offset:%d " % off if off else ""}{flags} lds')
    def wld(s, dst, n, voff, soff, off=0, fl='sc1'):
        op = {1: 'dword', 2: 'dwordx2', 4: 'dwordx4'}[n]
        s(f'buffer_load_{op} {vr(dst,n)}, v{voff}, s[{rWS}:{rWS+3}], s{soff} offen {"offset:%d " % off if off else ""}{fl}')
    def wst(s, src, n, voff, soff, off=0, fl='sc1'):
        op = {1: 'dword', 2: 'dwordx2', 4: 'dwordx4'}[n]
        s(f'buffer_store_{op} {vr(src,n)}, v{voff}, s[{rWS}:{rWS+3}], s{soff} offen {"offset:%d " % off if off else ""}{fl}')
    def packtag(s, dst, lo, hi, d):
        s(f"""v_cvt_pk_bf16_f32 v{dst}, v{lo}, v{hi}
              v_and_or_b32 v{dst}, v{dst}, v{vMB}, s{sTD+d}""")
    def gather8(s, dst, src):
        s(f"""v_mov_b32_dpp v{dst+1}, v{src} quad_perm:[1,0,3,2] {DPP}
              v_cvt_pk_bf16_f32 v{dst}, v{src}, v{dst+1}
              v_and_or_b32 v{dst}, v{dst}, v{vMB}, v{vTL}
              v_mov_b32_dpp v{dst+1}, v{dst} row_ror:14 {DPP}
              v_mov_b32_dpp v{dst+2}, v{dst} row_ror:12 {DPP}
              v_mov_b32_dpp v{dst+3}, v{dst} row_ror:10 {DPP}""")
    def tag32(s, dst, src):
        s(f'v_and_or_b32 v{dst}, v{src}, v{vMF}, s{sT8}')
    def chk16(s, acc, regs, first=True):
        for i, (r, d) in enumerate(regs):
            if first and i == 0: s(f'v_xor_b32 v{acc}, s{sTD+d}, v{r}')
            else: s(f'v_bitop3_b32 v{acc}, v{r}, s{sTD+d}, v{acc} bitop3:0xbe')
    def chk32(s, acc, regs, first=True):
        for i, r in enumerate(regs):
            if first and i == 0: s(f'v_xor_b32 v{acc}, s{sT8}, v{r}')
            else: s(f'v_bitop3_b32 v{acc}, v{r}, s{sT8}, v{acc} bitop3:0xbe')
    def test(s, acc, mask, dst='vcc'):
        s(f"""v_and_b32 v{acc}, {mask}, v{acc}
              v_cmp_ne_u32 {dst}, 0, v{acc}""")
    def spin(s):
        s(f's_add_u32 s{sSPIN}, s{sSPIN}, 1\ns_cmp_ge_u32 s{sSPIN}, {SPIN_LIMIT}\ns_cbranch_scc1 L_done')
    def again(s, loop): s(f's_cbranch_vccnz {loop}')
    def againq(s, loop):
        s(f"""s_wqm_b64 exec, vcc
              s_cbranch_execnz {loop}
              s_mov_b64 exec, -1""")
    def setexec(s, lo, hi):
        s(f's_mov_b32 exec_lo, {lo:#x}\ns_mov_b32 exec_hi, {hi:#x}')
    def fullexec(s): s('s_mov_b64 exec, -1')
    def bfr(s, dst, src):
        s(f"""v_cvt_pk_bf16_f32 v{dst}, v{src}, v{src}
              v_and_b32 v{dst}, 0xffff0000, v{dst}""")
    def xgq(s, op, r, t):
        s(f"""v_mov_b32 v{t}, v{r}
              v_permlane16_swap_b32 v{r}, v{t}
              {op} v{r}, v{r}, v{t}
              v_mov_b32 v{t}, v{r}
              v_permlane32_swap_b32 v{r}, v{t}
              {op} v{r}, v{r}, v{t}""")
    def wave_red(s, op, r, t):
        for k in (8, 4, 2, 1):
            s(f'{op}_dpp v{r}, v{r}, v{r} row_ror:{k} {DPP}')
        s.xgq(op, r, t)
    def tags(s):
        s(f"""v_mov_b32 v{vMB}, 0xfffefffe
              v_mov_b32 v{vMF}, 0xffffff00
              v_and_b32 v{vTL}, 6, v{vL}
              s_waitcnt lgkmcnt(0)
              s_add_u32 s{sE}, s{sE}, 1
              s_and_b32 s{sT8}, s{sE}, 0xff
              s_mul_i32 s{sTD+3}, s{sT8}, 0x8001
              v_lshrrev_b32 v{vTL}, v{vTL}, s{sTD+3}
              v_and_b32 v{vTL}, 0x10001, v{vTL}
              s_and_b32 s{sTD}, s{sTD+3}, 0x10001
              s_lshr_b32 s{sTD+1}, s{sTD+3}, 2
              s_and_b32 s{sTD+1}, s{sTD+1}, 0x10001
              s_lshr_b32 s{sTD+2}, s{sTD+3}, 4
              s_and_b32 s{sTD+2}, s{sTD+2}, 0x10001
              s_lshr_b32 s{sTD+3}, s{sTD+3}, 6
              s_and_b32 s{sTD+3}, s{sTD+3}, 0x10001""")
        s.srd(rWS, 'ws', WS_USED)
    def silu(s, src, t):
        s(f"""v_lshlrev_b32 v{t}, 16, v{src}
              v_and_b32 v{t+1}, 0xffff0000, v{src}
              v_mul_f32 v{t+2}, {fb(-LOG2E)}, v{t}
              v_mul_f32 v{t+3}, {fb(-LOG2E)}, v{t+1}
              v_exp_f32 v{t+2}, v{t+2}
              v_exp_f32 v{t+3}, v{t+3}
              v_add_f32 v{t+2}, 1.0, v{t+2}
              v_add_f32 v{t+3}, 1.0, v{t+3}
              v_rcp_f32 v{t+2}, v{t+2}
              v_rcp_f32 v{t+3}, v{t+3}
              v_mul_f32 v{t}, v{t}, v{t+2}
              v_mul_f32 v{t+1}, v{t+1}, v{t+3}
              v_cvt_pk_bf16_f32 v{src}, v{t}, v{t+1}""")
    def voff128(s, dst, t, RS, a, b):
        s(f"""v_lshrrev_b32 v{t}, 3, v{vL}
              v_and_b32 v{dst}, 6, v{t}
              v_xor_b32 v{dst}, v{dst}, v{vL}
              v_and_b32 v{dst}, 7, v{dst}
              v_lshlrev_b32 v{dst}, 4, v{dst}
              v_lshrrev_b32 v{t+1}, 2, v{t}
              v_and_b32 v{t}, 3, v{t}
              v_mov_b32 v{t+2}, {a*RS}
              v_mad_u32_u24 v{dst}, v{t+1}, v{t+2}, v{dst}
              v_mov_b32 v{t+2}, {b*RS}
              v_mad_u32_u24 v{dst}, v{t}, v{t+2}, v{dst}""")
    def tr128(s, dst, t, cg, base):
        s(f"""v_lshrrev_b32 v{t}, 2, v{vL}
              v_lshlrev_b32 v{dst}, 7, v{t}
              v_lshrrev_b32 v{t}, 1, v{t}
              v_and_b32 v{t}, 3, v{t}
              v_xor_b32 v{t}, {cg}, v{t}
              v_lshl_add_u32 v{dst}, v{t}, 5, v{dst}
              v_and_b32 v{t}, 3, v{vL}
              v_lshl_add_u32 v{dst}, v{t}, 3, v{dst}""")
        if base: s(f'v_add_u32 v{dst}, {base}, v{dst}')
    def voff256(s, dst, t, RSL):
        s(f"""v_lshlrev_b32 v{t}, 1, v{vGQ}
              v_xor_b32 v{dst}, v{t}, v{vP}
              v_lshlrev_b32 v{dst}, 4, v{dst}
              v_mov_b32 v{t}, {RSL}
              v_mad_u32_u24 v{dst}, v{vGQ}, v{t}, v{dst}""")
    def tr256(s, dst, t, cg, base, BS=1152):
        s(f"""v_lshrrev_b32 v{t}, 2, v{vP}
              v_mul_u32_u24 v{dst}, {BS}, v{vGQ}
              v_lshl_add_u32 v{dst}, v{t}, 8, v{dst}
              v_xor_b32 v{t}, {cg}, v{t}
              v_lshl_add_u32 v{dst}, v{t}, 5, v{dst}
              v_and_b32 v{t}, 3, v{vL}
              v_lshl_add_u32 v{dst}, v{t}, 3, v{dst}""")
        if base: s(f'v_add_u32 v{dst}, {base}, v{dst}')
    def fsw(s, dst, src, t):
        s(f"""v_lshrrev_b32 v{t}, 3, v{src}
              v_mul_u32_u24 v{t}, 9, v{t}
              v_lshlrev_b32 v{dst}, 1, v{src}
              v_and_b32 v{dst}, 14, v{dst}
              v_xor_b32 v{dst}, v{dst}, v{t}""")
    def rowsel(s, dst, t):
        s(f"""s_and_b32 s{dst}, s{sW}, 1
              s_lshl_b32 s{dst}, s{dst}, 4
              s_and_b32 s{t}, s{sW}, 2
              s_lshl_b32 s{t}, s{t}, 1
              s_add_u32 s{dst}, s{dst}, s{t}""")
    def headq(s):
        s(f"""s_lshr_b32 s{sX}, s{sI}, 2
              s_lshl2_add_u32 s{sH}, s{sG}, s{sX}
              s_and_b32 s{sQ}, s{sI}, 3
              s_lshl2_add_u32 s{sX}, s{sG}, s{sW}
              s_lshl4_add_u32 s{sX}, s{sX}, s{sI}
              s_lshl_b32 s{sX}, s{sX}, 6""")
    def column(s, dst, slot, t):
        s(f"""s_sub_u32 s{t}, 3, s{sG}
              s_and_b32 s{t}, s{t}, 7
              s_add_u32 s{t}, s{t}, {slot}
              s_sub_u32 s{dst}, s{t}, 9
              s_cmp_ge_u32 s{t}, 9
              s_cselect_b32 s{t}, s{dst}, s{t}
              s_mul_i32 s{dst}, s{sG}, 9
              s_add_u32 s{dst}, s{dst}, s{t}""")

def prologue(s):
    s(f"""s_cmp_ge_u32 s2, 256
          s_cbranch_scc1 L_end
          s_load_dwordx16 s[4:19], s[0:1], 0
          s_load_dwordx8 s[20:27], s[0:1], 64
          s_load_dwordx4 s[28:31], s[0:1], 96
          s_load_dwordx2 s[32:33], s[0:1], 112""")
    s.ts('start')
    s(f"""v_lshrrev_b32 v8, 6, v0
          v_and_b32 v{vL}, 63, v0
          v_readfirstlane_b32 s{sW}, v8
          v_lshrrev_b32 v{vGQ}, 4, v{vL}
          v_and_b32 v{vP}, 15, v{vL}
          v_lshlrev_b32 v{vL16}, 4, v{vL}
          s_mov_b32 s{sSPIN}, 0
          s_and_b32 s{sG}, s2, 7
          s_lshr_b32 s{sI}, s2, 4
          s_bitcmp0_b32 s2, 3
          s_cbranch_scc1 L_Y""")

def epilogue(s):
    s('L_done:')
    if s.diag:
        s(f"""{s.P.tsop} s[{sTS+18}:{sTS+19}]
              s_waitcnt lgkmcnt(0)
              s_lshl_b32 s{sT}, s2, 2
              s_add_u32 s{sT}, s{sT}, s{sW}
              s_lshl_b32 s{sT}, s{sT}, 6
              s_add_u32 s{sT}, s{sT}, {DBGT}
              s_mov_b64 exec, 1
              v_mov_b32 v8, 0""")
        for k in range(10): s(f'v_mov_b32 v{12+k}, s{sTS+2*k}')
        s(f"""v_mov_b32 v22, s{sSPIN}
              s_getreg_b32 s{sT+1}, hwreg(HW_REG_XCC_ID)
              v_mov_b32 v23, s{sT+1}
              buffer_store_dwordx4 v[12:15], v8, s[{rWS}:{rWS+3}], s{sT} offen
              buffer_store_dwordx4 v[16:19], v8, s[{rWS}:{rWS+3}], s{sT} offen offset:16
              buffer_store_dwordx4 v[20:23], v8, s[{rWS}:{rWS+3}], s{sT} offen offset:32""")
    s('L_end:\ns_endpgm')

FM=36864; GBASE=110592; A2B=73728; A2S=A2B+24576; CSL=147456; CSR=592; LEX=149504; LZ=LEX+2048; LST=LZ+1024
def ffn_setup(s, t):
    s.srd(r1, 'wg'); s.srd(r2, 'wu'); s.srd(r3, 'wd')
    s.voff128(vFO, t, 9216, 8, 1)
    s.voff128(vGO, t, 1152, 8, 1)
    s.rowsel(sFG, sT)
    s(f"""s_and_b32 s{sFA}, s{sU}, 1
          s_mul_i32 s{sT}, s{sFA}, 288
          s_add_u32 s{sFG}, s{sFG}, s{sT}
          s_mul_i32 s{sFG}, s{sFG}, 9216
          s_lshr_b32 s{sT}, s{sU}, 1
          s_lshl_b32 s{sT}, s{sT}, 7
          s_add_u32 s{sFG}, s{sFG}, s{sT}
          s_lshl_b32 s{sFL}, s{sW}, 10""")
def ffn_tile(s, k, st, one=None):
    order = [(m, i) for i in range(9) for m in range(2)]
    for m, i in (order[3*k:3*k+3] if one is None else order[one:one+1]):
        s(f"""s_add_u32 m0, s{sFL}, {m*FM+i*4096}
              s_add_u32 s{st}, s{sFG}, {32*i*9216}""")
        s.dma(vFO, r2 if m else r1, st, s.P.ffl)
def ffn_g(s):
    s.rowsel(sT, sT+1)
    s(f"""s_lshl_b32 s{sT+1}, s{sU}, 5
          s_add_u32 s{sT}, s{sT}, s{sT+1}
          s_mul_i32 s{sT}, s{sT}, 1152""")
    for b in range(9):
        s(f's_add_u32 m0, s{sFL}, {GBASE+b*4096 - b*128}')
        s.dma(vGO, r3, sT, 'nt', b*128)

def ffn_compute(s):
    P = s.P
    FW=0; GW=80
    CS=64; AV=112; AV2=132; Z=32; GR=48; UV=24; RZ=80
    sZ=sM
    sA=4
    def csl():
        for kp in range(3): s.wld(CS+4*kp, 4, 8, sA+kp)
    for k in range(7):
        s(f'L_ft{k}:')
        if k == P.csp:
            s(f"""v_min_u32 v9, 35, v{vL}
                  v_lshlrev_b32 v8, 4, v9
                  s_and_b32 s{sA+3}, s{sW}, 1
                  s_lshl1_add_u32 s{sA}, s{sFA}, s{sA+3}
                  s_mul_i32 s{sA}, s{sA}, 576
                  s_cmp_ge_u32 s{sW}, 2
                  s_cselect_b32 s{sA+1}, 0, 2304
                  s_cselect_b32 s{sA+4}, 0, 1.0
                  s_cselect_b32 s{sA+5}, {CSR}, 0
                  s_add_u32 s{sA+5}, s{sA+5}, {CSL}
                  s_add_u32 s{sA}, s{sA}, s{sA+1}
                  s_add_u32 s{sA}, s{sA}, {MOD2+2304}
                  s_add_u32 s{sA+1}, s{sA}, 9216
                  s_add_u32 s{sA+2}, s{sA}, 18432""")
            csl()
        if k < 6: ffn_tile(s, k, sT)
    nl = 3*(6-P.csp)
    s(f"""s_mul_i32 s{sT}, s{sA+3}, 288
          s_add_u32 s{sA+5}, s{sA+5}, s{sT}
          v_lshl_add_u32 v9, v9, 3, s{sA+5}
          s_lshr_b32 s{sT}, s{sW}, 1
          s_lshl_b32 s{sA+6}, s{sT}, 2
          s_xor_b32 s{sA+7}, s{sA+3}, s{sFA}
          s_lshl1_add_u32 s{sA+7}, s{sA+7}, s{sT}
          s_lshl_b32 s{sA+8}, s{sU}, 11
          s_xor_b32 s{sA+9}, s{sA+8}, 2048
          s_lshl_b32 s{sT}, s{sT}, 10
          s_add_u32 s{sA+9}, s{sA+9}, s{sT}
          s_lshl_b32 s{sT}, s{sA+3}, 1""")
    s.tr128(10, 11, f's{sT}', 0)
    s(f"""s_lshl_b32 s{sT}, s{sA+6}, 12
          v_add_u32 v10, s{sT}, v10
          v_xor_b32 v11, 32, v10
          v_and_b32 v13, 1, v{vP}
          v_mul_u32_u24 v13, {CSR}, v13
          v_lshl_add_u32 v13, v{vGQ}, 4, v13
          s_lshl_b32 s{sT}, s{sA+6}, 6
          s_add_u32 s{sT}, s{sT}, {CSL}
          v_add_u32 v13, s{sT}, v13
          s_waitcnt vmcnt({nl})
          L_csb:""")
    s.chk32(12, list(range(CS, CS+12))); s.test(12, '0xff')
    s('s_cbranch_vccnz L_cs')
    for e in range(4): s(f'v_add_f32 v{CS+e}, v{CS+e}, v{CS+4+e}')
    for e in range(4): s(f'v_add_f32 v{CS+e}, v{CS+e}, v{CS+8+e}')
    for e in range(4):
        s.bfr(CS+e, CS+e); s(f'v_add_f32 v{CS+e}, s{sA+4}, v{CS+e}')
    s(f"""v_cvt_pk_bf16_f32 v{CS}, v{CS}, v{CS+1}
          v_cvt_pk_bf16_f32 v{CS+1}, v{CS+2}, v{CS+3}
          ds_write_b64 v9, v[{CS}:{CS+1}]""")
    s.ts('f_g')
    s(f"""v_lshrrev_b32 v14, 2, v{vP}
          v_lshlrev_b32 v14, 7, v14
          v_and_b32 v15, 1, v{vP}
          v_lshl_add_u32 v14, v15, 6, v14
          v_and_b32 v15, 2, v{vP}
          v_xor_b32 v15, 2, v15
          v_lshl_add_u32 v14, v15, 4, v14
          v_and_b32 v16, 1, v{vGQ}
          v_lshl_add_u32 v14, v16, 4, v14
          v_lshrrev_b32 v19, 1, v{vGQ}
          v_lshl_add_u32 v14, v19, 9, v14
          s_mul_i32 s{sT+2}, s{sFA}, {9*1024}
          s_add_u32 s{sT+2}, s{sT+2}, {TR}
          s_lshl_b32 s{sT+1}, s{sA+6}, 10
          s_add_u32 s{sT+1}, s{sT+1}, s{sT+2}
          s_add_u32 s{sT+2}, s{sT+1}, 4096
          v_lshl_add_u32 v19, v19, 4, v{vP}
          v_lshlrev_b32 v21, 3, v19
          v_lshl_add_u32 v21, v16, 2, v21
          v_lshlrev_b32 v19, 5, v19
          v_lshl_add_u32 v19, v16, 4, v19
          s_lshl2_add_u32 s{sT+5}, s{sA+7}, {LZ}
          v_add_u32 v19, s{sT+5}, v19
          v_and_b32 v12, 7, v{vP}
          v_lshl_add_u32 v12, v{vGQ}, 3, v12
          v_lshlrev_b32 v17, 5, v12
          v_add_u32 v17, {LZ}, v17
          v_lshlrev_b32 v28, 3, v12
          v_lshlrev_b32 v29, 4, v12
          v_lshlrev_b32 v30, 6, v12
          v_add_u32 v30, {LEX}, v30
          v_and_b32 v31, 31, v{vL}
          v_lshlrev_b32 v31, 6, v31
          s_lshl4_add_u32 s{sT+5}, s{sA+7}, {LEX}
          v_add_u32 v31, s{sT+5}, v31
          v_and_b32 v20, 2, v{vP}
          v_lshlrev_b32 v20, 3, v20
          s_lshl2_add_u32 s{sT+5}, s{sA+7}, {LST}
          v_add_u32 v20, s{sT+5}, v20
          v_mov_b32 v18, {LST}
          v_lshlrev_b32 v15, 2, v{vP}
          v_mov_b32 v8, 0
          v_lshrrev_b32 v22, 5, v{vL}
          v_lshrrev_b32 v16, 2, v{vP}
          v_lshl_add_u32 v22, v22, 2, v16
          v_mul_u32_u24 v22, 9216, v22
          v_and_b32 v16, 3, v{vP}
          v_lshl_add_u32 v22, v16, 4, v22
          v_lshlrev_b32 v23, 4, v{vGQ}
          v_add_u32 v23, {8*9216}, v23
          s_lshl_b32 s{sT+4}, s{sU}, 6
          s_mul_i32 s{sT+5}, s{sW}, {9*9216}
          s_add_u32 s{sT+4}, s{sT+4}, s{sT+5}
          s_add_u32 s{sT+4}, s{sT+4}, {YP}
          s_mov_b32 s{sT+6}, 0
          s_mov_b32 s{sT+7}, -1
          s_mov_b32 s{sM}, 0x33333333
          s_mov_b32 s{sM+1}, 0x33333333
          s_mov_b32 s{sA+10}, 0xffff0000
          s_mov_b32 s{sA+11}, 0xffff0000
          s_cmp_ge_u32 s{sW}, 2
          s_cselect_b64 s[{sA+12}:{sA+13}], -1, s[{sM}:{sM+1}]
          s_cselect_b32 s{sT}, 0, 0x3f803f80
          v_mov_b32 v16, 0x3f803f80
          v_mov_b32 v9, s{sT}
          s_add_u32 s{sA}, s{sA+8}, {ZXG}
          s_add_u32 s{sA+1}, s{sA+9}, {ZXG}
          s_add_u32 s{sA+8}, s{sA+8}, {ZXL}
          s_add_u32 s{sA+9}, s{sA+9}, {ZXL}
          s_mov_b32 s{sN}, 0
          s_waitcnt vmcnt(0) lgkmcnt(0)
          s_barrier""")
    s.ts('f_data')
    for k in range(5): s(f'ds_read_b128 {vr(AV+4*k,4)}, v13 offset:{k*64}')
    def fwr(k):
        for c in range(4):
            for hh in range(2):
                s(f'ds_read_b64_tr_b16 {ar(FW+(k*4+c)*4+2*hh,2)}, v{10+(c>>1)} offset:{k*4096+(c&1)*FM+hh*2048}')
    for k in range(1, 5): fwr(k)
    s(f's_cmp_ge_u32 s{sW}, 2\ns_cbranch_scc1 L_fz')
    fwr(0)
    s('L_fzb:')
    def fmf(k): return [f'{MF} {vr(Z+4*c,4)}, {vr(AV+4*k,4)}, {ar(FW+(k*4+c)*4,4)}, {vr(Z+4*c,4) if k else 0}' for c in range(4)]
    def gram(k): return f'{MF} {vr(GR,4)}, {vr(AV+4*k,4)}, {vr(AV2+4*k,4)}, {vr(GR,4) if k else 0}'
    s.tr128(10, 11, 0, GBASE)
    s('s_waitcnt lgkmcnt(0)')
    for k in range(5): s.emit(fmf(k))
    s(f's_mul_i32 s{sT}, s{sW}, 9')
    for i in range(9):
        s(f"""s_add_u32 s{sT+5}, s{sT}, {i}
              s_and_b32 s{sT+3}, s{sT+5}, 3
              s_lshl_b32 s{sT+3}, s{sT+3}, 5
              s_lshr_b32 s{sT+5}, s{sT+5}, 2
              s_lshl_b32 s{sT+5}, s{sT+5}, 12
              v_xor_b32 v11, s{sT+3}, v10
              v_add_u32 v11, s{sT+5}, v11
              ds_read_b64_tr_b16 {ar(GW+4*i,2)}, v11
              ds_read_b64_tr_b16 {ar(GW+4*i+2,2)}, v11 offset:2048""")
    US=152
    for e, o in enumerate((0, 1, 4, 5)):
        s(f'v_cndmask_b32 v{US+e}, v{Z+o}, v{Z+8+o}, s[{sA+10}:{sA+11}]'); s.tag32(US+e, US+e)
    s(f"""ds_write_b128 v31, {vr(US,4)}
          v_and_b32 v31, 0x1f0, v{vL16}
          s_cmp_lt_u32 s{sA+7}, 2
          s_cbranch_scc1 L_nuv""")
    s.wst(US, 4, 31, sA+9, 0, '')
    s("""L_nuv:
         s_waitcnt lgkmcnt(0)
         s_barrier""")
    def rzl():
        for q in range(2):
            s.wld(RZ+8*q, 2, 28, sA+8, q*1024+512); s.wld(RZ+8*q+4, 4, 8, sA+8, q*1024+768)
        for q in range(2): s.wld(RZ+16+4*q, 4, 29, sA+8, q*1024)
    rzl()
    for q in range(2): s(f'ds_read_b128 {vr(Z+4*q,4)}, v30 offset:{16*q}')
    s('s_waitcnt lgkmcnt(0)')
    for e in range(4): s(f'v_add_f32 v{UV+e}, v{Z+e}, v{Z+4+e}')
    s.ts('f_ready')
    if P.tgate:
        s(f"""s_lshl2_add_u32 s{sT+3}, s{sG}, s{sW}
              s_lshl_b32 s{sT+3}, s{sT+3}, 10
              s_add_u32 s{sT+3}, s{sT+3}, {CPG+P.tgate*64}
              s_mov_b64 exec, 15
              L_tg2:""")
        s.wld(AV, 4, vL16, sT+3, 0)
        s.spin()
        s('s_waitcnt vmcnt(0)')
        s.chk16(12, [(AV+i, i) for i in range(4)]); s.test(12, '0x10001'); s.again('L_tg2')
        s.fullexec()
    s('L_tr:')
    for k in range(4): s.wld(AV+4*k, 4, vL16 if P.exp & 2 else 14, sT+1, k*1024)
    s.wld(AV+16, 4, vL16 if P.exp & 2 else 14, sT+2)
    s.spin()
    s('s_waitcnt vmcnt(0)')
    ck = s.cap(s.chk16, 12, [(AV+i, i & 3) for i in range(20)]) + s.cap(s.test, 12, '0x10001')
    s.emit(weave(fmf(0)+fmf(1)[:3], ck, 3))
    s.again('L_tr')
    s.ts('f_tr')
    cm = [f'v_cndmask_b32 v{AV2+q}, v{AV+q}, v9, s[{sA+12}:{sA+13}]' for q in range(4)] + [f'v_cndmask_b32 v{AV2+q}, v{AV+q}, v16, s[{sM}:{sM+1}]' for q in range(4, 20)]
    s.emit(cm[:2])
    rest = fmf(1)[3:] + [gram(0), fmf(2)[0], gram(1), fmf(2)[1], gram(2), fmf(2)[2], gram(3), fmf(2)[3], gram(4)]
    s.emit(weave(rest, cm[2:], 2))
    gr = [None, f'v_add_f32 v{GR}, v{GR+2}, v{GR+3}', None,
          f'v_add_f32_dpp v{GR}, v{GR}, v{GR} quad_perm:[1,0,3,2] {DPP}', None,
          f'v_add_f32_dpp v{GR}, v{GR}, v{GR} row_ror:4 {DPP}', None,
          f'v_add_f32_dpp v{GR}, v{GR}, v{GR} row_ror:8 {DPP}', f'v_mov_b32 v{GR+1}, v{GR}',
          f'v_permlane16_swap_b32 v{GR}, v{GR+1}', f'v_add_f32 v{GR}, v{GR}, v{GR+1}', f'v_mov_b32 v{GR+1}, v{GR}', None,
          f'v_permlane32_swap_b32 v{GR}, v{GR+1}', f'v_add_f32 v{GR}, v{GR}, v{GR+1}', f'ds_write_b32 v20, v{GR}']
    s.emit(weave(fmf(3)+fmf(4), gr, 2))
    s.tag32(AV2+1, GR)
    for c in range(4): s(f'v_add_f32 v{Z+4*c}, v{Z+4*c}, v{Z+4*c+1}')
    s(f"""v_permlane32_swap_b32 v{Z}, v{Z+8}
          v_permlane32_swap_b32 v{Z+4}, v{Z+12}
          v_add_f32 v{Z}, v{Z}, v{Z+8}
          v_add_f32 v{Z+4}, v{Z+4}, v{Z+12}
          v_permlane16_swap_b32 v{Z}, v{Z+4}
          s_cmp_lt_u32 s{sA+7}, 2
          v_add_f32 v{Z}, v{Z}, v{Z+4}
          s_cbranch_scc1 L_nz""")
    def zst(b, fl):
        s.wst(AV2, 1, 21, b, 512, fl); s.wst(AV2+1, 1, 15, b, 768, fl)
        if fl: s.wst(US, 4, 31, b, 0, fl)
    s.tag32(AV2, Z)
    zst(sA+9, '')
    s(f"""L_nz:
          ds_write_b32 v19, v{Z}
          v_mov_b32 v{GR+1}, {fb(1e-5)}""")
    rzl()
    s(f"""s_waitcnt lgkmcnt(0)
          s_barrier
          ds_read2_b64 v[{GR+4}:{GR+7}], v18 offset1:2
          ds_read2_b64 v[{Z}:{Z+3}], v17 offset1:2
          s_waitcnt lgkmcnt(0)
          v_add_f32 v{GR+4}, v{GR+4}, v{GR+5}
          v_add_f32 v{GR+8}, v{GR+6}, v{GR+7}
          v_add_f32 v{Z}, v{Z}, v{Z+1}
          v_add_f32 v{Z+1}, v{Z+2}, v{Z+3}
          L_rzb:
          s_waitcnt vmcnt(0)""")
    s.chk32(12, [RZ+8*q+o for q in range(2) for o in (0, 1, 4, 5, 6, 7)] + list(range(RZ+16, RZ+24)))
    s(f"""v_add_f32 v{RZ+4}, v{RZ+4}, v{RZ+12}
          v_add_f32 v{RZ+6}, v{RZ+6}, v{RZ+14}""")
    s.test(12, '0xff')
    s(f"""v_add_f32 v{RZ+4}, v{GR+4}, v{RZ+4}
          v_add_f32 v{RZ+6}, v{GR+8}, v{RZ+6}
          s_cbranch_vccnz L_rz
          v_mul_f32 v{GR+4}, {fb(1.0/(8*576))}, v{RZ+4}
          v_fmac_f32 v{GR+1}, {fb(1.0/576)}, v{RZ+6}
          v_fma_f32 v{GR+1}, -v{GR+4}, v{GR+4}, v{GR+1}
          v_rsq_f32 v{GR+1}, v{GR+1}
          v_pk_add_f32 v[{RZ+16}:{RZ+17}], v[{RZ+16}:{RZ+17}], v[{RZ+20}:{RZ+21}]
          v_pk_add_f32 v[{RZ+18}:{RZ+19}], v[{RZ+18}:{RZ+19}], v[{RZ+22}:{RZ+23}]
          v_pk_add_f32 v[{RZ}:{RZ+1}], v[{RZ}:{RZ+1}], v[{RZ+8}:{RZ+9}]
          v_pk_add_f32 v[{UV}:{UV+1}], v[{UV}:{UV+1}], v[{RZ+16}:{RZ+17}]
          v_pk_add_f32 v[{UV+2}:{UV+3}], v[{UV+2}:{UV+3}], v[{RZ+18}:{RZ+19}]
          v_pk_add_f32 v[{Z}:{Z+1}], v[{Z}:{Z+1}], v[{RZ}:{RZ+1}]
          v_fma_f32 v{Z}, -v{GR+4}, v{UV}, v{Z}
          v_fma_f32 v{Z+1}, -v{GR+4}, v{UV+2}, v{Z+1}
          v_fma_f32 v{Z}, v{Z}, v{GR+1}, v{UV+1}
          v_fma_f32 v{Z+1}, v{Z+1}, v{GR+1}, v{UV+3}
          v_cvt_pk_bf16_f32 v{Z+1}, v{Z}, v{Z+1}
          v_lshlrev_b32 v{Z}, 16, v{Z+1}
          v_and_b32 v{Z+1}, 0xffff0000, v{Z+1}""")
    k2 = -2*0.7978845608028654*LOG2E
    s(f"""v_mul_f32 v{Z+2}, v{Z}, v{Z}
          v_mov_b32 v{Z+3}, {fb(k2)}
          v_fmac_f32 v{Z+3}, {fb(k2*0.044715)}, v{Z+2}
          v_mul_f32 v{Z+3}, v{Z+3}, v{Z}
          v_exp_f32 v{Z+3}, v{Z+3}
          v_add_f32 v{Z+3}, 1.0, v{Z+3}
          v_rcp_f32 v{Z+3}, v{Z+3}
          v_mul_f32 v{Z}, v{Z}, v{Z+3}""")
    s.bfr(Z, Z)
    s(f"""v_mul_f32 v{Z}, v{Z}, v{Z+1}
          v_mov_b32_dpp v{Z+1}, v{Z} quad_perm:[1,0,3,2] {DPP}
          v_cvt_pk_bf16_f32 v{AV}, v{Z}, v{Z+1}
          v_mov_b32_dpp v{AV+1}, v{AV} row_ror:14 {DPP}
          v_mov_b32_dpp v{AV+2}, v{AV} row_ror:12 {DPP}
          v_mov_b32_dpp v{AV+3}, v{AV} row_ror:10 {DPP}""")
    YV=64
    gm = [f'{MF} {vr(YV+32,4)}, {ar(GW+32,4)}, {vr(AV,4)}, 0'] + [f'{MF} {vr(YV+4*i,4)}, {vr(AV,4)}, {ar(GW+4*i,4)}, 0' for i in (0,4,1,5,2,6,3,7)]
    s.emit(gm[:4])
    s.tag32(YV+32, YV+32)
    s.emit(gm[4:6])
    def ysel(i):
        s(f'v_cndmask_b32 v{Z+i}, v{YV+4*i}, v{YV+16+4*i}, s[{sT+6}:{sT+7}]')
        if i == 0: s.tag32(Z, Z)
    ysel(0); s(gm[6]); s(gm[7]); ysel(1); s(gm[8])
    s.setexec(0x10001, 0x10001)
    s.wst(YV+32, 4, 23, sT+4)
    s.setexec(0xffff, 0xffff)
    ysel(2); ysel(3)
    s.wst(Z, 4, 22, sT+4)
    s.ts('f_yp')
    s(f"""s_cmp_lt_u32 s{sA+7}, 2
          s_cbranch_scc1 L_done
          s_mov_b64 exec, -1""")
    zst(sA+1, 'sc1')
    s('s_branch L_done\nL_cs:')
    csl(); s.spin(); s('s_waitcnt vmcnt(0)\ns_branch L_csb\nL_fz:')
    for i in range(16): s(f'v_accvgpr_write_b32 a{FW+i}, 0')
    s(f"""s_branch L_fzb
          L_rz:
          s_add_u32 s{sN}, s{sN}, 1
          s_cmp_lg_u32 s{sN}, {NLOC}
          s_cbranch_scc1 L_rz2
          s_mov_b32 s{sA+8}, s{sA}
          s_cmp_lt_u32 s{sA+7}, 2
          s_cbranch_scc1 L_rz2""")
    zst(sA+1, 'sc1')
    s('L_rz2:')
    rzl(); s.spin(); s('s_branch L_rzb')
```

```python
from gen5a import *

XA=131072; XS=XA+24576; XUV=131072
QS=98304; MXL=81920; DX=82944; PB=73728
sV=24; vUV=247
def cost(x): return 2 if x.startswith(('v_exp', 'v_rcp', 'v_rsq')) else 1
def fill(items, per=2):
    out = []; cur = []; n = 0
    for x in items:
        if n + cost(x) > per and cur: out.append(cur); cur = []; n = 0
        cur.append(x); n += cost(x)
    if cur: out.append(cur)
    return out
def slots(mf, L):
    out = []
    for i, m in enumerate(mf):
        out.append(m)
        if i < len(L): out += L[i]
    for l in L[len(mf):]: out += l
    return out

def role_x(s):
    P = s.P
    KA=32; VA=48; QO=64; Q0=96; Q1=144; SV=192; PK=208; OT=212; LR=228
    s.voff128(9, 10, 6912, 8, 1)
    s(f"""s_lshl4_add_u32 s{sU}, s{sG}, s{sI}
          s_lshl2_add_u32 s{sK}, s{sI}, s{sG}
          s_cmp_ge_u32 s{sG}, 4
          s_cselect_b32 s{sK}, 99, s{sK}
          s_mul_i32 s{sT+5}, s{sK}, 3641
          s_lshr_b32 s{sT+5}, s{sT+5}, 16
          s_mul_i32 s{sT+6}, s{sT+5}, 18
          s_sub_u32 s{sT+6}, s{sK}, s{sT+6}
          v_lshlrev_b32 v8, 2, v0""")
    s.rowsel(sT+2, sT+3)
    s(f"""s_mul_i32 s{sT+3}, s{sT+5}, 192
          s_add_u32 s{sT+2}, s{sT+2}, s{sT+3}
          s_mul_i32 s{sT+2}, s{sT+2}, 6912
          s_lshl_b32 s{sT+4}, s{sT+6}, 7
          s_add_u32 s{sT+2}, s{sT+2}, s{sT+4}
          s_lshl_b32 s{sT+3}, s{sT+3}, 1
          s_lshl_b32 s{sT+4}, s{sW}, 10
          s_add_u32 m0, s{sT+4}, {XA}
          s_lshl_b32 s{sT}, s{sU}, 17
          s_lshl_b32 s{sT+1}, s{sW}, 15
          s_add_u32 s{sT}, s{sT}, s{sT+1}""")
    for i in range(16): s(f'v_xor_b32 v{32+i}, {fsw(i)<<4}, v{vL16}')
    s(f"""s_waitcnt lgkmcnt(0)
          s_load_dword s{sE}, s[32:33], 0
          s_cmp_ge_u32 s{sK}, 54
          s_cbranch_scc1 L_noA""")
    s.srd(r4, 'wmod'); s.srd(r3, 'c')
    s(f'buffer_load_dword v28, v8, s[{r3}:{r3+3}], s{sT+3} offen')
    for kt in range(6):
        s.dma(9, r4, sT+2)
        if kt < 5: s(f's_add_u32 s{sT+2}, s{sT+2}, {32*6912}\ns_add_u32 m0, m0, 4096')
    s('L_noA:')
    s.srd(r1, 'ckv')
    s(f"""s_getpc_b64 s[{r2}:{r2+1}]
          L_pc:
          s_sub_u32 s{r2}, s{r2}, L_pc-{NAME}_kernel
          s_subb_u32 s{r2+1}, s{r2+1}, 0
          s_mov_b32 s{r2+2}, CODE_BYTES
          s_mov_b32 s{r2+3}, 0x20000
          s_lshl2_add_u32 s{sT+2}, s{sI}, s{sW}
          s_lshl_b32 s{sT+2}, s{sT+2}, 10
          s_mov_b32 m0, s{sT+1}
          buffer_load_dwordx4 v[240:243], v{vL16}, s[{r2}:{r2+3}], s{sT+2} offen""")
    def ckv(i):
        if i and i % 4 == 0:
            s(f's_add_u32 s{sT}, s{sT}, 4096\ns_add_u32 m0, m0, 4096')
        if P.xw and P.xw <= i < P.xn: s(f's_waitcnt vmcnt({P.xw-1})')
        s.dma(32+(i & 15), r1, sT, 'nt', (i & 3)*1024)
    for i in range(P.na): ckv(i)
    s(f"""s_cmp_ge_u32 s{sK}, 54
          s_cbranch_scc1 L_noA2
          s_mul_i32 s{sX}, s{sT+5}, 4608
          s_lshl2_add_u32 s{sT+6}, s{sT+6}, s{sW}
          s_lshl_b32 s{sT+6}, s{sT+6}, 6
          s_add_u32 s{sX}, s{sX}, s{sT+6}
          s_add_u32 s{sX}, s{sX}, {MODP}""")
    s.tr128(20, 22, f's{sW}', XA)
    s.tags()
    s(f"""v_lshlrev_b32 v21, 4, v{vGQ}
          v_add_u32 v22, {XS}, v21
          v_add_u32 v8, {XS}, v8
          s_waitcnt vmcnt({7+P.na})""")
    s.silu(28, 24)
    s(f"""ds_write_b32 v8, v28
          s_waitcnt vmcnt({1+P.na}) lgkmcnt(0)
          s_barrier""")
    for kt in range(6):
        for hh in range(2):
            s(f'ds_read_b64_tr_b16 {vr(64+4*kt+2*hh,2)}, v20 offset:{kt*4096+hh*2048}')
        s(f'ds_read_b128 {vr(88+4*kt,4)}, v22 offset:{kt*64}')
    for kt in range(6):
        s(f's_waitcnt lgkmcnt({15-3*kt})')
        s(f'{MF} v[24:27], {vr(64+4*kt,4)}, {vr(88+4*kt,4)}, {"v[24:27]" if kt else 0}')
    for r in range(4): s.tag32(24+r, 24+r)
    s.setexec(0x00010001, 0x00010001)
    s.wst(24, 4, 21, sX)
    s.fullexec()
    s.ts('x_a')
    s('L_noA2:')
    for i in range(P.na, 32): ckv(i)
    s.ts('x_issued')
    s(f's_cmp_lt_u32 s{sK}, 54\ns_cbranch_scc1 L_tg')
    s.tags()
    s('L_tg:')
    for r in (vFO, vGO): s(f'v_mov_b32 v{r}, 0')
    s.headq()
    s.srd(r4, 'wuv'); s.srd(r1, 'wo'); s.srd(r3, 'x')
    s.fsw(8, vP, 9)
    s(f"""v_xor_b32 v8, v8, v{vGQ}
          v_lshlrev_b32 v8, 4, v8
          v_lshl_add_u32 v8, v{vP}, 10, v8
          s_mul_i32 s{sT+2}, s{sW}, {32768+256}
          v_add_u32 v12, s{sT+2}, v8
          v_lshrrev_b32 v10, 2, v{vL}""")
    for q in range(16): s(f'v_xor_b32 v{KA+q}, {((q&3)<<6)|((q>>2)<<8)}, v12')
    s.fsw(8, 10, 9)
    s(f"""v_bfe_u32 v9, v{vL}, 1, 1
          v_xor_b32 v8, v8, v9
          v_lshlrev_b32 v8, 4, v8
          v_lshl_add_u32 v8, v10, 10, v8
          v_and_b32 v9, 1, v{vL}
          v_lshl_add_u32 v8, v9, 3, v8
          s_lshl_b32 s{sT+2}, s{sW}, 8
          v_add_u32 v{VA}, s{sT+2}, v8""")
    for ct in range(1, 8): s(f'v_xor_b32 v{VA+ct}, {ct<<5}, v{VA}')
    for ct in range(8): s(f'v_add_u32 v{VA+8+ct}, 0x10000, v{VA+ct}')
    s.voff256(vUV, 8, 8192)
    s(f"""v_lshrrev_b32 v13, 2, v{vP}
          v_lshlrev_b32 v13, 8, v13
          v_lshl_add_u32 v13, v{vGQ}, 6, v13
          v_and_b32 v9, 3, v{vL}
          v_lshl_add_u32 v13, v9, 4, v13
          s_lshl_b32 s{sT+2}, s{sW}, 13
          s_add_u32 s{sT+4}, s{sT+2}, {QA}
          s_add_u32 s{sT+5}, s{sT+2}, {QA+4096}
          s_add_u32 s{sT+2}, s{sT+2}, {QS}
          v_add_u32 v14, s{sT+2}, v{vL16}
          v_xor_b32 v15, 0x2000, v14
          v_xor_b32 v16, 0x4000, v14
          v_xor_b32 v17, 0x6000, v14
          v_add_u32 v19, {PB}, v{vL16}
          s_lshl_b32 s{sT+2}, s{sW}, 10
          v_add_u32 v18, s{sT+2}, v19
          v_lshlrev_b32 v20, 4, v{vP}
          v_add_u32 v20, {MXL}, v20
          s_lshl_b32 s{sT+2}, s{sW}, 2
          v_add_u32 v12, s{sT+2}, v20
          v_lshlrev_b32 v21, 17, v{vP}
          v_lshl_add_u32 v21, v{vGQ}, 4, v21
          v_lshlrev_b32 v22, 10, v{vP}
          s_lshl_b32 s{sT+6}, s{sW}, 15
          s_lshl_b32 s{sT+2}, s{sU}, 8
          s_add_u32 s{sT+6}, s{sT+6}, s{sT+2}
          s_add_u32 s{sT+6}, s{sT+6}, {OP}
          s_add_u32 s{sN}, s{sT+6}, {16*131072}
          s_and_b32 s{sT+7}, s{sU}, 64
          s_lshl_b32 s{sT+7}, s{sT+7}, 3
          s_and_b32 s{sT+2}, s{sU}, 3
          s_lshl_b32 s{sT+2}, s{sT+2}, 7
          s_add_u32 s{sT+7}, s{sT+7}, s{sT+2}
          s_and_b32 s{sT+2}, s{sU}, 0x3c
          s_lshl1_add_u32 s{sT+7}, s{sT+2}, s{sT+7}
          s_lshl_b32 s{sT+2}, s{sW}, 14
          s_add_u32 s{sT+7}, s{sT+7}, s{sT+2}
          s_add_u32 s{sT+7}, s{sT+7}, {ML}
          s_and_b32 s{sK}, s{sE}, 0xffff
          s_mov_b32 s{sC}, {fb(128**-0.5*LOG2E)}
          v_mov_b32 v24, 0x3f803f80
          v_mov_b32 v25, v24
          v_mov_b32 v26, v24
          v_mov_b32 v27, v24
          s_lshl_b32 s{sV}, s{sQ}, 20
          s_lshl_b32 s{sT+1}, s{sW}, 18
          s_add_u32 s{sV}, s{sV}, s{sT+1}
          s_lshl_b32 s{sT+1}, s{sH}, 8
          s_add_u32 s{sV}, s{sV}, s{sT+1}
          s_lshl_b32 s{sV+1}, s{sW}, 13
          s_add_u32 s{sV+1}, s{sV+1}, {XUV}
          s_cmp_lt_u32 s{sI}, 14
          s_cbranch_scc1 L_nfs""")
    s.column(sU, 4, sT)
    s(f"""s_and_b32 s{sT}, s{sI}, 1
          s_lshl1_add_u32 s{sU}, s{sU}, s{sT}""")
    ffn_setup(s, 8)
    s("""L_nfs:
         s_waitcnt vmcnt(16)
         s_barrier""")
    def wuvl():
        s(f's_mov_b32 m0, s{sV+1}')
        for i in range(8):
            s.dma(vUV, r4, sV)
            if i < 7: s(f's_add_u32 s{sV}, s{sV}, {4*8192}\ns_add_u32 m0, m0, 1024')
    wob = [int(c, 36) for c in P.wob]; fb_ = [int(c) for c in P.xfb]
    def dblock(k, extra=None, nb=0):
        w0 = sum(wob[:k]); f0 = sum(fb_[:k])
        if not (wob[k] or fb_[k] or extra): return
        s(f"""s_cmp_ge_u32 s{sI}, 9
              s_cbranch_scc1 L_dbn{k}
              s_lshl_b32 m0, s{sW}, 10""")
        if w0: s(f's_add_u32 m0, m0, {w0*4096}')
        for kt in range(w0, w0+wob[k]):
            s.dma(23, r1, sT, P.wofl)
            s(f's_add_u32 s{sT}, s{sT}, {32*1152}')
            if kt < w0+wob[k]-1: s('s_add_u32 m0, m0, 4096')
        if extra: extra()
        s(f"""L_dbn{k}:
              s_cmp_lt_u32 s{sI}, 14
              s_cbranch_scc1 L_dbp{k}""")
        for q in range(f0, f0+fb_[k]): ffn_tile(s, q, sT)
        if nb and fb_[k]: s(f's_branch L_dbq{k}')
        s(f'L_dbp{k}:')
        if nb: s('s_mov_b64 exec, 1')
        for i in range(nb):
            if i == 3*fb_[k]: s(f'L_dbq{k}:\ns_mov_b64 exec, 1')
            s.wld(25, 1, 20, sV)
        if nb and nb == 3*fb_[k]: s(f'L_dbq{k}:')
        if nb: s.fullexec()
        s(f'L_dbe{k}:')
    assert sum(wob) == 16
    P.xft = sum(fb_)
    if P.wuve: wuvl()
    def kread(kt):
        for q in range(16): s(f'ds_read_b128 {ar((kt*16+q)*4,4)}, v{KA+q} offset:{kt*16384}')
    def vread(hh):
        for ks in range(4):
            for ct in range(8):
                s(f'ds_read_b64_tr_b16 {ar(128+(ct*4+ks)*4+2*hh,2)}, v{VA+ct+(8 if ks>=2 else 0)} offset:{((ks&1)*32+16*hh)*1024}')
    kread(0); vread(0)
    s(f's_waitcnt vmcnt({8 if P.wuve else 0})\ns_barrier')
    s.ts('x_landed')
    kread(1); vread(1)
    s.voff128(23, 8, 1152, 8, 1)
    s.rowsel(sT, sT+1)
    s(f"""s_lshl_b32 s{sT+1}, s{sG}, 9
          s_add_u32 s{sT}, s{sT}, s{sT+1}
          s_mul_i32 s{sT}, s{sT}, 1152
          s_lshl_b32 s{sT+1}, s{sI}, 7
          s_add_u32 s{sT}, s{sT}, s{sT+1}
          v_mov_b32 v10, 0xff800000
          v_mov_b32 v11, v10
          s_waitcnt lgkmcnt(0)
          s_barrier
          ds_write_b64 v20, v[10:11]""")
    s.ts('x_ready')
    dblock(0)
    lp = s.lab('qa')
    def qal(b, fl):
        for j in range(4):
            for ht in range(2):
                s.wld(QO+(j*2+ht)*4, 4, 13, b+(j >> 1), (j & 1)*2048+ht*1024, fl)
    s(f'{lp}:')
    qal(sT+4, 'sc1')
    s.fullexec(); s.spin()
    s('s_waitcnt vmcnt(0)')
    def qk(q, kt, ht, src, first=False):
        d = vr(SV+(kt*2+ht)*4, 4)
        return f'{MF} {d}, {ar((kt*16+q)*4,4)}, {vr(src,4)}, {0 if first else d}'
    own = {ht: [qk(j, kt, ht, QO+(j*2+ht)*4, j == 0) for j in range(4) for kt in range(2)] for ht in range(2)}
    wr = [f'ds_write_b128 v14, {vr(QO+4*i,4)} offset:{i*1024}' for i in (0,2,4,6,1,3,5,7)]
    ck = s.cap(s.chk16, 28, [(QO+i, i & 3) for i in range(32)]) + s.cap(s.test, 28, '0x10001')
    L = [[wr[i]] + ck[4*i:4*i+4] for i in range(8)] + [ck[32:]]
    s.emit(slots(own[0], L))
    s.againq(lp)
    dblock(1)
    s("""s_waitcnt lgkmcnt(0)
         s_barrier""")
    s.ts('x_qa')
    rd = {ht: [f'ds_read_b128 {vr((Q1 if ht else Q0)+((jq-1)*4+j)*4,4)}, v{14+jq} offset:{(j*2+ht)*1024}' for jq in range(1,4) for j in range(4)] for ht in range(2)}
    s.emit(slots(own[1][:4], [rd[0][:6], rd[0][6:]]) if False else rd[0][:4] + slots(own[1][:4], fill(rd[0][4:], 3)))
    for i in range(12):
        s(f's_waitcnt lgkmcnt(11)')
        q = 4+i
        s(qk(q, 0, 0, Q0+4*i)); s(rd[1][i]); s(qk(q, 1, 0, Q0+4*i))
    MT = {0: 28, 1: 30}
    def X8(ht): return [SV+ht*4+r for r in range(4)] + [SV+8+ht*4+r for r in range(4)]
    def smax(ht):
        X = X8(ht)
        return [f'v_max3_f32 v8, v{X[0]}, v{X[1]}, v{X[2]}', f'v_max3_f32 v9, v{X[3]}, v{X[4]}, v{X[5]}',
                f'v_max3_f32 v8, v8, v{X[6]}, v{X[7]}', 'v_max_f32 v8, v8, v9', f'ds_max_f32 v20, v8 offset:{ht*4}']
    def sexp(ht):
        X = X8(ht); m = MT[ht]
        L = [f'v_mul_f32 v{m}, s{sC}, v{m}', f'v_ceil_f32 v{m}, v{m}']
        L += [f'v_fma_f32 v{x}, v{x}, s{sC}, -v{m}' for x in X]
        L += [f'v_exp_f32 v{x}, v{x}' for x in X]
        L += [f'v_cvt_pk_bf16_f32 v{PK+i}, v{X[2*i]}, v{X[2*i+1]}' for i in range(4)]
        return L
    BAR = ['s_waitcnt lgkmcnt(0)', 's_barrier']
    def prd(ht): return [f'ds_read_b128 {vr(QO+ht*16+ks*4,4)}, v19 offset:{ht*4096+ks*1024}' for ks in range(4)]
    def phase(ht, mf, extra, late):
        m = MT[ht]; n = len(mf)
        sm = smax(ht)
        L = [[], ['s_waitcnt lgkmcnt(8)'] if ht == 0 else [], sm[:2], sm[2:], [], [], BAR + [f'ds_read_b32 v{m}, v20 offset:{ht*4}'], extra[:2], extra[2:4], extra[4:6] + [f's_waitcnt lgkmcnt({min(len(extra),6)})']]
        L += fill(sexp(ht), P.sper)
        L[-1] = L[-1] + [f'ds_write_b128 v18, {vr(PK,4)} offset:{ht*4096}', f'{MF} {vr(SV+ht*4,4)}, v[24:27], {vr(PK,4)}, 0']
        L += [[f'v_cvt_i32_f32 v{m}, v{m}', f'v_lshl_or_b32 v{m}, v{m}, 16, s{sK}'], [f'ds_write_b32 v12, v{SV+ht*4} offset:{256+ht*256}']]
        L += late
        k = max(len(L) + 1, n - P.pcov)
        while len(L) < k: L.append([])
        L[-1] = L[-1] + BAR + prd(ht) + [f'ds_read_b128 {vr(LR+4*ht,4)}, v20 offset:{256+ht*256}']
        return slots(mf, L)
    def mlst(ht):
        l = s.lab('nml'); m = MT[ht]
        b = LR+4*ht
        s(f"""s_cmp_lg_u32 s{sW}, {ht}
              s_cbranch_scc1 {l}
              v_add_f32 v{b}, v{b}, v{b+1}
              v_add_f32 v{b+2}, v{b+2}, v{b+3}
              v_add_f32 v{b}, v{b}, v{b+2}
              s_mov_b64 exec, 0xffff""")
        s.tag32(m+1, b)
        s.wst(m, 2, 22, sT+7)
        s(f's_mov_b64 exec, -1\n{l}:')
    def pv(ht, ks, ct):
        d = vr((Q1 if ht else Q0)+ct*4, 4)
        return f'{MF} {d}, {ar(128+(ct*4+ks)*4,4)}, {vr(QO+ht*16+ks*4,4)}, {d if ks else 0}'
    def pvl(ht): return [pv(ht, ks, 2*d+c) for d in range(4) for ks in range(4) for c in range(2)]
    def opk(ht, d):
        O = (Q1 if ht else Q0) + 8*d; T = O
        L = []
        for i in range(4): L += s.cap(s.packtag, T+i, O+2*i, O+2*i+1, i)
        return L + s.cap(s.wst, T, 4, 21, sN if ht else sT+6, d*64)
    mf1 = own[1][4:] + [qk(4+i, kt, 1, Q1+4*i) for i in range(12) for kt in range(2)]
    s.emit(phase(0, mf1, [], []))
    s.ts('x_qk')
    s('s_waitcnt lgkmcnt(0)')
    uva = s.cap(lambda: (s(f's_lshl_b32 s{sT+2}, s{sW}, 1'), s.tr256(10, 11, f's{sT+2}', XUV, 1024), s('v_xor_b32 v11, 32, v10')))
    pv0 = pvl(0)
    s.emit(phase(1, pv0, [], fill(opk(0, 0), 2)))
    s('s_waitcnt lgkmcnt(0)')
    pv1 = pvl(1)
    L = [s.cap(mlst, 0), s.cap(mlst, 1)] + fill(opk(0, 1) + opk(0, 2) + opk(0, 3) + opk(1, 0) + opk(1, 1), P.oper)
    while len(L) < 26: L.append([])
    L += fill(opk(1, 2), P.oper)
    s.emit(slots(pv1, L))
    s.emit(opk(1, 3))
    s.ts('x_o')
    def m2l():
        for kp, so in enumerate((sT+6, sT+7, sV+2)):
            s.wld((24, 28, 29)[kp], 1, 22, so); s.wld((25, 30, 31)[kp], 1, 21, so)
    def eloads():
        s(f"""s_lshl2_add_u32 s{sT+4}, s{sI}, s{sW}
              s_lshl_b32 s{sT+5}, s{sT+4}, 5
              s_lshl_b32 s{sT+6}, s{sT+4}, 6
              s_add_u32 s{sT+6}, s{sT+6}, {MOD2}
              s_add_u32 s{sT+7}, s{sT+6}, 9216
              s_add_u32 s{sV+2}, s{sT+6}, 18432
              v_mov_b32 v27, v23
              v_lshlrev_b32 v23, 1, v{vP}
              v_lshlrev_b32 v22, 2, v{vP}
              v_add_u32 v21, 4608, v22
              buffer_load_ushort v26, v23, s[{r3}:{r3+3}], s{sT+5} offen""")
        m2l()
    dblock(2)
    s(f"""s_lshl_b32 s{sV}, s{sH}, 10
          s_add_u32 s{sV}, s{sV}, {ML}
          s_and_b32 s{sT+1}, s{sW}, 1
          s_lshl_b32 s{sT+1}, s{sT+1}, 6
          s_and_b32 s{sT+2}, s{sW}, 2
          s_lshl_b32 s{sT+2}, s{sT+2}, 8
          s_add_u32 s{sT+1}, s{sT+1}, s{sT+2}
          v_lshlrev_b32 v8, 3, v{vL}
          v_xor_b32 v8, s{sT+1}, v8
          v_xor_b32 v9, 512, v8
          s_lshl2_add_u32 s{sT+2}, s{sH}, s{sQ}
          s_lshl2_add_u32 s{sT+2}, s{sT+2}, s{sW}
          s_lshl_b32 s{sT+2}, s{sT+2}, 13
          s_add_u32 s{sV+1}, s{sT+2}, {OP}
          s_add_u32 s{sV+3}, s{sT+2}, {OP+4096}""")
    def opl(i): s.wld(64+4*i, 4, vL16, sV+1+2*(i >> 2), (i & 3)*1024)
    s.emit(uva)
    for j in range(4):
        for c in range(2):
            for hh in range(2):
                s(f'ds_read_b64_tr_b16 {ar((j*2+c)*4+2*hh,2)}, v{10+c} offset:{(8*j+4*hh)*1024}')
    for i in range(8): s(f'v_mov_b32 v{48+i}, 0')
    s(f"""s_mul_i32 s{sT+2}, s{sW}, 272
          s_add_u32 s{sT+2}, s{sT+2}, {DX}
          v_lshlrev_b32 v18, 4, v{vP}
          v_lshl_add_u32 v18, v{vGQ}, 2, v18
          v_add_u32 v18, s{sT+2}, v18
          v_and_b32 v19, 3, v{vP}
          v_mul_u32_u24 v19, 272, v19
          v_lshl_add_u32 v19, v{vGQ}, 4, v19
          v_add_u32 v19, {DX}, v19
          v_lshlrev_b32 v20, 1, v{vL}""")
    s.tr128(10, 11, f's{sW}', 0)
    s(f"""v_add_u32 v11, 0x8000, v10
          s_waitcnt vmcnt({P.drw})
          L_ml:""")
    s.wld(12, 2, 8, sV); s.wld(14, 2, 9, sV)
    s.spin()
    s(f"""s_waitcnt vmcnt(0)
          v_xor_b32 v16, s{sE}, v12
          v_xor_b32 v17, s{sE}, v13
          v_bitop3_b32 v16, v14, s{sE}, v16 bitop3:0xbe
          v_bitop3_b32 v17, v15, s{sE}, v17 bitop3:0xbe
          v_lshlrev_b32 v16, 16, v16
          v_lshl_or_b32 v16, v17, 24, v16
          v_cmp_ne_u32 vcc, 0, v16
          v_max_i32 v16, v12, v14
          s_cbranch_vccnz L_ml""")
    s.ts('d_ml')
    for i in range(8): opl(i)
    def word(a, b):
        for kt in range(a, b):
            for hh in range(2):
                off = kt*4096+hh*2048
                s(f'ds_read_b64_tr_b16 {ar(32+4*kt+2*hh,2)}, v{10 if off<0x8000 else 11} offset:{off if off<0x8000 else off-0x8000}')
    w3 = 16 - wob[3]
    s(f's_cmp_ge_u32 s{sI}, 9\ns_cbranch_scc1 L_nw')
    eloads()
    s('s_barrier'); word(0, w3)
    s(f"""s_lshl_b32 m0, s{sW}, 10
          s_add_u32 m0, m0, {w3*4096}
          L_nw:""")
    s.wave_red('v_max_i32', 16, 17)
    s("""v_sub_u32 v12, v12, v16
         v_sub_u32 v14, v14, v16
         v_ashrrev_i32 v12, 16, v12
         v_ashrrev_i32 v14, 16, v14
         v_add_u32 v12, 127, v12
         v_add_u32 v14, 127, v14
         v_max_i32 v12, 0, v12
         v_max_i32 v14, 0, v14
         v_lshlrev_b32 v17, 7, v12
         v_lshlrev_b32 v12, 23, v12
         v_lshlrev_b32 v14, 23, v14""")
    for i in range(8):
        s(f'v_mov_b32_dpp v{40+i}, v17 row_newbcast:{i} {DPP}\nv_mov_b32_dpp v{32+i}, v12 row_newbcast:{i} {DPP}')
    s("""v_mul_f32 v16, v12, v13
         v_fmac_f32 v16, v14, v15""")
    s.wave_red('v_add_f32', 16, 17)
    def opstep(i, cnt, first):
        pm = f's[{sPM+2*i}:{sPM+2*i+1}]'
        if not first: s(f's_mov_b64 exec, {pm}\ns_cbranch_execz L_ops{i}')
        else: s(f's_waitcnt vmcnt({cnt})')
        s.chk16(17, [(64+4*i+d, d) for d in range(4)]); s.test(17, '0x10001')
        s(f"""s_wqm_b64 {pm}, vcc
              s_andn2_b64 exec, exec, {pm}
              s_or_b64 s[{sM}:{sM+1}], s[{sM}:{sM+1}], vcc""")
        for d in range(4):
            s(f'v_dot2c_f32_bf16 v{48+2*d}, v{64+4*i+d}, v{40+i}')
            s(f'v_dot2c_f32_bf16 v{49+2*d}, v{64+4*i+d}, v{32+i}')
        if not first: s(f'L_ops{i}:')
        else: s.fullexec()
    def oppass(ne, items):
        n = 0
        for i in range(8):
            opstep(i, 7-i+ne+n, True)
            k = (len(items)*(i+1)+7)//8
            for f in items[n:k]: f()
            n = k
    def wo1():
        s.dma(27, r1, sT, P.wofl)
        s(f's_add_u32 s{sT}, s{sT}, {32*1152}\ns_add_u32 m0, m0, 4096')
    f3 = 3*sum(fb_[:3])
    s(f"""v_rcp_f32 v16, v16
          s_mov_b64 s[{sM}:{sM+1}], 0
          s_cmp_ge_u32 s{sI}, 9
          s_cbranch_scc1 L_op2""")
    oppass(7, [wo1]*wob[3])
    s('L_ope:')
    s(f"""s_cmp_lg_u64 s[{sM}:{sM+1}], 0
          s_cbranch_scc1 L_opr
          s_mov_b64 exec, -1""")
    s.ts('d_op')
    for e in range(4): s(f'v_permlane32_swap_b32 v{48+e}, v{52+e}')
    for e in range(4): s(f'v_add_f32 v{48+e}, v{48+e}, v{52+e}')
    for e in range(2): s(f'v_permlane16_swap_b32 v{48+e}, v{50+e}')
    for e in range(2): s(f'v_add_f32 v{48+e}, v{48+e}, v{50+e}')
    s(f"""v_cvt_pk_bf16_f32 v48, v48, v49
          ds_write_b32 v18, v48
          s_add_u32 s{sT+2}, s{sX}, {CPL}
          s_add_u32 s{sT+3}, s{sX}, {CPG}
          s_mov_b32 s{sM}, 0xffff0000
          s_mov_b32 s{sM+1}, 0xffff0000
          s_waitcnt lgkmcnt(0)
          s_barrier""")
    for j in range(4): s(f'ds_read_b128 {vr(32+4*j,4)}, v19 offset:{j*64}')
    for j in range(4):
        s(f's_waitcnt lgkmcnt({3-j})')
        for c in range(2):
            d = vr(48+4*c, 4)
            s(f'{MF} {d}, {vr(32+4*j,4)}, {ar((j*2+c)*4,4)}, {d if j else 0}')
    s(f"""v_add_f32 v48, v48, v49
          v_add_f32 v50, v50, v51
          v_add_f32 v52, v52, v53
          v_add_f32 v54, v54, v55
          v_add_f32 v48, v48, v50
          v_add_f32 v52, v52, v54
          v_cndmask_b32 v48, v48, v52, s[{sM}:{sM+1}]
          v_mul_f32 v48, v48, v16""")
    s.gather8(12, 48)
    s('s_mov_b64 exec, 0x01010101')
    s.wst(12, 4, 20, sT+2, 0, '')
    s.ts('d_cp')
    s(f"""s_cmp_ge_u32 s{sI}, 9
          s_cbranch_scc1 L_nE2
          s_mov_b64 exec, -1""")
    s(f"""v_lshlrev_b32 v8, 6, v{vP}
          v_lshl_add_u32 v8, v{vGQ}, 4, v8
          s_lshl_b32 s{sT}, s{sG}, 12
          s_add_u32 s{sT}, s{sT}, {CPL}""")
    def cpl():
        for st in range(4): s.wld(32+4*st, 4, 8, sT, st*1024)
    cpl()
    s(f"""s_mov_b32 s{sN}, 0
          s_lshl_b32 s{sT+5}, s{sT+4}, 9
          s_lshl_b32 s{sT+1}, s{sG}, 6
          s_add_u32 s{sT+5}, s{sT+5}, s{sT+1}
          s_add_u32 s{sT+5}, s{sT+5}, {TR}
          s_mul_i32 s{sT+1}, s{sG}, 2304
          s_lshl_b32 s{sT+4}, s{sT+4}, 6
          s_add_u32 s{sT+4}, s{sT+4}, s{sT+1}
          s_add_u32 s{sT+4}, s{sT+4}, {T32}
          s_cmp_eq_u32 s{sG}, 0
          s_cselect_b32 s{sT+1}, -1, 0
          s_mov_b32 s{sPM}, 0
          s_mov_b32 s{sPM+1}, -1
          s_waitcnt vmcnt(5)""")
    if wob[3]: s('s_barrier'); word(w3, 16)
    s('L_m2b:')
    s.chk32(9, [24, 25, 28, 29, 30, 31]); s.test(9, '0xff')
    s(f"""s_cbranch_vccnz L_m2
          v_lshlrev_b32 v26, 16, v26
          v_and_b32 v26, s{sT+1}, v26
          v_add_f32 v24, v24, v28
          v_add_f32 v25, v25, v30
          v_add_f32 v24, v24, v29
          v_add_f32 v25, v25, v31
          v_cvt_pk_bf16_f32 v24, v24, v25
          v_and_b32 v25, 0xffff0000, v24
          v_lshlrev_b32 v24, 16, v24
          v_add_f32 v25, 1.0, v25
          v_cvt_pk_bf16_f32 v25, v25, v25
          v_and_b32 v25, 0xffff0000, v25
          v_cndmask_b32 v25, 1.0, v25, s[{sM}:{sM+1}]
          s_branch L_cpb
          L_cp:""")
    cpl()
    s.spin()
    s(f"""s_add_u32 s{sN}, s{sN}, 1
          s_cmp_eq_u32 s{sN}, {NLOC}
          s_cbranch_scc1 L_cpg
          L_cpb:
          s_waitcnt vmcnt(0) lgkmcnt(0)""")
    mf = [f'{MF} {vr(48+4*hd,4)}, {vr(32+4*st,4)}, {ar(32+(hd*4+st)*4,4)}, {vr(48+4*hd,4) if st else 0}' for hd in range(4) for st in range(4)]
    ck = s.cap(s.chk16, 9, [(32+i, i & 3) for i in range(16)]) + s.cap(s.test, 9, '0x10001')
    s.emit(slots(mf[:6], fill(ck, 3)))
    s.again('L_cp')
    s.ts('e_cp')
    def sum4(b): return [f'v_add_f32 v{b}, v{b}, v{b+1}', f'v_add_f32 v{b+2}, v{b+2}, v{b+3}', f'v_add_f32 v{b}, v{b}, v{b+2}']
    L = [sum4(48)[:2], sum4(48)[2:], [], [], sum4(52)[:2], sum4(52)[2:], [f'v_cndmask_b32 v48, v48, v52, s[{sM}:{sM+1}]'], [], sum4(56)[:2], sum4(56)[2:]]
    s.emit(slots(mf[6:], L))
    s.emit(sum4(60))
    s(f"""v_cndmask_b32 v56, v56, v60, s[{sM}:{sM+1}]
          v_cndmask_b32 v48, v48, v56, s[{sPM}:{sPM+1}]""")
    s.xgq('v_add_f32', 48, 49)
    s(f"""v_fma_f32 v48, v48, v24, v26
          v_mul_f32 v49, v48, v25""")
    s.gather8(52, 49)
    s.tag32(48, 48)
    s('s_mov_b64 exec, 0x01010101')
    s.wst(52, 4, 20, sT+5)
    s.wst(12, 4, 20, sT+3)
    s('s_mov_b64 exec, 0xffff')
    s.wst(48, 1, 22, sT+4)
    s.ts('e_tr')
    s('s_branch L_done')
    s('L_xf:\ns_barrier'); ffn_g(s); s(f's_branch L_ft{P.xft}')
    s('L_opr:')
    for i in range(8):
        s(f"""s_mov_b64 exec, s[{sPM+2*i}:{sPM+2*i+1}]
              s_cbranch_execz L_opn{i}""")
        opl(i)
        s(f'L_opn{i}:')
    s.fullexec(); s.spin()
    s(f's_waitcnt vmcnt(0)\ns_mov_b64 s[{sM}:{sM+1}], 0')
    for i in range(8): opstep(i, 0, False)
    s('s_branch L_ope\nL_op2:')
    if fb_[3]:
        s(f's_cmp_ge_u32 s{sI}, 14\ns_cbranch_scc1 L_op3')
    oppass(0, [])
    s('s_branch L_ope')
    if fb_[3]:
        s('L_op3:')
        oppass(0, [(lambda q=q: ffn_tile(s, 0, sT, q)) for q in range(f3, f3+3*fb_[3])])
        s('s_branch L_ope')
    s('L_m2:')
    m2l()
    s.spin()
    s('s_waitcnt vmcnt(0)\ns_branch L_m2b')
    s(f"""L_cpg:
          s_mov_b64 exec, 0x01010101""")
    s.wst(12, 4, 20, sT+3)
    s(f"""s_mov_b64 exec, -1
          s_add_u32 s{sT}, s{sT}, {CPG-CPL}
          s_branch L_cpb""")
    s('L_nE2:')
    s.wst(12, 4, 20, sT+3)
    s(f"""s_mov_b64 exec, -1
          s_cmp_ge_u32 s{sI}, 14
          s_cbranch_scc1 L_xf
          s_sub_u32 s{sU}, s{sI}, 9
          s_lshl3_add_u32 s{sU}, s{sU}, s{sG}
          s_cmp_ge_u32 s{sU}, 36
          s_cbranch_scc1 L_done
          s_cmp_lg_u32 s{sW}, 0
          s_cbranch_scc1 L_done""")
    s.srd(r4, 'out')
    s(f"""s_mul_i32 s{sT}, s{sU}, 7282
          s_lshr_b32 s{sT}, s{sT}, 16
          s_mul_i32 s{sT+1}, s{sT}, 9
          s_sub_u32 s{sT+1}, s{sU}, s{sT+1}
          s_mul_i32 s{sT}, s{sT}, 144
          s_lshr_b32 s{sT+2}, s{sT+1}, 2
          s_lshl_b32 s{sT+2}, s{sT+2}, 6
          s_add_u32 s{sT}, s{sT}, s{sT+2}
          s_and_b32 s{sT+2}, s{sT+1}, 3
          s_lshl2_add_u32 s{sT}, s{sT+2}, s{sT}
          s_cmp_eq_u32 s{sT+1}, 8
          s_cselect_b32 s{sT+2}, 4, 1
          s_cselect_b32 s{sT+3}, 1, 16
          v_and_b32 v8, 3, v{vL}
          v_mul_u32_u24 v9, s{sT+2}, v8
          v_mul_u32_u24 v8, s{sT+3}, v{vGQ}
          v_add3_u32 v9, v9, v8, s{sT}
          v_lshlrev_b32 v10, 2, v9
          v_lshlrev_b32 v9, 1, v9
          v_lshrrev_b32 v11, 2, v{vP}
          v_mul_u32_u24 v11, 2304, v11
          v_add_u32 v11, v11, v10
          s_mov_b32 s{sT+4}, {T32}
          s_mov_b32 s{sT+5}, {T32+4*2304}
          s_mov_b32 s{sT+6}, {MOD2+3*2304}
          s_mov_b32 s{sT+7}, {MOD2+3*2304+9216}
          s_mov_b32 s{sT+3}, {MOD2+3*2304+18432}
          s_mul_i32 s{sT}, s{sU}, 9216
          s_add_u32 s{sT}, s{sT}, {YP}
          s_add_u32 s{sT+1}, s{sT}, 4096
          s_add_u32 s{sT+2}, s{sT}, 8192
          L_t32:""")
    s.wld(24, 1, 11, sT+4); s.wld(25, 1, 11, sT+5); s.wld(26, 1, 10, sT+6); s.wld(27, 1, 10, sT+7); s.wld(28, 1, 10, sT+3)
    s.spin()
    s('s_waitcnt vmcnt(0)')
    s.chk32(15, [24, 25, 26, 27, 28]); s.test(15, '0xff'); s.again('L_t32')
    s(f"""v_add_f32 v24, v24, v25
          v_add_f32_dpp v24, v24, v24 row_ror:4 {DPP}
          v_add_f32_dpp v24, v24, v24 row_ror:8 {DPP}
          v_add_f32 v26, v26, v27
          v_add_f32 v26, v26, v28""")
    s.bfr(24, 24); s.bfr(26, 26)
    s('L_yp:')
    for i in range(9): s.wld(64+4*i, 4, vL16, sT+(i >> 2), (i & 3)*1024)
    s.fullexec(); s.spin()
    s('s_waitcnt vmcnt(0)')
    s.chk32(15, [64+4*i for i in range(9)]); s.test(15, '0xff'); s.againq('L_yp')
    s.ts('z_yp')
    for a, b in ((0,1),(2,3),(4,5),(6,7),(0,8),(2,4),(0,6),(0,2)):
        for h in range(2): s(f'v_pk_add_f32 {vr(64+4*a+2*h,2)}, {vr(64+4*a+2*h,2)}, {vr(64+4*b+2*h,2)}')
    s(f"""v_permlane32_swap_b32 v64, v66
          v_permlane32_swap_b32 v65, v67
          v_add_f32 v64, v64, v66
          v_add_f32 v65, v65, v67
          v_permlane16_swap_b32 v64, v65
          v_add_f32 v64, v64, v65
          v_add_f32_dpp v64, v64, v64 row_ror:4 {DPP}
          v_add_f32_dpp v64, v64, v64 row_ror:8 {DPP}""")
    s.bfr(64, 64)
    s('v_mul_f32 v64, v64, v26')
    s.bfr(64, 64)
    s(f"""v_add_f32 v64, v64, v24
          v_cvt_pk_bf16_f32 v64, v64, v64""")
    s.setexec(0x000f000f, 0x000f000f)
    s(f"""buffer_store_short v64, v9, s[{r4}:{r4+3}], 0 offen
          s_cmp_lg_u32 s{sU}, 0
          s_cbranch_scc1 L_done
          s_mov_b64 exec, 1
          v_mov_b32 v8, 0
          v_mov_b32 v9, s{sE}
          buffer_store_dword v9, v8, s[{rWS}:{rWS+3}], 0 offen sc1
          s_branch L_done""")
```

```python
from gen5a import *
from gen5x import *

Y_WQ=0; Y_WUK=41472; Y_H=153600
def role_y(s):
    P = s.P
    s('L_Y:')
    s.voff256(18, 19, 8192)
    s.headq()
    s(f"""s_mul_i32 s{sT}, s{sQ}, {144*8192}
          s_lshl_b32 s{sT+1}, s{sH}, 8
          s_add_u32 s{sT}, s{sT}, s{sT+1}
          s_lshl_b32 s{sT+1}, s{sW}, 18
          s_add_u32 s{sT+1}, s{sT+1}, s{sT}
          s_mul_i32 s{sT+2}, s{sW}, {8*1152}
          v_lshlrev_b32 v20, 2, v{vL}
          v_min_u32 v9, 35, v{vL}
          s_mul_i32 s{sT+4}, s{sW}, 36
          v_add_u32 v9, s{sT+4}, v9
          s_mul_i32 s{sT+4}, s{sQ}, 144
          v_add_u32 v10, s{sT+4}, v9
          v_lshlrev_b32 v11, 1, v10
          s_waitcnt lgkmcnt(0)
          s_load_dword s{sE}, s[32:33], 0""")
    s.srd(r1, 'wq'); s.srd(r3, 'x')
    def wq(i):
        if i < 8:
            s(f"""s_add_u32 s{sT+3}, s{sT+1}, {(8*(i&3)+4*(i>>2))*8192}
                  s_add_u32 m0, s{sT+2}, {Y_WQ+i*1152}""")
        else:
            s(f"""s_lshl_b32 s{sT+3}, s{sW}, 15
                  s_add_u32 s{sT+3}, s{sT+3}, s{sT}
                  s_add_u32 s{sT+3}, s{sT+3}, {128*8192}
                  s_mul_i32 s{sT+4}, s{sW}, 1152
                  s_add_u32 m0, s{sT+4}, {Y_WQ+32*1152}""")
        s.dma(18, r1, sT+3)
    wq(0)
    s(f"""buffer_load_dwordx4 v[12:15], v{vL16}, s[{r3}:{r3+3}], 0 offen
          buffer_load_dword v16, v20, s[{r3}:{r3+3}], 0 offen offset:1024
          buffer_load_ushort v17, v11, s[{r3}:{r3+3}], 0 offen""")
    for i in range(1, 9): wq(i)
    s.srd(r2, 'wuk')
    s(f"""s_lshl_b32 s{sT}, s{sI}, 18
          s_lshl_b32 s{sT+1}, s{sW}, 16
          s_add_u32 s{sT}, s{sT}, s{sT+1}
          s_lshl_b32 s{sT+1}, s{sG}, 10
          s_add_u32 s{sT}, s{sT}, s{sT+1}
          s_mul_i32 s{sT+2}, s{sW}, {8*1040}""")
    for i in range(8):
        s(f"""s_add_u32 s{sT+3}, s{sT}, {i*8192}
              s_add_u32 m0, s{sT+2}, {Y_WUK+i*1040}""")
        s.dma(vL16, r2, sT+3)
    s.tags()
    s(f"""v_lshlrev_b32 v10, 2, v10
          s_mov_b32 s{sT+5}, {MODP}
          s_mov_b32 s{sT+6}, {MODP+4608}
          s_mov_b32 s{sT+7}, {MODP+9216}""")
    def mload():
        for kp in range(3):
            s.wld(24+kp, 1, 10, sT+5+kp); s.wld(27+kp, 1, 10, sT+5+kp, 2304)
    s('s_waitcnt vmcnt(16)')
    s('v_mov_b32 v20, 0\nv_mov_b32 v21, 0')
    for q in range(5):
        s(f"""v_lshlrev_b32 v22, 16, v{12+q}
              v_and_b32 v23, 0xffff0000, v{12+q}
              v_add_f32 v20, v20, v22
              v_fmac_f32 v21, v22, v22
              v_add_f32 v20, v20, v23
              v_fmac_f32 v21, v23, v23""")
    s.wave_red('v_add_f32', 20, 22); s.wave_red('v_add_f32', 21, 22)
    s(f"""v_mul_f32 v20, {fb(1/576)}, v20
          v_mul_f32 v21, {fb(1/576)}, v21
          v_fma_f32 v21, -v20, v20, v21""")
    s.bfr(20, 20); s.bfr(21, 21)
    s(f'v_add_f32 v21, {fb(1e-5)}, v21'); s.bfr(21, 21)
    s('v_sqrt_f32 v21, v21'); s.bfr(21, 21)
    s("""v_rcp_f32 v21, v21
         v_lshlrev_b32 v17, 16, v17
         v_sub_f32 v17, v17, v20""")
    s.bfr(17, 17)
    s('v_mul_f32 v17, v17, v21'); s.bfr(17, 17)
    mload()
    s(f's_lshl_b32 s{sT}, s{sW}, 1')
    s.tr256(20, 22, f's{sT}', Y_WQ)
    s(f"""v_xor_b32 v21, 32, v20
          v_lshlrev_b32 v9, 1, v9
          v_add_u32 v9, {Y_H}, v9
          v_lshlrev_b32 v11, 4, v{vGQ}
          v_add_u32 v18, {Y_H}, v11
          v_lshlrev_b32 v19, 3, v{vGQ}
          v_lshl_add_u32 v8, v{vP}, 6, v11
          v_and_b32 v22, 7, v{vP}
          v_mul_u32_u24 v22, 1040, v22
          v_add_u32 v22, v22, v19
          v_lshrrev_b32 v23, 3, v{vP}
          v_lshl_add_u32 v22, v23, 8, v22
          s_add_u32 s{sT+2}, s{sT+2}, {Y_WUK}
          v_add_u32 v22, s{sT+2}, v22
          v_add_u32 v19, {Y_H+256}, v19
          s_lshl_b32 s{sT}, s{sG}, 12
          s_add_u32 s{sT}, s{sT}, {QPL}
          s_add_u32 s{sT+1}, s{sX}, {QPL}
          s_add_u32 s{sT+2}, s{sX}, {QPG}
          s_lshl3_add_u32 s{sT+3}, s{sI}, s{sG}
          s_lshl2_add_u32 s{sT+3}, s{sT+3}, s{sW}
          s_lshl_b32 s{sT+3}, s{sT+3}, 6
          s_add_u32 s{sT+3}, s{sT+3}, {QA}
          s_mov_b32 s{sN}, 0
          s_mov_b32 s{sM}, 0
          s_mov_b32 s{sM+1}, -1
          s_waitcnt vmcnt(14)
          s_barrier""")
    s.ts('y_wq')
    for c in range(2):
        for kt in range(4):
            for hh in range(2):
                s(f'ds_read_b64_tr_b16 {ar(c*20+kt*4+2*hh,2)}, v{20+c} offset:{(8*kt+4*hh)*1152}')
        s(f'ds_read_b64_tr_b16 {ar(c*20+16,2)}, v{20+c} offset:{32*1152}')
    s('s_waitcnt vmcnt(6)')
    for hp in range(2):
        for st in range(4):
            o = (hp*512+st*64)//8
            s(f'ds_read2_b64 {ar(64+(hp*4+st)*4,4)}, v22 offset0:{o} offset1:{o+4}')
    s.ts('y_wuk')
    s('s_branch L_mb\nL_mp:')
    mload()
    s.spin()
    s('L_mb:\ns_waitcnt vmcnt(0)')
    s.chk32(23, list(range(24, 30))); s.test(23, '0xff')
    s("""v_add_f32 v30, v24, v25
         v_add_f32 v31, v27, v28""")
    s.again('L_mp')
    s.ts('y_mod')
    s("""v_add_f32 v31, v31, v29
         v_add_f32 v30, v30, v26
         v_cvt_pk_bf16_f32 v30, v30, v31
         v_and_b32 v31, 0xffff0000, v30
         v_add_f32 v31, 1.0, v31
         v_lshlrev_b32 v30, 16, v30""")
    s.bfr(31, 31)
    s('v_mul_f32 v31, v31, v17'); s.bfr(31, 31)
    s("""v_add_f32 v31, v31, v30
         v_cvt_pk_bf16_f32 v31, v31, v31
         ds_write_b16 v9, v31
         s_waitcnt lgkmcnt(0)
         s_barrier""")
    for kt in range(4): s(f'ds_read_b128 {vr(32+4*kt,4)}, v18 offset:{kt*64}')
    s('ds_read_b64 v[48:49], v19')
    for kt in range(4):
        s(f's_waitcnt lgkmcnt({4-kt})')
        for c in range(2):
            d = vr(52+4*c, 4)
            s(f'{MF} {d}, {ar(c*20+kt*4,4)}, {vr(32+4*kt,4)}, {d if kt else 0}')
    s('s_waitcnt lgkmcnt(0)')
    for c in range(2):
        d = vr(52+4*c, 4)
        s(f'{MH} {d}, {ar(c*20+16,2)}, v[48:49], {d}')
    for d in range(4): s.packtag(12+d, 52+2*d, 53+2*d, d)
    s.setexec(0x10001, 0x10001)
    s.wst(12, 4, 11, sT+1, 0, '')
    s.fullexec()
    s.ts('y_qp')
    s('L_qp:')
    for st in range(4): s.wld(32+4*st, 4, 8, sT, st*1024)
    s.spin()
    s(f"""s_add_u32 s{sN}, s{sN}, 1
          s_cmp_eq_u32 s{sN}, {NLOC}
          s_cbranch_scc1 L_qpg
          L_qpb:
          s_waitcnt vmcnt(0)""")
    mf = [f'{MF} {vr(48+4*hp,4)}, {vr(32+4*st,4)}, {ar(64+(hp*4+st)*4,4)}, {vr(48+4*hp,4) if st else 0}' for hp in range(2) for st in range(4)]
    ck = s.cap(s.chk16, 23, [(32+i, i & 3) for i in range(16)]) + s.cap(s.test, 23, '0x10001')
    ad = ['v_add_f32 v48, v48, v49', 'v_add_f32 v50, v50, v51', 'v_add_f32 v48, v48, v50']
    s.emit(slots(mf, fill(ck[:16], 2)) + ck[16:] + ad)
    s.again('L_qp')
    s.ts('y_qpok')
    s(f"""v_add_f32 v52, v52, v53
          v_add_f32 v54, v54, v55
          v_add_f32 v52, v52, v54
          v_cndmask_b32 v48, v48, v52, s[{sM}:{sM+1}]""")
    s.gather8(24, 48)
    s.setexec(0x01000001, 0x01000001)
    s.wst(24, 4, 11, sT+3)
    s.setexec(0x10001, 0x10001)
    s.wst(12, 4, 11, sT+2)
    s.fullexec()
    s.ts('y_qa')
    s(f"""s_lshr_b32 s{sT+1}, s{sI}, 1
          s_cmp_ge_u32 s{sT+1}, 4
          s_addc_u32 s{sT+1}, s{sT+1}, 0""")
    s.column(sU, f's{sT+1}', sT)
    s(f"""s_and_b32 s{sT}, s{sI}, 1
          s_lshl1_add_u32 s{sU}, s{sU}, s{sT}
          s_barrier""")
    s(f"""s_sub_u32 s{sK}, s{sI}, 2
          s_lshl3_add_u32 s{sK}, s{sK}, s{sG}
          s_cmp_ge_u32 s{sK}, 108
          s_cbranch_scc1 L_na2
          s_mul_i32 s{sQ}, s{sK}, 1821
          s_lshr_b32 s{sQ}, s{sQ}, 16
          s_mul_i32 s{sH}, s{sQ}, 36
          s_sub_u32 s{sH}, s{sK}, s{sH}
          v_lshlrev_b32 v8, 2, v0""")
    s.srd(r4, 'wmod'); s.srd(r2, 'c')
    s.voff128(9, 10, 6912, 8, 1)
    s.rowsel(sT, sT+1)
    s(f"""s_mul_i32 s{sT+1}, s{sQ}, 192
          s_add_u32 s{sT}, s{sT}, s{sT+1}
          s_mul_i32 s{sT}, s{sT}, 6912
          s_lshl_b32 s{sT+2}, s{sH}, 7
          s_add_u32 s{sT}, s{sT}, s{sT+2}
          s_add_u32 s{sT}, s{sT}, 2304
          s_lshl_b32 s{sT+1}, s{sT+1}, 1
          s_lshl_b32 m0, s{sW}, 10
          s_add_u32 m0, m0, {A2B}
          buffer_load_dword v16, v8, s[{r2}:{r2+3}], s{sT+1} offen""")
    for kt in range(6):
        s.dma(9, r4, sT)
        if kt < 5: s(f's_add_u32 s{sT}, s{sT}, {32*6912}\ns_add_u32 m0, m0, 4096')
    s('L_na2:')
    ffn_setup(s, 12)
    ffn_g(s)
    s(f"""s_cmp_ge_u32 s{sK}, 108
          s_cbranch_scc1 L_na3
          s_mul_i32 s{sT}, s{sQ}, 9216
          s_lshl2_add_u32 s{sT+1}, s{sH}, s{sW}
          s_lshl_b32 s{sT+1}, s{sT+1}, 6
          s_add_u32 s{sT}, s{sT}, s{sT+1}
          s_add_u32 s{sT}, s{sT}, {MOD2}""")
    s.tr128(20, 22, f's{sW}', A2B)
    s(f"""v_lshlrev_b32 v21, 4, v{vGQ}
          v_add_u32 v22, {A2S}, v21
          v_add_u32 v8, {A2S}, v8
          s_waitcnt vmcnt(15)""")
    s.silu(16, 24)
    s(f"""ds_write_b32 v8, v16
          s_waitcnt vmcnt(9) lgkmcnt(0)
          s_barrier""")
    for kt in range(6):
        for hh in range(2):
            s(f'ds_read_b64_tr_b16 {vr(64+4*kt+2*hh,2)}, v20 offset:{kt*4096+hh*2048}')
        s(f'ds_read_b128 {vr(88+4*kt,4)}, v22 offset:{kt*64}')
    for kt in range(6):
        s(f's_waitcnt lgkmcnt({15-3*kt})')
        s(f'{MF} v[24:27], {vr(64+4*kt,4)}, {vr(88+4*kt,4)}, {"v[24:27]" if kt else 0}')
    for r in range(4): s.tag32(24+r, 24+r)
    s.setexec(0x00010001, 0x00010001)
    s.wst(24, 4, 21, sT)
    s.fullexec()
    s.ts('y_a2')
    s(f"""L_na3:
          s_cmp_lt_u32 s{sI}, {7 if P.pf else 99}
          s_cbranch_scc1 L_ft0
          s_branch L_pf""")
    s(f"""L_qpg:""")
    s.setexec(0x10001, 0x10001)
    s.wst(12, 4, 11, sT+2)
    s(f"""s_mov_b64 exec, -1
          s_add_u32 s{sT}, s{sT}, {QPG-QPL}
          s_branch L_qpb""")
    s('L_pf:')
    s(f's_sub_u32 s{sK}, s{sI}, 7')
    if P.pf & 1:
        s.srd(r4, 'wo')
        s(f"""s_mul_i32 s{sT}, s{sG}, {512*1152}
              s_lshl_b32 s{sT+1}, s{sK}, {16 if P.pf & 4 else 15}
              s_add_u32 s{sT}, s{sT}, s{sT+1}
              s_add_u32 s{sT+1}, s{sT}, {32768 if P.pf & 4 else 256*1152}
              v_lshlrev_b32 v12, 7, v0""")
        if P.pf & 4: s(f'buffer_load_dword v240, v12, s[{r4}:{r4+3}], s{sT} offen {P.pffl}')
        s(f'buffer_load_dword v241, v12, s[{r4}:{r4+3}], s{sT+1} offen {P.pffl}')
    s.column(sT+1, 4, sT)
    s(f"""s_lshl2_add_u32 s{sK}, s{sK}, s{sW}
          s_mul_i32 s{sT+2}, s{sK}, {16*9216}
          s_lshl_b32 s{sT}, s{sT+1}, 7
          s_add_u32 s{sT+2}, s{sT+2}, s{sT}
          s_mul_i32 s{sT+3}, s{sT+1}, {64*1152}
          s_lshl_b32 s{sT}, s{sK}, 11
          s_add_u32 s{sT+3}, s{sT+3}, s{sT}
          v_mul_u32_u24 v12, 9216, v{vL}
          v_lshlrev_b32 v13, 7, v{vL}
          s_mov_b64 exec, 0xffff
          buffer_load_dword v242, v12, s[{r1}:{r1+3}], s{sT+2} offen {P.pffl}
          buffer_load_dword v243, v12, s[{r2}:{r2+3}], s{sT+2} offen {P.pffl}
          buffer_load_dword v240, v13, s[{r3}:{r3+3}], s{sT+3} offen {P.pffl}
          s_mov_b64 exec, -1
          s_branch L_ft0""")

TS_A = dict(start=0, x_a=1, x_issued=2, x_landed=3, x_ready=4, x_qa=5, x_qk=6, x_o=7, d_ml=8,
            y_wq=1, y_wuk=2, y_mod=3, y_qp=4, y_qpok=5, y_qa=6, y_a2=7)
TS_B = dict(start=0, x_o=1, d_ml=2, d_op=3, d_cp=4, e_cp=5, e_tr=6, z_yp=5,
            y_qa=1, y_a2=2, f_data=3, f_g=4, f_ready=6, f_tr=7, f_yp=8)

def build(P):
    s = G(P)
    prologue(s)
    role_x(s)
    role_y(s)
    ffn_compute(s)
    epilogue(s)
    body = s.finalize(verbose=True)
    hdr = open('cdna_kernels/'+NAME+'.s.ref').read().split('\n')
    head = [l for l in hdr[:17]]
    txt = '\n'.join(head) + f"""
; @launch grid=(256,1,1) block=(256,1,1) lds=163840
.amdgcn_target "amdgcn-amd-amdhsa--gfx950"
.text
.globl {NAME}_kernel
.p2align 8
.type {NAME}_kernel,@function
{NAME}_kernel:
""" + body + f""".section .rodata,"a"
.p2align 6
.amdhsa_kernel {NAME}_kernel
  .amdhsa_next_free_vgpr 512
  .amdhsa_next_free_sgpr 102
  .amdhsa_accum_offset 256
  .amdhsa_group_segment_fixed_size 0
  .amdhsa_kernarg_size 120
  .amdhsa_user_sgpr_count 2
  .amdhsa_user_sgpr_kernarg_segment_ptr 1
  .amdhsa_system_sgpr_workgroup_id_x 1
.end_amdhsa_kernel
"""
    return txt

def code_size(txt):
    import subprocess
    open('_g.s', 'w').write(txt.replace('CODE_BYTES', '0x12345'))
    subprocess.check_call(['clang', '-x', 'assembler', '-target', 'amdgcn-amd-amdhsa', '-mcpu=gfx950', '-c', '_g.s', '-o', '_g.o'])
    out = subprocess.check_output(['llvm-objdump', '-h', '_g.o']).decode()
    for l in out.split('\n'):
        f = l.split()
        if len(f) > 2 and f[1] == '.text': return int(f[2], 16)

if __name__ == '__main__':
    ap = argparse.ArgumentParser()
    ap.add_argument('out'); ap.add_argument('--diag', default='')
    for k, v in dict(xw=0, xn=0, na=4, sper=3, pcov=4, oper=3, xft=6, yft=2, phase=0, tgate=12, trep=3, qrep=3, xstop='', ystop='', csp=4, drain=3, pfw=0, nog=0, f2d=0, wob='0808', xfb='0004', drw=0, wuve=1, fpf=0, apf=0, ybar=1, pf=2).items(): ap.add_argument('--'+k, type=type(v), default=v)
    ap.add_argument('--tsop', default='s_memrealtime'); ap.add_argument('--ffl', default='nt'); ap.add_argument('--ffl2', default='nt'); ap.add_argument('--wofl', default='nt'); ap.add_argument('--pffl', default='')
    P = ap.parse_args()
    P.tsmap = {'': {}, 'a': TS_A, 'b': TS_B}[P.diag]
    txt = build(P)
    n = code_size(txt)
    print('code bytes', n)
    txt = txt.replace('CODE_BYTES', str(n))
    open(P.out, 'w').write(txt)
```

```python
from gen5a import *

XA=131072; XS=XA+24576; XUV=131072
QS=98304; MXL=81920; DX=82944; PB=73728
sV=24; vUV=247
def cost(x): return 2 if x.startswith(('v_exp', 'v_rcp', 'v_rsq')) else 1
def fill(items, per=2):
    out = []; cur = []; n = 0
    for x in items:
        if n + cost(x) > per and cur: out.append(cur); cur = []; n = 0
        cur.append(x); n += cost(x)
    if cur: out.append(cur)
    return out
def slots(mf, L):
    out = []
    for i, m in enumerate(mf):
        out.append(m)
        if i < len(L): out += L[i]
    for l in L[len(mf):]: out += l
    return out

def role_x(s):
    P = s.P
    KA=32; VA=48; QO=64; Q0=96; Q1=144; SV=192; PK=208; OT=212; LR=228
    s.voff128(9, 10, 6912, 8, 1)
    s(f"""s_lshl4_add_u32 s{sU}, s{sG}, s{sI}
          s_lshl2_add_u32 s{sK}, s{sI}, s{sG}
          s_cmp_ge_u32 s{sG}, 4
          s_cselect_b32 s{sK}, 99, s{sK}
          {f's_mov_b32 s{sK}, 99' if P.aon else ''}
          s_mul_i32 s{sT+5}, s{sK}, 3641
          s_lshr_b32 s{sT+5}, s{sT+5}, 16
          s_mul_i32 s{sT+6}, s{sT+5}, 18
          s_sub_u32 s{sT+6}, s{sK}, s{sT+6}
          v_lshlrev_b32 v8, 2, v0""")
    s.rowsel(sT+2, sT+3)
    s(f"""s_mul_i32 s{sT+3}, s{sT+5}, 192
          s_add_u32 s{sT+2}, s{sT+2}, s{sT+3}
          s_mul_i32 s{sT+2}, s{sT+2}, 6912
          s_lshl_b32 s{sT+4}, s{sT+6}, 7
          s_add_u32 s{sT+2}, s{sT+2}, s{sT+4}
          s_lshl_b32 s{sT+3}, s{sT+3}, 1
          s_lshl_b32 s{sT+4}, s{sW}, 10
          s_add_u32 m0, s{sT+4}, {XA}
          s_lshl_b32 s{sT}, s{sU}, 17
          s_lshl_b32 s{sT+1}, s{sW}, 15
          s_add_u32 s{sT}, s{sT}, s{sT+1}""")
    for i in range(16): s(f'v_xor_b32 v{32+i}, {fsw(i)<<4}, v{vL16}')
    s(f"""s_waitcnt lgkmcnt(0)
          s_load_dword s{sE}, s[32:33], 0
          s_cmp_ge_u32 s{sK}, 54
          s_cbranch_scc1 L_noA""")
    s.srd(r4, 'wmod'); s.srd(r3, 'c')
    s(f'buffer_load_dword v28, v8, s[{r3}:{r3+3}], s{sT+3} offen')
    for kt in range(6):
        s.dma(9, r4, sT+2)
        if kt < 5: s(f's_add_u32 s{sT+2}, s{sT+2}, {32*6912}\ns_add_u32 m0, m0, 4096')
    s('L_noA:')
    s.srd(r1, 'ckv')
    s(f"""s_getpc_b64 s[{r2}:{r2+1}]
          L_pc:
          s_sub_u32 s{r2}, s{r2}, L_pc-{NAME}_kernel
          s_subb_u32 s{r2+1}, s{r2+1}, 0
          s_mov_b32 s{r2+2}, CODE_BYTES
          s_mov_b32 s{r2+3}, 0x20000
          s_lshl2_add_u32 s{sT+2}, s{sI}, s{sW}
          s_lshl_b32 s{sT+2}, s{sT+2}, 10
          s_mov_b32 m0, s{sT+1}
          buffer_load_dwordx4 v[240:243], v{vL16}, s[{r2}:{r2+3}], s{sT+2} offen""")
    def ckv(i, xw=P.xw, xn=P.xn):
        if i and i % 4 == 0:
            s(f's_add_u32 s{sT}, s{sT}, 4096\ns_add_u32 m0, m0, 4096')
        if xw and max(xw, P.na if P.hsp else 0) <= i < xn: s(f's_waitcnt vmcnt({xw-1})')
        s.dma(32+(i & 15), r1, sT, 'nt', (i & 3)*1024)
    for i in range(P.na): ckv(i)
    s(f"""s_cmp_ge_u32 s{sK}, 54
          s_cbranch_scc1 L_noA2
          s_mul_i32 s{sX}, s{sT+5}, 4608
          s_lshl2_add_u32 s{sT+6}, s{sT+6}, s{sW}
          s_lshl_b32 s{sT+6}, s{sT+6}, 6
          s_add_u32 s{sX}, s{sX}, s{sT+6}
          s_add_u32 s{sX}, s{sX}, {MODP}""")
    s.tr128(20, 22, f's{sW}', XA)
    s.tags()
    s(f"""v_lshlrev_b32 v21, 4, v{vGQ}
          v_add_u32 v22, {XS}, v21
          v_add_u32 v8, {XS}, v8
          s_waitcnt vmcnt({7+P.na})""")
    s.silu(28, 24)
    s(f"""ds_write_b32 v8, v28
          s_waitcnt vmcnt({1+P.na}) lgkmcnt(0)
          s_barrier""")
    for kt in range(6):
        for hh in range(2):
            s(f'ds_read_b64_tr_b16 {vr(64+4*kt+2*hh,2)}, v20 offset:{kt*4096+hh*2048}')
        s(f'ds_read_b128 {vr(88+4*kt,4)}, v22 offset:{kt*64}')
    for kt in range(6):
        s(f's_waitcnt lgkmcnt({15-3*kt})')
        s(f'{MF} v[24:27], {vr(64+4*kt,4)}, {vr(88+4*kt,4)}, {"v[24:27]" if kt else 0}')
    for r in range(4): s.tag32(24+r, 24+r)
    s.setexec(0x00010001, 0x00010001)
    s.wst(24, 4, 21, sX)
    s.fullexec()
    s.ts('x_a')
    if P.hsp:
        for i in range(P.na, P.xn): ckv(i, P.hw, P.hn)
        s('s_branch L_hj')
    s('L_noA2:')
    for i in range(P.na, 32):
        if P.hsp and i == P.xn: s('L_hj:')
        ckv(i)
    s.ts('x_issued')
    s(f's_cmp_lt_u32 s{sK}, 54\ns_cbranch_scc1 L_tg')
    s.tags()
    s('L_tg:')
    for r in (vFO, vGO): s(f'v_mov_b32 v{r}, 0')
    s.headq()
    s.srd(r4, 'wuv'); s.srd(r1, 'wo'); s.srd(r3, 'x')
    s.fsw(8, vP, 9)
    s(f"""v_xor_b32 v8, v8, v{vGQ}
          v_lshlrev_b32 v8, 4, v8
          v_lshl_add_u32 v8, v{vP}, 10, v8
          s_mul_i32 s{sT+2}, s{sW}, {32768+256}
          v_add_u32 v12, s{sT+2}, v8
          v_lshrrev_b32 v10, 2, v{vL}""")
    for q in range(16): s(f'v_xor_b32 v{KA+q}, {((q&3)<<6)|((q>>2)<<8)}, v12')
    s.fsw(8, 10, 9)
    s(f"""v_bfe_u32 v9, v{vL}, 1, 1
          v_xor_b32 v8, v8, v9
          v_lshlrev_b32 v8, 4, v8
          v_lshl_add_u32 v8, v10, 10, v8
          v_and_b32 v9, 1, v{vL}
          v_lshl_add_u32 v8, v9, 3, v8
          s_lshl_b32 s{sT+2}, s{sW}, 8
          v_add_u32 v{VA}, s{sT+2}, v8""")
    for ct in range(1, 8): s(f'v_xor_b32 v{VA+ct}, {ct<<5}, v{VA}')
    for ct in range(8): s(f'v_add_u32 v{VA+8+ct}, 0x10000, v{VA+ct}')
    s.voff256(vUV, 8, 8192)
    s(f"""v_lshrrev_b32 v13, 2, v{vP}
          v_lshlrev_b32 v13, 8, v13
          v_lshl_add_u32 v13, v{vGQ}, 6, v13
          v_and_b32 v9, 3, v{vL}
          v_lshl_add_u32 v13, v9, 4, v13
          {f'v_lshlrev_b32 v13, 4, v{vP}' if P.qal else ''}
          {f'v_lshl_add_u32 v13, v{vGQ}, 9, v13' if P.qal else ''}
          s_lshl_b32 s{sT+2}, s{sW}, 13
          s_add_u32 s{sT+4}, s{sT+2}, {QA}
          s_add_u32 s{sT+5}, s{sT+2}, {QA+4096}
          s_add_u32 s{sT+2}, s{sT+2}, {QS}
          v_add_u32 v14, s{sT+2}, v{vL16}
          v_xor_b32 v15, 0x2000, v14
          v_xor_b32 v16, 0x4000, v14
          v_xor_b32 v17, 0x6000, v14
          v_add_u32 v19, {PB}, v{vL16}
          s_lshl_b32 s{sT+2}, s{sW}, 10
          v_add_u32 v18, s{sT+2}, v19
          v_lshlrev_b32 v20, 4, v{vP}
          v_add_u32 v20, {MXL}, v20
          s_lshl_b32 s{sT+2}, s{sW}, 2
          v_add_u32 v12, s{sT+2}, v20
          v_lshlrev_b32 v21, {4 if P.ost else 17}, v{vP}
          v_lshl_add_u32 v21, v{vGQ}, {19 if P.ost else 4}, v21
          v_lshlrev_b32 v22, 10, v{vP}
          s_lshl_b32 s{sT+6}, s{sW}, 15
          s_lshl_b32 s{sT+2}, s{sU}, 8
          s_add_u32 s{sT+6}, s{sT+6}, s{sT+2}
          s_add_u32 s{sT+6}, s{sT+6}, {OP}
          s_add_u32 s{sN}, s{sT+6}, {16*131072}
          s_and_b32 s{sT+7}, s{sU}, 64
          s_lshl_b32 s{sT+7}, s{sT+7}, 3
          s_and_b32 s{sT+2}, s{sU}, 3
          s_lshl_b32 s{sT+2}, s{sT+2}, 7
          s_add_u32 s{sT+7}, s{sT+7}, s{sT+2}
          s_and_b32 s{sT+2}, s{sU}, 0x3c
          s_lshl1_add_u32 s{sT+7}, s{sT+2}, s{sT+7}
          s_lshl_b32 s{sT+2}, s{sW}, 14
          s_add_u32 s{sT+7}, s{sT+7}, s{sT+2}
          s_add_u32 s{sT+7}, s{sT+7}, {ML}
          s_and_b32 s{sK}, s{sE}, 0xffff""")
    if P.osw:
        s(f"""s_and_b32 s{sT+2}, s{sT+6}, 0x300
              s_andn2_b32 s{sT+6}, s{sT+6}, 0x300
              s_xor_b32 s{sN}, s{sT+6}, {16*131072 + 0x1000}
              v_lshlrev_b32 v9, 8, v{vGQ}
              v_xor_b32 v9, s{sT+2}, v9
              v_add_u32 v21, v21, v9
              s_and_b32 s{sT+2}, s{sT+7}, 0x3ff
              s_andn2_b32 s{sT+7}, s{sT+7}, 0x3ff
              s_lshl_b32 s{sT+3}, s{sW}, 5
              s_xor_b32 s{sT+2}, s{sT+2}, s{sT+3}
              v_lshrrev_b32 v9, 2, v{vP}
              v_lshlrev_b32 v9, 7, v9
              v_and_b32 v10, 3, v{vP}
              v_lshl_add_u32 v9, v10, 3, v9
              v_xor_b32 v9, s{sT+2}, v9
              v_add_u32 v22, v22, v9""")
    s(f"""
          s_mov_b32 s{sC}, {fb(128**-0.5*LOG2E)}
          v_mov_b32 v24, 0x3f803f80
          v_mov_b32 v25, v24
          v_mov_b32 v26, v24
          v_mov_b32 v27, v24
          s_lshl_b32 s{sV}, s{sQ}, 20
          s_lshl_b32 s{sT+1}, s{sW}, 18
          s_add_u32 s{sV}, s{sV}, s{sT+1}
          s_lshl_b32 s{sT+1}, s{sH}, 8
          s_add_u32 s{sV}, s{sV}, s{sT+1}
          s_lshl_b32 s{sV+1}, s{sW}, 13
          s_add_u32 s{sV+1}, s{sV+1}, {XUV}
          s_cmp_lt_u32 s{sI}, 14
          s_cbranch_scc1 L_nfs""")
    s.column(sU, 4, sT)
    s(f"""s_and_b32 s{sT}, s{sI}, 1
          s_lshl1_add_u32 s{sU}, s{sU}, s{sT}""")
    ffn_setup(s, 8)
    s("""L_nfs:
         s_waitcnt vmcnt(16)
         s_barrier""")
    def wuvl():
        s(f's_mov_b32 m0, s{sV+1}')
        for i in range(8):
            s.dma(vUV, r4, sV)
            if i < 7: s(f's_add_u32 s{sV}, s{sV}, {4*8192}\ns_add_u32 m0, m0, 1024')
    wob = [int(c, 36) for c in P.wob]; fb_ = [int(c) for c in P.xfb]
    def dblock(k, extra=None, nb=0):
        w0 = sum(wob[:k]); f0 = sum(fb_[:k])
        if not (wob[k] or fb_[k] or extra): return
        s(f"""s_cmp_ge_u32 s{sI}, 9
              s_cbranch_scc1 L_dbn{k}
              s_lshl_b32 m0, s{sW}, 10""")
        if w0: s(f's_add_u32 m0, m0, {w0*4096}')
        for kt in range(w0, w0+wob[k]):
            s.dma(23, r1, sT, P.wofl)
            s(f's_add_u32 s{sT}, s{sT}, {32*1152}')
            if kt < w0+wob[k]-1: s('s_add_u32 m0, m0, 4096')
        if extra: extra()
        s(f"""L_dbn{k}:
              s_cmp_lt_u32 s{sI}, 14
              s_cbranch_scc1 L_dbp{k}""")
        for q in range(f0, f0+fb_[k]): ffn_tile(s, q, sT)
        if nb and fb_[k]: s(f's_branch L_dbq{k}')
        s(f'L_dbp{k}:')
        if nb: s('s_mov_b64 exec, 1')
        for i in range(nb):
            if i == 3*fb_[k]: s(f'L_dbq{k}:\ns_mov_b64 exec, 1')
            s.wld(25, 1, 20, sV)
        if nb and nb == 3*fb_[k]: s(f'L_dbq{k}:')
        if nb: s.fullexec()
        s(f'L_dbe{k}:')
    assert sum(wob) == 16
    P.xft = sum(fb_)
    if P.wuve == 1: wuvl()
    def kread(kt):
        for q in range(16): s(f'ds_read_b128 {ar((kt*16+q)*4,4)}, v{KA+q} offset:{kt*16384}')
    def vread(hh):
        for ks in range(4):
            for ct in range(8):
                s(f'ds_read_b64_tr_b16 {ar(128+(ct*4+ks)*4+2*hh,2)}, v{VA+ct+(8 if ks>=2 else 0)} offset:{((ks&1)*32+16*hh)*1024}')
    kread(0); vread(0)
    s(f's_waitcnt vmcnt({8 if P.wuve == 1 else 0})\ns_barrier')
    s.ts('x_landed')
    def qal(b, fl):
        for j in range(4):
            for ht in range(2):
                s.wld(QO+(j*2+ht)*4, 4, 13, b+(j >> 1), (j & 1)*2048+ht*(256 if P.qal else 1024), fl)
    if P.qearly: qal(sT+4, 'sc1')
    if P.wuve == 4: wuvl()
    kread(1); vread(1)
    s.voff128(23, 8, 1152, 8, 1)
    s.rowsel(sT, sT+1)
    s(f"""s_lshl_b32 s{sT+1}, s{sG}, 9
          s_add_u32 s{sT}, s{sT}, s{sT+1}
          s_mul_i32 s{sT}, s{sT}, 1152
          s_lshl_b32 s{sT+1}, s{sI}, 7
          s_add_u32 s{sT}, s{sT}, s{sT+1}
          v_mov_b32 v10, 0xff800000
          v_mov_b32 v11, v10
          s_waitcnt lgkmcnt(0)
          s_barrier
          ds_write_b64 v20, v[10:11]""")
    s.ts('x_ready')
    dblock(0)
    lp = s.lab('qa')
    def qal(b, fl):
        for j in range(4):
            for ht in range(2):
                s.wld(QO+(j*2+ht)*4, 4, 13, b+(j >> 1), (j & 1)*2048+ht*(256 if P.qal else 1024), fl)
    if P.qgate:
        s(f"""s_lshl3_add_u32 s{sT+2}, s{sI}, s{sG}
              s_lshl2_add_u32 s{sT+2}, s{sT+2}, s{sW}
              s_lshl_b32 s{sT+2}, s{sT+2}, 6
              s_xor_b32 s{sT+2}, s{sT+2}, {P.qgx*256}
              s_andn2_b32 s{sT+2}, s{sT+2}, {P.qgate*64-1}
              s_add_u32 s{sT+2}, s{sT+2}, {QA}
              s_mov_b64 exec, {(1 << (4*P.qgate)) - 1}
              L_qg:""")
        s.wld(QO, 4, vL16, sT+2, 0)
        s.spin()
        s('s_waitcnt vmcnt(0)')
        s.chk16(28, [(QO+i, i) for i in range(4)]); s.test(28, '0x10001'); s.again('L_qg')
        s.fullexec()
    if P.wuve == 5: wuvl()
    if P.qearly: s(f's_waitcnt vmcnt({8 if P.wuve >= 4 else 0})\ns_branch L_qe')
    s(f'{lp}:')
    qal(sT+4, 'sc1')
    s.fullexec(); s.spin()
    s('s_waitcnt vmcnt(0)')
    s('L_qe:')
    def qk(q, kt, ht, src, first=False):
        d = vr(SV+(kt*2+ht)*4, 4)
        return f'{MF} {d}, {ar((kt*16+q)*4,4)}, {vr(src,4)}, {0 if first else d}'
    own = {ht: [qk(j, kt, ht, QO+(j*2+ht)*4, j == 0) for j in range(4) for kt in range(2)] for ht in range(2)}
    wr = [f'ds_write_b128 v14, {vr(QO+4*i,4)} offset:{i*1024}' for i in (0,2,4,6,1,3,5,7)]
    ck = s.cap(s.chk16, 28, [(QO+i, i & 3) for i in range(32)]) + s.cap(s.test, 28, '0x10001')
    L = [[wr[i]] + ck[4*i:4*i+4] for i in range(8)] + [ck[32:]]
    s.emit(slots(own[0], L))
    s.againq(lp)
    if P.wuve == 2: wuvl()
    if not P.w1: dblock(1)
    s("""s_waitcnt lgkmcnt(0)
         s_barrier""")
    s.ts('x_qa')
    rd = {ht: [f'ds_read_b128 {vr((Q1 if ht else Q0)+((jq-1)*4+j)*4,4)}, v{14+jq} offset:{(j*2+ht)*1024}' for jq in range(1,4) for j in range(4)] for ht in range(2)}
    s.emit(slots(own[1][:4], [rd[0][:6], rd[0][6:]]) if False else rd[0][:4] + slots(own[1][:4], fill(rd[0][4:], 3)))
    for i in range(12):
        s(f's_waitcnt lgkmcnt(11)')
        q = 4+i
        s(qk(q, 0, 0, Q0+4*i)); s(rd[1][i]); s(qk(q, 1, 0, Q0+4*i))
    MT = {0: 28, 1: 30}
    def X8(ht): return [SV+ht*4+r for r in range(4)] + [SV+8+ht*4+r for r in range(4)]
    def smax(ht):
        X = X8(ht)
        return [f'v_max3_f32 v8, v{X[0]}, v{X[1]}, v{X[2]}', f'v_max3_f32 v9, v{X[3]}, v{X[4]}, v{X[5]}',
                f'v_max3_f32 v8, v8, v{X[6]}, v{X[7]}', 'v_max_f32 v8, v8, v9', f'ds_max_f32 v20, v8 offset:{ht*4}']
    def sexp(ht):
        X = X8(ht); m = MT[ht]
        L = [f'v_mul_f32 v{m}, s{sC}, v{m}', f'v_ceil_f32 v{m}, v{m}']
        L += [f'v_fma_f32 v{x}, v{x}, s{sC}, -v{m}' for x in X]
        L += [f'v_exp_f32 v{x}, v{x}' for x in X]
        L += [f'v_cvt_pk_bf16_f32 v{PK+i}, v{X[2*i]}, v{X[2*i+1]}' for i in range(4)]
        return L
    BAR = ['s_waitcnt lgkmcnt(0)', 's_barrier']
    def prd(ht): return [f'ds_read_b128 {vr(QO+ht*16+ks*4,4)}, v19 offset:{ht*4096+ks*1024}' for ks in range(4)]
    def phase(ht, mf, extra, late):
        m = MT[ht]; n = len(mf)
        sm = smax(ht)
        L = [[], ['s_waitcnt lgkmcnt(8)'] if ht == 0 else [], sm[:2], sm[2:], [], [], BAR + [f'ds_read_b32 v{m}, v20 offset:{ht*4}'], extra[:2], extra[2:4], extra[4:6] + [f's_waitcnt lgkmcnt({min(len(extra),6)})']]
        L += fill(sexp(ht), P.sper)
        L[-1] = L[-1] + [f'ds_write_b128 v18, {vr(PK,4)} offset:{ht*4096}', f'{MF} {vr(SV+ht*4,4)}, v[24:27], {vr(PK,4)}, 0']
        L += [[f'v_cvt_i32_f32 v{m}, v{m}', f'v_lshl_or_b32 v{m}, v{m}, 16, s{sK}'], [f'ds_write_b32 v12, v{SV+ht*4} offset:{256+ht*256}']]
        L += late
        k = max(len(L) + 1, n - P.pcov)
        while len(L) < k: L.append([])
        L[-1] = L[-1] + BAR + prd(ht) + [f'ds_read_b128 {vr(LR+4*ht,4)}, v20 offset:{256+ht*256}']
        return slots(mf, L)
    def mlst(ht):
        l = s.lab('nml'); m = MT[ht]
        b = LR+4*ht
        s(f"""s_cmp_lg_u32 s{sW}, {ht}
              s_cbranch_scc1 {l}
              v_add_f32 v{b}, v{b}, v{b+1}
              v_add_f32 v{b+2}, v{b+2}, v{b+3}
              v_add_f32 v{b}, v{b}, v{b+2}
              s_mov_b64 exec, 0xffff""")
        s.tag32(m+1, b)
        s.wst(m, 2, 22, sT+7)
        s(f's_mov_b64 exec, -1\n{l}:')
    def pv(ht, ks, ct):
        d = vr((Q1 if ht else Q0)+ct*4, 4)
        if P.ost: return f'{MF} {d}, {vr(QO+ht*16+ks*4,4)}, {ar(128+(ct*4+ks)*4,4)}, {d if ks else 0}'
        return f'{MF} {d}, {ar(128+(ct*4+ks)*4,4)}, {vr(QO+ht*16+ks*4,4)}, {d if ks else 0}'
    def pvl(ht): return [pv(ht, ks, 2*d+c) for d in range(4) for ks in range(4) for c in range(2)]
    def opk(ht, d):
        O = (Q1 if ht else Q0) + 8*d; T = O
        L = []
        if P.ost:
            T = (Q1 if ht else Q0) + 32
            for r in range(4):
                L += s.cap(s.packtag, T+4*r+d, O+r, O+4+r, d)
                if d == 3:
                    b = sN if ht else sT+6
                    if r and P.osw: L += [f's_xor_b32 s{b}, s{b}, {0x60c00 if r == 2 else 0x20400}']
                    elif r: L += [f's_add_u32 s{b}, s{b}, {1<<17}']
                    L += s.cap(s.wst, T+4*r, 4, 21, b)
            return L
        for i in range(4): L += s.cap(s.packtag, T+i, O+2*i, O+2*i+1, i)
        return L + s.cap(s.wst, T, 4, 21, sN if ht else sT+6, d*64)
    mf1 = own[1][4:] + [qk(4+i, kt, 1, Q1+4*i) for i in range(12) for kt in range(2)]
    s.emit(phase(0, mf1, [], []))
    s.ts('x_qk')
    if P.wuve == 3: wuvl()
    if P.w1: dblock(1)
    s('s_waitcnt lgkmcnt(0)')
    UA = 56 if P.wuve >= 2 else 10
    uva = s.cap(lambda: (s(f's_lshl_b32 s{sT+2}, s{sW}, 1'), s.tr256(UA, UA+1, f's{sT+2}', XUV, 1024), s(f'v_xor_b32 v{UA+1}, 32, v{UA}')))
    pv0 = pvl(0)
    s.emit(phase(1, pv0, [], fill(opk(0, 0), 2)))
    s('s_waitcnt lgkmcnt(0)')
    pv1 = pvl(1)
    L = [s.cap(mlst, 0), s.cap(mlst, 1)] + fill(opk(0, 1) + opk(0, 2) + opk(0, 3) + opk(1, 0) + opk(1, 1), P.oper)
    while len(L) < 26: L.append([])
    L += fill(opk(1, 2), P.oper)
    s.emit(slots(pv1, L))
    s.emit(opk(1, 3))
    s.ts('x_o')
    def m2l():
        for kp, so in enumerate((sT+6, sT+7, sV+2)):
            s.wld((24, 28, 29)[kp], 1, 22, so); s.wld((25, 30, 31)[kp], 1, 21, so)
    def eloads():
        s(f"""s_lshl2_add_u32 s{sT+4}, s{sI}, s{sW}
              s_lshl_b32 s{sT+5}, s{sT+4}, 5
              s_lshl_b32 s{sT+6}, s{sT+4}, 6
              s_add_u32 s{sT+6}, s{sT+6}, {MOD2}
              s_add_u32 s{sT+7}, s{sT+6}, 9216
              s_add_u32 s{sV+2}, s{sT+6}, 18432
              v_mov_b32 v27, v23
              v_lshlrev_b32 v23, 1, v{vP}
              v_lshlrev_b32 v22, 2, v{vP}
              v_add_u32 v21, 4608, v22
              buffer_load_ushort v26, v23, s[{r3}:{r3+3}], s{sT+5} offen""")
        m2l()
    dblock(2)
    s(f"""s_lshl_b32 s{sV}, s{sH}, 10
          s_add_u32 s{sV}, s{sV}, {ML}
          s_and_b32 s{sT+1}, s{sW}, 1
          s_lshl_b32 s{sT+1}, s{sT+1}, 6
          s_and_b32 s{sT+2}, s{sW}, 2
          s_lshl_b32 s{sT+2}, s{sT+2}, 8
          s_add_u32 s{sT+1}, s{sT+1}, s{sT+2}
          v_lshlrev_b32 v8, 3, v{vL}
          v_xor_b32 v8, s{sT+1}, v8
          v_xor_b32 v9, 512, v8
          s_lshl2_add_u32 s{sT+2}, s{sH}, s{sQ}
          s_lshl2_add_u32 s{sT+2}, s{sT+2}, s{sW}
          s_lshl_b32 s{sT+2}, s{sT+2}, 13
          s_add_u32 s{sV+1}, s{sT+2}, {OP}
          s_add_u32 s{sV+3}, s{sT+2}, {OP+4096}""")
    def opl(i): s.wld(64+4*i, 4, vL16, sV+1+2*(i >> 2), (i & 3)*1024)
    s.emit(uva)
    def uvrd():
        for j in range(4):
            for c in range(2):
                for hh in range(2):
                    s(f'ds_read_b64_tr_b16 {ar((j*2+c)*4+2*hh,2)}, v{UA+c} offset:{(8*j+4*hh)*1024}')
    if P.wuve < 2: uvrd()
    for i in range(8): s(f'v_mov_b32 v{48+i}, 0')
    s(f"""s_mul_i32 s{sT+2}, s{sW}, 272
          s_add_u32 s{sT+2}, s{sT+2}, {DX}
          v_lshlrev_b32 v18, 4, v{vP}
          v_lshl_add_u32 v18, v{vGQ}, 2, v18
          v_and_b32 v19, 3, v{vP}""")
    if P.ost:
        s(f"""v_lshrrev_b32 v18, 2, v{vP}
              v_lshlrev_b32 v18, 4, v18
              v_lshl_add_u32 v18, v{vGQ}, 6, v18
              v_lshl_add_u32 v18, v19, 1, v18""")
    s(f"""v_add_u32 v18, s{sT+2}, v18
          v_mul_u32_u24 v19, 272, v19
          v_lshl_add_u32 v19, v{vGQ}, 4, v19
          v_add_u32 v19, {DX}, v19
          v_lshlrev_b32 v20, 1, v{vL}""")
    s.tr128(10, 11, f's{sW}', 0)
    s(f"""v_add_u32 v11, 0x8000, v10
          s_waitcnt vmcnt({P.drw})
          L_ml:""")
    s.wld(12, 2, 8, sV); s.wld(14, 2, 9, sV)
    s.spin()
    s(f"""s_waitcnt vmcnt(0)
          v_xor_b32 v16, s{sE}, v12
          v_xor_b32 v17, s{sE}, v13
          v_bitop3_b32 v16, v14, s{sE}, v16 bitop3:0xbe
          v_bitop3_b32 v17, v15, s{sE}, v17 bitop3:0xbe
          v_lshlrev_b32 v16, 16, v16
          v_lshl_or_b32 v16, v17, 24, v16
          v_cmp_ne_u32 vcc, 0, v16
          v_max_i32 v16, v12, v14
          s_cbranch_vccnz L_ml""")
    s.ts('d_ml')
    for i in range(8): opl(i)
    def word(a, b):
        for kt in range(a, b):
            for hh in range(2):
                off = kt*4096+hh*2048
                s(f'ds_read_b64_tr_b16 {ar(32+4*kt+2*hh,2)}, v{10 if off<0x8000 else 11} offset:{off if off<0x8000 else off-0x8000}')
    w3 = 16 - wob[3]
    if P.wuve >= 2: s('s_barrier'); uvrd()
    s(f's_cmp_ge_u32 s{sI}, 9\ns_cbranch_scc1 L_nw')
    eloads()
    if P.wuve < 2: s('s_barrier')
    word(0, w3)
    s(f"""s_lshl_b32 m0, s{sW}, 10
          s_add_u32 m0, m0, {w3*4096}
          L_nw:""")
    s.wave_red('v_max_i32', 16, 17)
    s("""v_sub_u32 v12, v12, v16
         v_sub_u32 v14, v14, v16
         v_ashrrev_i32 v12, 16, v12
         v_ashrrev_i32 v14, 16, v14
         v_add_u32 v12, 127, v12
         v_add_u32 v14, 127, v14
         v_max_i32 v12, 0, v12
         v_max_i32 v14, 0, v14
         v_lshlrev_b32 v17, 7, v12
         v_lshlrev_b32 v12, 23, v12
         v_lshlrev_b32 v14, 23, v14""")
    for i in range(8):
        s(f'v_mov_b32_dpp v{40+i}, v17 row_newbcast:{i} {DPP}\nv_mov_b32_dpp v{32+i}, v12 row_newbcast:{i} {DPP}')
    s("""v_mul_f32 v16, v12, v13
         v_fmac_f32 v16, v14, v15""")
    s.wave_red('v_add_f32', 16, 17)
    def opstep(i, cnt, first):
        pm = f's[{sPM+2*i}:{sPM+2*i+1}]'
        if not first: s(f's_mov_b64 exec, {pm}\ns_cbranch_execz L_ops{i}')
        else: s(f's_waitcnt vmcnt({cnt})')
        s.chk16(17, [(64+4*i+d, d) for d in range(4)]); s.test(17, '0x10001')
        s(f"""s_wqm_b64 {pm}, vcc
              s_andn2_b64 exec, exec, {pm}
              s_or_b64 s[{sM}:{sM+1}], s[{sM}:{sM+1}], vcc""")
        for d in range(4):
            s(f'v_dot2c_f32_bf16 v{48+2*d}, v{64+4*i+d}, v{40+i}')
            s(f'v_dot2c_f32_bf16 v{49+2*d}, v{64+4*i+d}, v{32+i}')
        if not first: s(f'L_ops{i}:')
        else: s.fullexec()
    def oppass(ne, items):
        n = 0
        for i in range(8):
            opstep(i, 7-i+ne+n, True)
            k = (len(items)*(i+1)+7)//8
            for f in items[n:k]: f()
            n = k
    def wo1():
        s.dma(27, r1, sT, P.wofl)
        s(f's_add_u32 s{sT}, s{sT}, {32*1152}\ns_add_u32 m0, m0, 4096')
    f3 = 3*sum(fb_[:3])
    s(f"""v_rcp_f32 v16, v16
          s_mov_b64 s[{sM}:{sM+1}], 0
          s_cmp_ge_u32 s{sI}, 9
          s_cbranch_scc1 L_op2""")
    oppass(7, [wo1]*wob[3])
    s('L_ope:')
    s(f"""s_cmp_lg_u64 s[{sM}:{sM+1}], 0
          s_cbranch_scc1 L_opr
          s_mov_b64 exec, -1""")
    s.ts('d_op')
    for e in range(4): s(f'v_permlane32_swap_b32 v{48+e}, v{52+e}')
    for e in range(4): s(f'v_add_f32 v{48+e}, v{48+e}, v{52+e}')
    for e in range(2): s(f'v_permlane16_swap_b32 v{48+e}, v{50+e}')
    for e in range(2): s(f'v_add_f32 v{48+e}, v{48+e}, v{50+e}')
    s(f"""v_cvt_pk_bf16_f32 v48, v48, v49
          {'ds_write_b16 v18, v48' + chr(10) + 'ds_write_b16_d16_hi v18, v48 offset:8' if P.ost else 'ds_write_b32 v18, v48'}
          s_add_u32 s{sT+2}, s{sX}, {CPL}
          s_add_u32 s{sT+3}, s{sX}, {CPG}
          s_mov_b32 s{sM}, 0xffff0000
          s_mov_b32 s{sM+1}, 0xffff0000
          s_waitcnt lgkmcnt(0)
          s_barrier""")
    for j in range(4): s(f'ds_read_b128 {vr(32+4*j,4)}, v19 offset:{j*64}')
    for j in range(4):
        s(f's_waitcnt lgkmcnt({3-j})')
        for c in range(2):
            d = vr(48+4*c, 4)
            s(f'{MF} {d}, {vr(32+4*j,4)}, {ar((j*2+c)*4,4)}, {d if j else 0}')
    s(f"""v_add_f32 v48, v48, v49
          v_add_f32 v50, v50, v51
          v_add_f32 v52, v52, v53
          v_add_f32 v54, v54, v55
          v_add_f32 v48, v48, v50
          v_add_f32 v52, v52, v54
          v_cndmask_b32 v48, v48, v52, s[{sM}:{sM+1}]
          v_mul_f32 v48, v48, v16""")
    s.gather8(12, 48)
    s('s_mov_b64 exec, 0x01010101')
    s.wst(12, 4, 20, sT+2, 0, '')
    s.ts('d_cp')
    s(f"""s_cmp_ge_u32 s{sI}, 9
          s_cbranch_scc1 L_nE2
          s_mov_b64 exec, -1""")
    s(f"""v_lshlrev_b32 v8, 6, v{vP}
          v_lshl_add_u32 v8, v{vGQ}, 4, v8
          s_lshl_b32 s{sT}, s{sG}, 12
          s_add_u32 s{sT}, s{sT}, {CPL}""")
    def cpl():
        for st in range(4): s.wld(32+4*st, 4, vL16 if P.exp & 1 else 8, sT, st*1024)
    cpl()
    s(f"""s_mov_b32 s{sN}, 0
          s_lshl_b32 s{sT+5}, s{sT+4}, 9
          s_lshl_b32 s{sT+1}, s{sG}, 6
          s_add_u32 s{sT+5}, s{sT+5}, s{sT+1}
          s_add_u32 s{sT+5}, s{sT+5}, {TR}
          s_mul_i32 s{sT+1}, s{sG}, 2304
          s_lshl_b32 s{sT+4}, s{sT+4}, 6
          s_add_u32 s{sT+4}, s{sT+4}, s{sT+1}
          s_add_u32 s{sT+4}, s{sT+4}, {T32}
          s_cmp_eq_u32 s{sG}, 0
          s_cselect_b32 s{sT+1}, -1, 0
          s_mov_b32 s{sPM}, 0
          s_mov_b32 s{sPM+1}, -1
          s_waitcnt vmcnt(5)""")
    if wob[3]: s('s_barrier'); word(w3, 16)
    s('L_m2b:')
    s.chk32(9, [24, 25, 28, 29, 30, 31]); s.test(9, '0xff')
    s(f"""s_cbranch_vccnz L_m2
          v_lshlrev_b32 v26, 16, v26
          v_and_b32 v26, s{sT+1}, v26
          v_add_f32 v24, v24, v28
          v_add_f32 v25, v25, v30
          v_add_f32 v24, v24, v29
          v_add_f32 v25, v25, v31
          v_cvt_pk_bf16_f32 v24, v24, v25
          v_and_b32 v25, 0xffff0000, v24
          v_lshlrev_b32 v24, 16, v24
          v_add_f32 v25, 1.0, v25
          v_cvt_pk_bf16_f32 v25, v25, v25
          v_and_b32 v25, 0xffff0000, v25
          v_cndmask_b32 v25, 1.0, v25, s[{sM}:{sM+1}]
          s_branch L_cpb
          L_cp:""")
    cpl()
    s.spin()
    s(f"""s_add_u32 s{sN}, s{sN}, 1
          s_cmp_eq_u32 s{sN}, {NLOC}
          s_cbranch_scc1 L_cpg
          L_cpb:
          s_waitcnt vmcnt(0) lgkmcnt(0)""")
    mf = [f'{MF} {vr(48+4*hd,4)}, {vr(32+4*st,4)}, {ar(32+(hd*4+st)*4,4)}, {vr(48+4*hd,4) if st else 0}' for hd in range(4) for st in range(4)]
    ck = s.cap(s.chk16, 9, [(32+i, i & 3) for i in range(16)]) + s.cap(s.test, 9, '0x10001')
    s.emit(slots(mf[:6], fill(ck, 3)))
    s.again('L_cp')
    s.ts('e_cp')
    def sum4(b): return [f'v_add_f32 v{b}, v{b}, v{b+1}', f'v_add_f32 v{b+2}, v{b+2}, v{b+3}', f'v_add_f32 v{b}, v{b}, v{b+2}']
    L = [sum4(48)[:2], sum4(48)[2:], [], [], sum4(52)[:2], sum4(52)[2:], [f'v_cndmask_b32 v48, v48, v52, s[{sM}:{sM+1}]'], [], sum4(56)[:2], sum4(56)[2:]]
    s.emit(slots(mf[6:], L))
    s.emit(sum4(60))
    s(f"""v_cndmask_b32 v56, v56, v60, s[{sM}:{sM+1}]
          v_cndmask_b32 v48, v48, v56, s[{sPM}:{sPM+1}]""")
    s.xgq('v_add_f32', 48, 49)
    s(f"""v_fma_f32 v48, v48, v24, v26
          v_mul_f32 v49, v48, v25""")
    s.gather8(52, 49)
    s.tag32(48, 48)
    s('s_mov_b64 exec, 0x01010101')
    s.wst(52, 4, 20, sT+5)
    s.wst(12, 4, 20, sT+3)
    s('s_mov_b64 exec, 0xffff')
    s.wst(48, 1, 22, sT+4)
    s.ts('e_tr')
    s('s_branch L_done')
    s('L_xf:\ns_barrier'); ffn_g(s); s(f's_branch L_ft{P.xft}')
    s('L_opr:')
    for i in range(8):
        s(f"""s_mov_b64 exec, s[{sPM+2*i}:{sPM+2*i+1}]
              s_cbranch_execz L_opn{i}""")
        opl(i)
        s(f'L_opn{i}:')
    s.fullexec(); s.spin()
    s(f's_waitcnt vmcnt(0)\ns_mov_b64 s[{sM}:{sM+1}], 0')
    for i in range(8): opstep(i, 0, False)
    s('s_branch L_ope\nL_op2:')
    if fb_[3]:
        s(f's_cmp_ge_u32 s{sI}, 14\ns_cbranch_scc1 L_op3')
    oppass(0, [])
    s('s_branch L_ope')
    if fb_[3]:
        s('L_op3:')
        oppass(0, [(lambda q=q: ffn_tile(s, 0, sT, q)) for q in range(f3, f3+3*fb_[3])])
        s('s_branch L_ope')
    s('L_m2:')
    m2l()
    s.spin()
    s('s_waitcnt vmcnt(0)\ns_branch L_m2b')
    s(f"""L_cpg:
          s_mov_b64 exec, 0x01010101""")
    s.wst(12, 4, 20, sT+3)
    s(f"""s_mov_b64 exec, -1
          s_add_u32 s{sT}, s{sT}, {CPG-CPL}
          s_branch L_cpb""")
    s('L_nE2:')
    s.wst(12, 4, 20, sT+3)
    s(f"""s_mov_b64 exec, -1
          s_cmp_ge_u32 s{sI}, 14
          s_cbranch_scc1 L_xf
          s_sub_u32 s{sU}, s{sI}, 9
          s_lshl3_add_u32 s{sU}, s{sU}, s{sG}
          s_cmp_ge_u32 s{sU}, 36
          s_cbranch_scc1 L_done
          s_cmp_lg_u32 s{sW}, 0
          s_cbranch_scc1 L_done""")
    s.srd(r4, 'out')
    s(f"""s_mul_i32 s{sT}, s{sU}, 7282
          s_lshr_b32 s{sT}, s{sT}, 16
          s_mul_i32 s{sT+1}, s{sT}, 9
          s_sub_u32 s{sT+1}, s{sU}, s{sT+1}
          s_mul_i32 s{sT}, s{sT}, 144
          s_lshr_b32 s{sT+2}, s{sT+1}, 2
          s_lshl_b32 s{sT+2}, s{sT+2}, 6
          s_add_u32 s{sT}, s{sT}, s{sT+2}
          s_and_b32 s{sT+2}, s{sT+1}, 3
          s_lshl2_add_u32 s{sT}, s{sT+2}, s{sT}
          s_cmp_eq_u32 s{sT+1}, 8
          s_cselect_b32 s{sT+2}, 4, 1
          s_cselect_b32 s{sT+3}, 1, 16
          v_and_b32 v8, 3, v{vL}
          v_mul_u32_u24 v9, s{sT+2}, v8
          v_mul_u32_u24 v8, s{sT+3}, v{vGQ}
          v_add3_u32 v9, v9, v8, s{sT}
          v_lshlrev_b32 v10, 2, v9
          v_lshlrev_b32 v9, 1, v9
          v_lshrrev_b32 v11, 2, v{vP}
          v_mul_u32_u24 v11, 2304, v11
          v_add_u32 v11, v11, v10
          s_mov_b32 s{sT+4}, {T32}
          s_mov_b32 s{sT+5}, {T32+4*2304}
          s_mov_b32 s{sT+6}, {MOD2+3*2304}
          s_mov_b32 s{sT+7}, {MOD2+3*2304+9216}
          s_mov_b32 s{sT+3}, {MOD2+3*2304+18432}
          s_mul_i32 s{sT}, s{sU}, 9216
          s_add_u32 s{sT}, s{sT}, {YP}
          s_add_u32 s{sT+1}, s{sT}, 4096
          s_add_u32 s{sT+2}, s{sT}, 8192
          L_t32:""")
    s.wld(24, 1, 11, sT+4); s.wld(25, 1, 11, sT+5); s.wld(26, 1, 10, sT+6); s.wld(27, 1, 10, sT+7); s.wld(28, 1, 10, sT+3)
    s.spin()
    s('s_waitcnt vmcnt(0)')
    s.chk32(15, [24, 25, 26, 27, 28]); s.test(15, '0xff'); s.again('L_t32')
    s(f"""v_add_f32 v24, v24, v25
          v_add_f32_dpp v24, v24, v24 row_ror:4 {DPP}
          v_add_f32_dpp v24, v24, v24 row_ror:8 {DPP}
          v_add_f32 v26, v26, v27
          v_add_f32 v26, v26, v28""")
    s.bfr(24, 24); s.bfr(26, 26)
    s('L_yp:')
    for i in range(9): s.wld(64+4*i, 4, vL16, sT+(i >> 2), (i & 3)*1024)
    s.fullexec(); s.spin()
    s('s_waitcnt vmcnt(0)')
    s.chk32(15, [64+4*i for i in range(9)]); s.test(15, '0xff'); s.againq('L_yp')
    s.ts('z_yp')
    for a, b in ((0,1),(2,3),(4,5),(6,7),(0,8),(2,4),(0,6),(0,2)):
        for h in range(2): s(f'v_pk_add_f32 {vr(64+4*a+2*h,2)}, {vr(64+4*a+2*h,2)}, {vr(64+4*b+2*h,2)}')
    s(f"""v_permlane32_swap_b32 v64, v66
          v_permlane32_swap_b32 v65, v67
          v_add_f32 v64, v64, v66
          v_add_f32 v65, v65, v67
          v_permlane16_swap_b32 v64, v65
          v_add_f32 v64, v64, v65
          v_add_f32_dpp v64, v64, v64 row_ror:4 {DPP}
          v_add_f32_dpp v64, v64, v64 row_ror:8 {DPP}""")
    s.bfr(64, 64)
    s('v_mul_f32 v64, v64, v26')
    s.bfr(64, 64)
    s(f"""v_add_f32 v64, v64, v24
          v_cvt_pk_bf16_f32 v64, v64, v64""")
    s.setexec(0x000f000f, 0x000f000f)
    s(f"""buffer_store_short v64, v9, s[{r4}:{r4+3}], 0 offen
          s_cmp_lg_u32 s{sU}, 0
          s_cbranch_scc1 L_done
          s_mov_b64 exec, 1
          v_mov_b32 v8, 0
          v_mov_b32 v9, s{sE}
          buffer_store_dword v9, v8, s[{rWS}:{rWS+3}], 0 offen sc1
          s_branch L_done""")
```

```python
from gen5a import *
from gen5x import *

Y_WQ=0; Y_WUK=41472; Y_H=153600
def role_y(s):
    P = s.P
    s('L_Y:')
    if P.aon:
        s.voff128(40, 41, 6912, 8, 1)
        if P.aon == 1:
            s(f"""s_lshl2_add_u32 s{sN}, s{sI}, s{sG}
                  s_cmp_ge_u32 s{sG}, 4
                  s_cselect_b32 s{sN}, 99, s{sN}""")
        elif P.aon == 2: s(f's_lshl3_add_u32 s{sN}, s{sI}, s{sG}')
        else:
            s(f"""s_lshr_b32 s{sN}, s{sI}, 1
                  s_lshl3_add_u32 s{sN}, s{sN}, s{sG}
                  s_bitcmp1_b32 s{sI}, 0
                  s_cselect_b32 s{sN}, 99, s{sN}""")
        s(f"""s_mul_i32 s{sT+5}, s{sN}, 3641
              s_lshr_b32 s{sT+5}, s{sT+5}, 16
              s_mul_i32 s{sT+6}, s{sT+5}, 18
              s_sub_u32 s{sT+6}, s{sN}, s{sT+6}
              v_lshlrev_b32 v44, 2, v0""")
        s.rowsel(sT+7, sM)
        s(f"""s_mul_i32 s{sM}, s{sT+5}, 192
              s_add_u32 s{sT+7}, s{sT+7}, s{sM}
              s_mul_i32 s{sT+7}, s{sT+7}, 6912
              s_lshl_b32 s{sM+1}, s{sT+6}, 7
              s_add_u32 s{sT+7}, s{sT+7}, s{sM+1}
              s_lshl_b32 s{sM}, s{sM}, 1
              s_lshl_b32 s{sM+1}, s{sW}, 10
              s_add_u32 m0, s{sM+1}, 81920""")
    s.voff256(18, 19, 8192)
    s.headq()
    s(f"""s_mul_i32 s{sT}, s{sQ}, {144*8192}
          s_lshl_b32 s{sT+1}, s{sH}, 8
          s_add_u32 s{sT}, s{sT}, s{sT+1}
          s_lshl_b32 s{sT+1}, s{sW}, 18
          s_add_u32 s{sT+1}, s{sT+1}, s{sT}
          s_mul_i32 s{sT+2}, s{sW}, {8*1152}
          v_lshlrev_b32 v20, 2, v{vL}
          v_min_u32 v9, 35, v{vL}
          s_mul_i32 s{sT+4}, s{sW}, 36
          v_add_u32 v9, s{sT+4}, v9
          s_mul_i32 s{sT+4}, s{sQ}, 144
          v_add_u32 v10, s{sT+4}, v9
          v_lshlrev_b32 v11, 1, v10
          s_waitcnt lgkmcnt(0)
          s_load_dword s{sE}, s[32:33], 0""")
    YA=81920; YS=YA+24576
    if P.aon:
        s(f's_cmp_ge_u32 s{sN}, 54\ns_cbranch_scc1 L_ynA')
        s.srd(r4, 'wmod'); s.srd(r2, 'c')
        s(f'buffer_load_dword v45, v44, s[{r2}:{r2+3}], s{sM} offen')
        for kt in range(6):
            s.dma(40, r4, sT+7)
            if kt < 5: s(f's_add_u32 s{sT+7}, s{sT+7}, {32*6912}\ns_add_u32 m0, m0, 4096')
        s('L_ynA:')
    s.srd(r1, 'wq'); s.srd(r3, 'x')
    def wq(i):
        if i < 8:
            s(f"""s_add_u32 s{sT+3}, s{sT+1}, {(8*(i&3)+4*(i>>2))*8192}
                  s_add_u32 m0, s{sT+2}, {Y_WQ+i*1152}""")
        else:
            s(f"""s_lshl_b32 s{sT+3}, s{sW}, 15
                  s_add_u32 s{sT+3}, s{sT+3}, s{sT}
                  s_add_u32 s{sT+3}, s{sT+3}, {128*8192}
                  s_mul_i32 s{sT+4}, s{sW}, 1152
                  s_add_u32 m0, s{sT+4}, {Y_WQ+32*1152}""")
        s.dma(18, r1, sT+3)
    wq(0)
    s(f"""buffer_load_dwordx4 v[12:15], v{vL16}, s[{r3}:{r3+3}], 0 offen
          buffer_load_dword v16, v20, s[{r3}:{r3+3}], 0 offen offset:1024
          buffer_load_ushort v17, v11, s[{r3}:{r3+3}], 0 offen""")
    if P.aon:
        na = P.yna
        for i in range(1, 1+na): wq(i)
        s.tags()
        s(f"""s_cmp_ge_u32 s{sN}, 54
              s_cbranch_scc1 L_ynA2
              s_mul_i32 s{sM}, s{sT+5}, 4608
              s_lshl2_add_u32 s{sT+6}, s{sT+6}, s{sW}
              s_lshl_b32 s{sT+6}, s{sT+6}, 6
              s_add_u32 s{sM}, s{sM}, s{sT+6}
              s_add_u32 s{sM}, s{sM}, {MODP}""")
        s.tr128(50, 51, f's{sW}', YA)
        s(f"""v_lshlrev_b32 v51, 4, v{vGQ}
              v_add_u32 v52, {YS}, v51
              v_add_u32 v44, {YS}, v44
              s_waitcnt vmcnt({10+na})""")
        s.silu(45, 46)
        s(f"""ds_write_b32 v44, v45
              s_waitcnt vmcnt({4+na}) lgkmcnt(0)
              s_barrier""")
        for kt in range(6):
            for hh in range(2):
                s(f'ds_read_b64_tr_b16 {vr(64+4*kt+2*hh,2)}, v50 offset:{kt*4096+hh*2048}')
            s(f'ds_read_b128 {vr(88+4*kt,4)}, v52 offset:{kt*64}')
        for kt in range(6):
            s(f's_waitcnt lgkmcnt({15-3*kt})')
            s(f'{MF} v[60:63], {vr(64+4*kt,4)}, {vr(88+4*kt,4)}, {"v[60:63]" if kt else 0}')
        for r in range(4): s.tag32(60+r, 60+r)
        s.setexec(0x00010001, 0x00010001)
        s.wst(60, 4, 51, sM)
        s.fullexec()
        s.ts('y_a')
        s('L_ynA2:')
        for i in range(1+na, 9): wq(i)
    else:
        for i in range(1, 9): wq(i)
    s.srd(r2, 'wuk')
    s(f"""s_lshl_b32 s{sT}, s{sI}, 18
          s_lshl_b32 s{sT+1}, s{sW}, 16
          s_add_u32 s{sT}, s{sT}, s{sT+1}
          s_lshl_b32 s{sT+1}, s{sG}, 10
          s_add_u32 s{sT}, s{sT}, s{sT+1}
          s_mul_i32 s{sT+2}, s{sW}, {8*1040}""")
    NS = P.ysp
    s(f's_mov_b32 s{sK}, s{sT}\ns_mov_b32 s{sC}, s{sT+2}')
    def wuk(a, b):
        for i in range(a, b):
            s(f"""s_add_u32 s{sU}, s{sK}, {i*8192}
                  s_add_u32 m0, s{sC}, {Y_WUK+i*1040}""")
            s.dma(vL16, r2, sU)
    wuk(0, NS)
    if not P.aon: s.tags()
    s(f"""v_lshlrev_b32 v10, 2, v10
          s_mov_b32 s{sT+5}, {MODP}
          s_mov_b32 s{sT+6}, {MODP+4608}
          s_mov_b32 s{sT+7}, {MODP+9216}""")
    def mload():
        for kp in range(3):
            s.wld(24+kp, 1, 10, sT+5+kp); s.wld(27+kp, 1, 10, sT+5+kp, 2304)
    s(f's_waitcnt vmcnt({8+NS})')
    s('v_mov_b32 v20, 0\nv_mov_b32 v21, 0')
    for q in range(5):
        s(f"""v_lshlrev_b32 v22, 16, v{12+q}
              v_and_b32 v23, 0xffff0000, v{12+q}
              v_add_f32 v20, v20, v22
              v_fmac_f32 v21, v22, v22
              v_add_f32 v20, v20, v23
              v_fmac_f32 v21, v23, v23""")
    s.wave_red('v_add_f32', 20, 22); s.wave_red('v_add_f32', 21, 22)
    s(f"""v_mul_f32 v20, {fb(1/576)}, v20
          v_mul_f32 v21, {fb(1/576)}, v21
          v_fma_f32 v21, -v20, v20, v21""")
    s.bfr(20, 20); s.bfr(21, 21)
    s(f'v_add_f32 v21, {fb(1e-5)}, v21'); s.bfr(21, 21)
    s('v_sqrt_f32 v21, v21'); s.bfr(21, 21)
    s("""v_rcp_f32 v21, v21
         v_lshlrev_b32 v17, 16, v17
         v_sub_f32 v17, v17, v20""")
    s.bfr(17, 17)
    s('v_mul_f32 v17, v17, v21'); s.bfr(17, 17)
    if NS == 8: mload()
    s(f's_lshl_b32 s{sT}, s{sW}, 1')
    s.tr256(20, 22, f's{sT}', Y_WQ)
    s(f"""v_xor_b32 v21, 32, v20
          v_lshlrev_b32 v9, 1, v9
          v_add_u32 v9, {Y_H}, v9
          v_lshlrev_b32 v11, 4, v{vGQ}
          v_add_u32 v18, {Y_H}, v11
          v_lshlrev_b32 v19, 3, v{vGQ}
          v_lshl_add_u32 v8, v{vP}, 6, v11
          v_and_b32 v22, 7, v{vP}
          v_mul_u32_u24 v22, 1040, v22
          v_add_u32 v22, v22, v19
          v_lshrrev_b32 v23, 3, v{vP}
          v_lshl_add_u32 v22, v23, 8, v22
          s_add_u32 s{sT+2}, s{sT+2}, {Y_WUK}
          v_add_u32 v22, s{sT+2}, v22
          v_add_u32 v19, {Y_H+256}, v19
          s_lshl_b32 s{sT}, s{sG}, 12
          s_add_u32 s{sT}, s{sT}, {QPL}
          s_add_u32 s{sT+1}, s{sX}, {QPL}
          s_add_u32 s{sT+2}, s{sX}, {QPG}
          {f's_lshl2_add_u32 s{sT+3}, s{sI}, s{sW}' if P.qal else f's_lshl3_add_u32 s{sT+3}, s{sI}, s{sG}'}
          {f's_lshl3_add_u32 s{sT+3}, s{sT+3}, s{sG}' if P.qal else f's_lshl2_add_u32 s{sT+3}, s{sT+3}, s{sW}'}
          s_lshl_b32 s{sT+3}, s{sT+3}, 6
          s_add_u32 s{sT+3}, s{sT+3}, {QA}
          s_mov_b32 s{sN}, 0
          s_mov_b32 s{sM}, 0
          s_mov_b32 s{sM+1}, -1
          s_waitcnt vmcnt({14 if NS == 8 else NS+P.ysw})""")
    if NS < 8:
        mload(); wuk(NS, 8)
        if P.ysw: s(f's_waitcnt vmcnt(14)')
    s('s_barrier')
    s.ts('y_wq')
    for c in range(2):
        for kt in range(4):
            for hh in range(2):
                s(f'ds_read_b64_tr_b16 {ar(c*20+kt*4+2*hh,2)}, v{20+c} offset:{(8*kt+4*hh)*1152}')
        s(f'ds_read_b64_tr_b16 {ar(c*20+16,2)}, v{20+c} offset:{32*1152}')
    def ukrd():
        for hp in range(2):
            for st in range(4):
                o = (hp*512+st*64)//8
                s(f'ds_read2_b64 {ar(64+(hp*4+st)*4,4)}, v22 offset0:{o} offset1:{o+4}')
        s.ts('y_wuk')
    if NS == 8:
        s('s_waitcnt vmcnt(6)'); ukrd()
    s(f's_waitcnt vmcnt({8-NS})\ns_branch L_mb\nL_mp:')
    mload()
    s.spin()
    s('s_waitcnt vmcnt(0)\nL_mb:')
    s.chk32(23, list(range(24, 30))); s.test(23, '0xff')
    s("""v_add_f32 v30, v24, v25
         v_add_f32 v31, v27, v28""")
    s.again('L_mp')
    s.ts('y_mod')
    s("""v_add_f32 v31, v31, v29
         v_add_f32 v30, v30, v26
         v_cvt_pk_bf16_f32 v30, v30, v31
         v_and_b32 v31, 0xffff0000, v30
         v_add_f32 v31, 1.0, v31
         v_lshlrev_b32 v30, 16, v30""")
    s.bfr(31, 31)
    s('v_mul_f32 v31, v31, v17'); s.bfr(31, 31)
    s("""v_add_f32 v31, v31, v30
         v_cvt_pk_bf16_f32 v31, v31, v31
         ds_write_b16 v9, v31
         s_waitcnt lgkmcnt(0)
         s_barrier""")
    for kt in range(4): s(f'ds_read_b128 {vr(32+4*kt,4)}, v18 offset:{kt*64}')
    s('ds_read_b64 v[48:49], v19')
    for kt in range(4):
        s(f's_waitcnt lgkmcnt({4-kt})')
        for c in range(2):
            d = vr(52+4*c, 4)
            s(f'{MF} {d}, {ar(c*20+kt*4,4)}, {vr(32+4*kt,4)}, {d if kt else 0}')
    s('s_waitcnt lgkmcnt(0)')
    for c in range(2):
        d = vr(52+4*c, 4)
        s(f'{MH} {d}, {ar(c*20+16,2)}, v[48:49], {d}')
    for d in range(4): s.packtag(12+d, 52+2*d, 53+2*d, d)
    s.setexec(0x10001, 0x10001)
    s.wst(12, 4, 11, sT+1, 0, '')
    s.fullexec()
    s.ts('y_qp')
    if NS < 8:
        for st in range(4): s.wld(32+4*st, 4, 8, sT, st*1024)
        s('s_waitcnt vmcnt(4)'); ukrd(); s('s_waitcnt lgkmcnt(0)\ns_branch L_qpb')
    s('L_qp:')
    for st in range(4): s.wld(32+4*st, 4, vL16 if P.exp & 4 else 8, sT, st*1024)
    s.spin()
    s(f"""s_add_u32 s{sN}, s{sN}, 1
          s_cmp_eq_u32 s{sN}, {NLOC}
          s_cbranch_scc1 L_qpg
          L_qpb:
          s_waitcnt vmcnt(0)""")
    mf = [f'{MF} {vr(48+4*hp,4)}, {vr(32+4*st,4)}, {ar(64+(hp*4+st)*4,4)}, {vr(48+4*hp,4) if st else 0}' for hp in range(2) for st in range(4)]
    ck = s.cap(s.chk16, 23, [(32+i, i & 3) for i in range(16)]) + s.cap(s.test, 23, '0x10001')
    ad = ['v_add_f32 v48, v48, v49', 'v_add_f32 v50, v50, v51', 'v_add_f32 v48, v48, v50']
    s.emit(slots(mf, fill(ck[:16], 2)) + ck[16:] + ad)
    s.again('L_qp')
    s.ts('y_qpok')
    s(f"""v_add_f32 v52, v52, v53
          v_add_f32 v54, v54, v55
          v_add_f32 v52, v52, v54
          v_cndmask_b32 v48, v48, v52, s[{sM}:{sM+1}]""")
    s.gather8(24, 48)
    s.setexec(0x01000001, 0x01000001)
    s.wst(24, 4, 11, sT+3)
    s.setexec(0x10001, 0x10001)
    s.wst(12, 4, 11, sT+2)
    s.fullexec()
    s.ts('y_qa')
    s(f"""s_lshr_b32 s{sT+1}, s{sI}, 1
          s_cmp_ge_u32 s{sT+1}, 4
          s_addc_u32 s{sT+1}, s{sT+1}, 0""")
    s.column(sU, f's{sT+1}', sT)
    s(f"""s_and_b32 s{sT}, s{sI}, 1
          s_lshl1_add_u32 s{sU}, s{sU}, s{sT}
          s_barrier""")
    s(f"""s_sub_u32 s{sK}, s{sI}, 2
          s_lshl3_add_u32 s{sK}, s{sK}, s{sG}
          s_cmp_ge_u32 s{sK}, 108
          s_cbranch_scc1 L_na2
          s_mul_i32 s{sQ}, s{sK}, 1821
          s_lshr_b32 s{sQ}, s{sQ}, 16
          s_mul_i32 s{sH}, s{sQ}, 36
          s_sub_u32 s{sH}, s{sK}, s{sH}
          v_lshlrev_b32 v8, 2, v0""")
    s.srd(r4, 'wmod'); s.srd(r2, 'c')
    s.voff128(9, 10, 6912, 8, 1)
    s.rowsel(sT, sT+1)
    s(f"""s_mul_i32 s{sT+1}, s{sQ}, 192
          s_add_u32 s{sT}, s{sT}, s{sT+1}
          s_mul_i32 s{sT}, s{sT}, 6912
          s_lshl_b32 s{sT+2}, s{sH}, 7
          s_add_u32 s{sT}, s{sT}, s{sT+2}
          s_add_u32 s{sT}, s{sT}, 2304
          s_lshl_b32 s{sT+1}, s{sT+1}, 1
          s_lshl_b32 m0, s{sW}, 10
          s_add_u32 m0, m0, {A2B}
          buffer_load_dword v16, v8, s[{r2}:{r2+3}], s{sT+1} offen""")
    for kt in range(6):
        s.dma(9, r4, sT)
        if kt < 5: s(f's_add_u32 s{sT}, s{sT}, {32*6912}\ns_add_u32 m0, m0, 4096')
    s('L_na2:')
    ffn_setup(s, 12)
    ffn_g(s)
    s(f"""s_cmp_ge_u32 s{sK}, 108
          s_cbranch_scc1 L_na3
          s_mul_i32 s{sT}, s{sQ}, 9216
          s_lshl2_add_u32 s{sT+1}, s{sH}, s{sW}
          s_lshl_b32 s{sT+1}, s{sT+1}, 6
          s_add_u32 s{sT}, s{sT}, s{sT+1}
          s_add_u32 s{sT}, s{sT}, {MOD2}""")
    s.tr128(20, 22, f's{sW}', A2B)
    s(f"""v_lshlrev_b32 v21, 4, v{vGQ}
          v_add_u32 v22, {A2S}, v21
          v_add_u32 v8, {A2S}, v8
          s_waitcnt vmcnt(15)""")
    s.silu(16, 24)
    s(f"""ds_write_b32 v8, v16
          s_waitcnt vmcnt(9) lgkmcnt(0)
          s_barrier""")
    for kt in range(6):
        for hh in range(2):
            s(f'ds_read_b64_tr_b16 {vr(64+4*kt+2*hh,2)}, v20 offset:{kt*4096+hh*2048}')
        s(f'ds_read_b128 {vr(88+4*kt,4)}, v22 offset:{kt*64}')
    for kt in range(6):
        s(f's_waitcnt lgkmcnt({15-3*kt})')
        s(f'{MF} v[24:27], {vr(64+4*kt,4)}, {vr(88+4*kt,4)}, {"v[24:27]" if kt else 0}')
    for r in range(4): s.tag32(24+r, 24+r)
    s.setexec(0x00010001, 0x00010001)
    s.wst(24, 4, 21, sT)
    s.fullexec()
    s.ts('y_a2')
    s(f"""L_na3:
          s_cmp_lt_u32 s{sI}, {7 if P.pf else 99}
          s_cbranch_scc1 L_ft0
          s_branch L_pf""")
    s(f"""L_qpg:""")
    s.setexec(0x10001, 0x10001)
    s.wst(12, 4, 11, sT+2)
    s(f"""s_mov_b64 exec, -1
          s_add_u32 s{sT}, s{sT}, {QPG-QPL}
          s_branch L_qpb""")
    s('L_pf:')
    s(f's_sub_u32 s{sK}, s{sI}, 7')
    if P.pf & 1:
        s.srd(r4, 'wo')
        s(f"""s_mul_i32 s{sT}, s{sG}, {512*1152}
              s_lshl_b32 s{sT+1}, s{sK}, {16 if P.pf & 4 else 15}
              s_add_u32 s{sT}, s{sT}, s{sT+1}
              s_add_u32 s{sT+1}, s{sT}, {32768 if P.pf & 4 else 256*1152}
              v_lshlrev_b32 v12, 7, v0""")
        if P.pf & 4: s(f'buffer_load_dword v240, v12, s[{r4}:{r4+3}], s{sT} offen {P.pffl}')
        s(f'buffer_load_dword v241, v12, s[{r4}:{r4+3}], s{sT+1} offen {P.pffl}')
    s.column(sT+1, 4, sT)
    s(f"""s_lshl2_add_u32 s{sK}, s{sK}, s{sW}
          s_mul_i32 s{sT+2}, s{sK}, {16*9216}
          s_lshl_b32 s{sT}, s{sT+1}, 7
          s_add_u32 s{sT+2}, s{sT+2}, s{sT}
          s_mul_i32 s{sT+3}, s{sT+1}, {64*1152}
          s_lshl_b32 s{sT}, s{sK}, 11
          s_add_u32 s{sT+3}, s{sT+3}, s{sT}
          v_mul_u32_u24 v12, 9216, v{vL}
          v_lshlrev_b32 v13, 7, v{vL}
          s_mov_b64 exec, 0xffff
          buffer_load_dword v242, v12, s[{r1}:{r1+3}], s{sT+2} offen {P.pffl}
          buffer_load_dword v243, v12, s[{r2}:{r2+3}], s{sT+2} offen {P.pffl}
          buffer_load_dword v240, v13, s[{r3}:{r3+3}], s{sT+3} offen {P.pffl}
          s_mov_b64 exec, -1
          s_branch L_ft0""")

TS_A = dict(start=0, x_a=1, x_issued=2, x_landed=3, x_ready=4, x_qa=5, x_qk=6, x_o=7, d_ml=8,
            y_wq=1, y_wuk=2, y_mod=3, y_qp=4, y_qpok=5, y_qa=6, y_a2=7, y_a=8)
TS_B = dict(start=0, x_o=1, d_ml=2, d_op=3, d_cp=4, e_cp=5, e_tr=6, z_yp=5,
            y_qa=1, y_a2=2, f_data=3, f_g=4, f_ready=6, f_tr=7, f_yp=8)

def build(P):
    s = G(P)
    prologue(s)
    role_x(s)
    role_y(s)
    ffn_compute(s)
    epilogue(s)
    body = s.finalize(verbose=True)
    hdr = open('cdna_kernels/'+NAME+'.s.ref').read().split('\n')
    head = [l for l in hdr[:17]]
    txt = '\n'.join(head) + f"""
; @launch grid=(256,1,1) block=(256,1,1) lds=163840
.amdgcn_target "amdgcn-amd-amdhsa--gfx950"
.text
.globl {NAME}_kernel
.p2align 8
.type {NAME}_kernel,@function
{NAME}_kernel:
""" + body + f""".section .rodata,"a"
.p2align 6
.amdhsa_kernel {NAME}_kernel
  .amdhsa_next_free_vgpr 512
  .amdhsa_next_free_sgpr 102
  .amdhsa_accum_offset 256
  .amdhsa_group_segment_fixed_size 0
  .amdhsa_kernarg_size 120
  .amdhsa_user_sgpr_count 2
  .amdhsa_user_sgpr_kernarg_segment_ptr 1
  .amdhsa_system_sgpr_workgroup_id_x 1
.end_amdhsa_kernel
"""
    return txt

def code_size(txt):
    import subprocess
    open('_g.s', 'w').write(txt.replace('CODE_BYTES', '0x12345'))
    subprocess.check_call(['clang', '-x', 'assembler', '-target', 'amdgcn-amd-amdhsa', '-mcpu=gfx950', '-c', '_g.s', '-o', '_g.o'])
    out = subprocess.check_output(['llvm-objdump', '-h', '_g.o']).decode()
    for l in out.split('\n'):
        f = l.split()
        if len(f) > 2 and f[1] == '.text': return int(f[2], 16)

if __name__ == '__main__':
    ap = argparse.ArgumentParser()
    ap.add_argument('out'); ap.add_argument('--diag', default='')
    for k, v in dict(xw=0, xn=0, na=4, sper=3, pcov=4, oper=3, xft=6, yft=2, phase=0, tgate=12, trep=3, qrep=3, xstop='', ystop='', csp=4, drain=3, pfw=0, nog=0, f2d=0, wob='0808', xfb='0004', drw=0, wuve=1, fpf=0, apf=0, ybar=1, pf=2, ost=0, qal=0, exp=0, ysp=8, ysw=0, qgate=0, qgx=0, aon=0, yna=3, qearly=0, osw=0, hsp=0, hw=0, hn=0, w1=0, peek=0, late=0, rot=0, ah=0).items(): ap.add_argument('--'+k, type=type(v), default=v)
    ap.add_argument('--tsop', default='s_memrealtime'); ap.add_argument('--ffl', default='nt'); ap.add_argument('--ffl2', default='nt'); ap.add_argument('--wofl', default='nt'); ap.add_argument('--pffl', default='')
    P = ap.parse_args()
    P.tsmap = {'': {}, 'a': TS_A, 'b': TS_B}[P.diag]
    txt = build(P)
    n = code_size(txt)
    print('code bytes', n)
    txt = txt.replace('CODE_BYTES', str(n))
    open(P.out, 'w').write(txt)
```

```python
from gen5a import *

XA=131072; XS=XA+24576; XUV=131072
QS=98304; MXL=81920; DX=82944; PB=73728
sV=24; vUV=247
def cost(x): return 2 if x.startswith(('v_exp', 'v_rcp', 'v_rsq')) else 1
def fill(items, per=2):
    out = []; cur = []; n = 0
    for x in items:
        if n + cost(x) > per and cur: out.append(cur); cur = []; n = 0
        cur.append(x); n += cost(x)
    if cur: out.append(cur)
    return out
def slots(mf, L):
    out = []
    for i, m in enumerate(mf):
        out.append(m)
        if i < len(L): out += L[i]
    for l in L[len(mf):]: out += l
    return out

def role_x(s):
    P = s.P
    KA=32; VA=48; QO=64; Q0=96; Q1=144; SV=192; PK=208; OT=212; LR=228
    s.voff128(9, 10, 6912, 8, 1)
    s(f"""s_lshl4_add_u32 s{sU}, s{sG}, s{sI}
          s_lshl2_add_u32 s{sK}, s{sI}, s{sG}
          s_cmp_ge_u32 s{sG}, 4
          s_cselect_b32 s{sK}, 99, s{sK}
          {f's_mov_b32 s{sK}, 99' if P.aon else ''}
          {f's_sub_u32 s{sK}, s{sI}, 9' if P.ah else ''}
          {f's_lshl3_add_u32 s{sK}, s{sK}, s{sG}' if P.ah else ''}
          {f's_min_u32 s{sK}, s{sK}, 99' if P.ah else ''}
          s_mul_i32 s{sT+5}, s{sK}, 3641
          s_lshr_b32 s{sT+5}, s{sT+5}, 16
          s_mul_i32 s{sT+6}, s{sT+5}, 18
          s_sub_u32 s{sT+6}, s{sK}, s{sT+6}
          v_lshlrev_b32 v8, 2, v0""")
    s.rowsel(sT+2, sT+3)
    s(f"""s_mul_i32 s{sT+3}, s{sT+5}, 192
          s_add_u32 s{sT+2}, s{sT+2}, s{sT+3}
          s_mul_i32 s{sT+2}, s{sT+2}, 6912
          s_lshl_b32 s{sT+4}, s{sT+6}, 7
          s_add_u32 s{sT+2}, s{sT+2}, s{sT+4}
          s_lshl_b32 s{sT+3}, s{sT+3}, 1
          s_lshl_b32 s{sT+4}, s{sW}, 10
          s_add_u32 m0, s{sT+4}, {XA}
          s_lshl_b32 s{sT}, s{sU}, 17
          s_lshl_b32 s{sT+1}, s{sW}, 15
          s_add_u32 s{sT}, s{sT}, s{sT+1}""")
    if P.rot:
        if P.rot == 1: s(f's_lshl1_add_u32 s{sX}, s{sW}, s{sI}\ns_add_u32 s{sX}, s{sX}, s{sG}')
        elif P.rot == 2: s(f's_add_u32 s{sX}, s{sI}, s{sG}')
        else: s(f's_lshl1_add_u32 s{sX}, s{sW}, s{sG}')
        s(f"""s_and_b32 s{sX}, s{sX}, 7
              s_lshl_b32 s{sX}, s{sX}, 12
              s_add_u32 s{sT}, s{sT}, s{sX}""")
    for i in range(16): s(f'v_xor_b32 v{32+i}, {fsw(i)<<4}, v{vL16}')
    s(f"""s_waitcnt lgkmcnt(0)
          s_load_dword s{sE}, s[32:33], 0
          s_cmp_ge_u32 s{sK}, 54
          s_cbranch_scc1 L_noA""")
    s.srd(r4, 'wmod'); s.srd(r3, 'c')
    s(f'buffer_load_dword v28, v8, s[{r3}:{r3+3}], s{sT+3} offen')
    for kt in range(6):
        s.dma(9, r4, sT+2)
        if kt < 5: s(f's_add_u32 s{sT+2}, s{sT+2}, {32*6912}\ns_add_u32 m0, m0, 4096')
    s('L_noA:')
    s.srd(r1, 'ckv')
    s(f"""s_getpc_b64 s[{r2}:{r2+1}]
          L_pc:
          s_sub_u32 s{r2}, s{r2}, L_pc-{NAME}_kernel
          s_subb_u32 s{r2+1}, s{r2+1}, 0
          s_mov_b32 s{r2+2}, CODE_BYTES
          s_mov_b32 s{r2+3}, 0x20000
          s_lshl2_add_u32 s{sT+2}, s{sI}, s{sW}
          s_lshl_b32 s{sT+2}, s{sT+2}, 10
          s_mov_b32 m0, s{sT+1}
          buffer_load_dwordx4 v[240:243], v{vL16}, s[{r2}:{r2+3}], s{sT+2} offen""")
    def ckv(i, xw=P.xw, xn=P.xn):
        if i and i % 4 == 0:
            if P.rot: s(f's_xor_b32 s{sT}, s{sT}, {((i>>2) ^ ((i>>2)-1)) << 12}\ns_add_u32 m0, m0, 4096')
            else: s(f's_add_u32 s{sT}, s{sT}, 4096\ns_add_u32 m0, m0, 4096')
        if xw and max(xw, P.na if P.hsp else 0) <= i < xn: s(f's_waitcnt vmcnt({xw-1})')
        s.dma(32+(i & 15), r1, sT, 'nt', (i & 3)*1024)
    for i in range(P.na): ckv(i)
    s(f"""s_cmp_ge_u32 s{sK}, 54
          s_cbranch_scc1 L_noA2
          s_mul_i32 s{sX}, s{sT+5}, 4608
          s_lshl2_add_u32 s{sT+6}, s{sT+6}, s{sW}
          s_lshl_b32 s{sT+6}, s{sT+6}, 6
          s_add_u32 s{sX}, s{sX}, s{sT+6}
          s_add_u32 s{sX}, s{sX}, {MODP}""")
    s.tr128(20, 22, f's{sW}', XA)
    s.tags()
    s(f"""v_lshlrev_b32 v21, 4, v{vGQ}
          v_add_u32 v22, {XS}, v21
          v_add_u32 v8, {XS}, v8
          s_waitcnt vmcnt({7+P.na})""")
    s.silu(28, 24)
    s(f"""ds_write_b32 v8, v28
          s_waitcnt vmcnt({1+P.na}) lgkmcnt(0)
          s_barrier""")
    for kt in range(6):
        for hh in range(2):
            s(f'ds_read_b64_tr_b16 {vr(64+4*kt+2*hh,2)}, v20 offset:{kt*4096+hh*2048}')
        s(f'ds_read_b128 {vr(88+4*kt,4)}, v22 offset:{kt*64}')
    for kt in range(6):
        s(f's_waitcnt lgkmcnt({15-3*kt})')
        s(f'{MF} v[24:27], {vr(64+4*kt,4)}, {vr(88+4*kt,4)}, {"v[24:27]" if kt else 0}')
    for r in range(4): s.tag32(24+r, 24+r)
    s.setexec(0x00010001, 0x00010001)
    s.wst(24, 4, 21, sX)
    s.fullexec()
    s.ts('x_a')
    if P.hsp:
        for i in range(P.na, P.xn): ckv(i, P.hw, P.hn)
        s('s_branch L_hj')
    s('L_noA2:')
    for i in range(P.na, 32):
        if P.hsp and i == P.xn: s('L_hj:')
        ckv(i)
    s.ts('x_issued')
    s(f's_cmp_lt_u32 s{sK}, 54\ns_cbranch_scc1 L_tg')
    s.tags()
    s('L_tg:')
    for r in (vFO, vGO): s(f'v_mov_b32 v{r}, 0')
    s.headq()
    s.srd(r4, 'wuv'); s.srd(r1, 'wo'); s.srd(r3, 'x')
    s.fsw(8, vP, 9)
    s(f"""v_xor_b32 v8, v8, v{vGQ}
          v_lshlrev_b32 v8, 4, v8
          v_lshl_add_u32 v8, v{vP}, 10, v8
          s_mul_i32 s{sT+2}, s{sW}, {32768+256}
          v_add_u32 v12, s{sT+2}, v8
          v_lshrrev_b32 v10, 2, v{vL}""")
    for q in range(16): s(f'v_xor_b32 v{KA+q}, {((q&3)<<6)|((q>>2)<<8)}, v12')
    s.fsw(8, 10, 9)
    s(f"""v_bfe_u32 v9, v{vL}, 1, 1
          v_xor_b32 v8, v8, v9
          v_lshlrev_b32 v8, 4, v8
          v_lshl_add_u32 v8, v10, 10, v8
          v_and_b32 v9, 1, v{vL}
          v_lshl_add_u32 v8, v9, 3, v8
          s_lshl_b32 s{sT+2}, s{sW}, 8
          v_add_u32 v{VA}, s{sT+2}, v8""")
    for ct in range(1, 8): s(f'v_xor_b32 v{VA+ct}, {ct<<5}, v{VA}')
    for ct in range(8): s(f'v_add_u32 v{VA+8+ct}, 0x10000, v{VA+ct}')
    s.voff256(vUV, 8, 8192)
    s(f"""v_lshrrev_b32 v13, 2, v{vP}
          v_lshlrev_b32 v13, 8, v13
          v_lshl_add_u32 v13, v{vGQ}, 6, v13
          v_and_b32 v9, 3, v{vL}
          v_lshl_add_u32 v13, v9, 4, v13
          {f'v_lshlrev_b32 v13, 4, v{vP}' if P.qal else ''}
          {f'v_lshl_add_u32 v13, v{vGQ}, 9, v13' if P.qal else ''}
          s_lshl_b32 s{sT+2}, s{sW}, 13
          s_add_u32 s{sT+4}, s{sT+2}, {QA}
          s_add_u32 s{sT+5}, s{sT+2}, {QA+4096}
          s_add_u32 s{sT+2}, s{sT+2}, {QS}
          v_add_u32 v14, s{sT+2}, v{vL16}
          v_xor_b32 v15, 0x2000, v14
          v_xor_b32 v16, 0x4000, v14
          v_xor_b32 v17, 0x6000, v14
          v_add_u32 v19, {PB}, v{vL16}
          s_lshl_b32 s{sT+2}, s{sW}, 10
          v_add_u32 v18, s{sT+2}, v19
          v_lshlrev_b32 v20, 4, v{vP}
          v_add_u32 v20, {MXL}, v20
          s_lshl_b32 s{sT+2}, s{sW}, 2
          v_add_u32 v12, s{sT+2}, v20
          v_lshlrev_b32 v21, {4 if P.ost else 17}, v{vP}
          v_lshl_add_u32 v21, v{vGQ}, {19 if P.ost else 4}, v21
          v_lshlrev_b32 v22, 10, v{vP}
          s_lshl_b32 s{sT+6}, s{sW}, 15
          s_lshl_b32 s{sT+2}, s{sU}, 8
          s_add_u32 s{sT+6}, s{sT+6}, s{sT+2}
          s_add_u32 s{sT+6}, s{sT+6}, {OP}
          s_add_u32 s{sN}, s{sT+6}, {16*131072}
          s_and_b32 s{sT+7}, s{sU}, 64
          s_lshl_b32 s{sT+7}, s{sT+7}, 3
          s_and_b32 s{sT+2}, s{sU}, 3
          s_lshl_b32 s{sT+2}, s{sT+2}, 7
          s_add_u32 s{sT+7}, s{sT+7}, s{sT+2}
          s_and_b32 s{sT+2}, s{sU}, 0x3c
          s_lshl1_add_u32 s{sT+7}, s{sT+2}, s{sT+7}
          s_lshl_b32 s{sT+2}, s{sW}, 14
          s_add_u32 s{sT+7}, s{sT+7}, s{sT+2}
          s_add_u32 s{sT+7}, s{sT+7}, {ML}
          s_and_b32 s{sK}, s{sE}, 0xffff""")
    if P.osw:
        s(f"""s_and_b32 s{sT+2}, s{sT+6}, 0x300
              s_andn2_b32 s{sT+6}, s{sT+6}, 0x300
              s_xor_b32 s{sN}, s{sT+6}, {16*131072 + 0x1000}
              v_lshlrev_b32 v9, 8, v{vGQ}
              v_xor_b32 v9, s{sT+2}, v9
              v_add_u32 v21, v21, v9
              s_and_b32 s{sT+2}, s{sT+7}, 0x3ff
              s_andn2_b32 s{sT+7}, s{sT+7}, 0x3ff
              s_lshl_b32 s{sT+3}, s{sW}, 5
              s_xor_b32 s{sT+2}, s{sT+2}, s{sT+3}
              v_lshrrev_b32 v9, 2, v{vP}
              v_lshlrev_b32 v9, 7, v9
              v_and_b32 v10, 3, v{vP}
              v_lshl_add_u32 v9, v10, 3, v9
              v_xor_b32 v9, s{sT+2}, v9
              v_add_u32 v22, v22, v9""")
    s(f"""
          s_mov_b32 s{sC}, {fb(128**-0.5*LOG2E)}
          v_mov_b32 v24, 0x3f803f80
          v_mov_b32 v25, v24
          v_mov_b32 v26, v24
          v_mov_b32 v27, v24
          s_lshl_b32 s{sV}, s{sQ}, 20
          s_lshl_b32 s{sT+1}, s{sW}, 18
          s_add_u32 s{sV}, s{sV}, s{sT+1}
          s_lshl_b32 s{sT+1}, s{sH}, 8
          s_add_u32 s{sV}, s{sV}, s{sT+1}
          s_lshl_b32 s{sV+1}, s{sW}, 13
          s_add_u32 s{sV+1}, s{sV+1}, {XUV}
          s_cmp_lt_u32 s{sI}, 14
          s_cbranch_scc1 L_nfs""")
    s.column(sU, 4, sT)
    s(f"""s_and_b32 s{sT}, s{sI}, 1
          s_lshl1_add_u32 s{sU}, s{sU}, s{sT}""")
    ffn_setup(s, 8)
    s("""L_nfs:
         s_waitcnt vmcnt(16)
         s_barrier""")
    def wuvl():
        s(f's_mov_b32 m0, s{sV+1}')
        for i in range(8):
            s.dma(vUV, r4, sV)
            if i < 7: s(f's_add_u32 s{sV}, s{sV}, {4*8192}\ns_add_u32 m0, m0, 1024')
    wob = [int(c, 36) for c in P.wob]; fb_ = [int(c) for c in P.xfb]
    def dblock(k, extra=None, nb=0):
        w0 = sum(wob[:k]); f0 = sum(fb_[:k])
        if not (wob[k] or fb_[k] or extra): return
        s(f"""s_cmp_ge_u32 s{sI}, 9
              s_cbranch_scc1 L_dbn{k}
              s_lshl_b32 m0, s{sW}, 10""")
        if w0: s(f's_add_u32 m0, m0, {w0*4096}')
        for kt in range(w0, w0+wob[k]):
            s.dma(23, r1, sT, P.wofl)
            s(f's_add_u32 s{sT}, s{sT}, {32*1152}')
            if kt < w0+wob[k]-1: s('s_add_u32 m0, m0, 4096')
        if extra: extra()
        s(f"""L_dbn{k}:
              s_cmp_lt_u32 s{sI}, 14
              s_cbranch_scc1 L_dbp{k}""")
        for q in range(f0, f0+fb_[k]): ffn_tile(s, q, sT)
        if nb and fb_[k]: s(f's_branch L_dbq{k}')
        s(f'L_dbp{k}:')
        if nb: s('s_mov_b64 exec, 1')
        for i in range(nb):
            if i == 3*fb_[k]: s(f'L_dbq{k}:\ns_mov_b64 exec, 1')
            s.wld(25, 1, 20, sV)
        if nb and nb == 3*fb_[k]: s(f'L_dbq{k}:')
        if nb: s.fullexec()
        s(f'L_dbe{k}:')
    assert sum(wob) == 16
    P.xft = sum(fb_)
    if P.wuve == 1: wuvl()
    def kread(kt):
        for q in range(16): s(f'ds_read_b128 {ar((kt*16+q)*4,4)}, v{KA+q} offset:{kt*16384}')
    def vread(hh):
        for ks in range(4):
            for ct in range(8):
                s(f'ds_read_b64_tr_b16 {ar(128+(ct*4+ks)*4+2*hh,2)}, v{VA+ct+(8 if ks>=2 else 0)} offset:{((ks&1)*32+16*hh)*1024}')
    kread(0); vread(0)
    s(f's_waitcnt vmcnt({8 if P.wuve == 1 else 0})\ns_barrier')
    s.ts('x_landed')
    def qal(b, fl):
        for j in range(4):
            for ht in range(2):
                s.wld(QO+(j*2+ht)*4, 4, 13, b+(j >> 1), (j & 1)*2048+ht*(256 if P.qal else 1024), fl)
    if P.qearly: qal(sT+4, 'sc1')
    if P.wuve == 4: wuvl()
    kread(1); vread(1)
    s.voff128(23, 8, 1152, 8, 1)
    s.rowsel(sT, sT+1)
    s(f"""s_lshl_b32 s{sT+1}, s{sG}, 9
          s_add_u32 s{sT}, s{sT}, s{sT+1}
          s_mul_i32 s{sT}, s{sT}, 1152
          s_lshl_b32 s{sT+1}, s{sI}, 7
          s_add_u32 s{sT}, s{sT}, s{sT+1}
          v_mov_b32 v10, 0xff800000
          v_mov_b32 v11, v10
          s_waitcnt lgkmcnt(0)
          s_barrier
          ds_write_b64 v20, v[10:11]""")
    s.ts('x_ready')
    dblock(0)
    lp = s.lab('qa')
    def qal(b, fl):
        for j in range(4):
            for ht in range(2):
                s.wld(QO+(j*2+ht)*4, 4, 13, b+(j >> 1), (j & 1)*2048+ht*(256 if P.qal else 1024), fl)
    if P.qgate:
        s(f"""s_lshl3_add_u32 s{sT+2}, s{sI}, s{sG}
              s_lshl2_add_u32 s{sT+2}, s{sT+2}, s{sW}
              s_lshl_b32 s{sT+2}, s{sT+2}, 6
              s_xor_b32 s{sT+2}, s{sT+2}, {P.qgx*256}
              s_andn2_b32 s{sT+2}, s{sT+2}, {P.qgate*64-1}
              s_add_u32 s{sT+2}, s{sT+2}, {QA}
              s_mov_b64 exec, {(1 << (4*P.qgate)) - 1}
              L_qg:""")
        s.wld(QO, 4, vL16, sT+2, 0)
        s.spin()
        s('s_waitcnt vmcnt(0)')
        s.chk16(28, [(QO+i, i) for i in range(4)]); s.test(28, '0x10001'); s.again('L_qg')
        s.fullexec()
    if P.wuve == 5: wuvl()
    if P.qearly: s(f's_waitcnt vmcnt({8 if P.wuve >= 4 else 0})\ns_branch L_qe')
    s(f'{lp}:')
    qal(sT+4, 'sc1')
    s.fullexec(); s.spin()
    s('s_waitcnt vmcnt(0)')
    s('L_qe:')
    def qk(q, kt, ht, src, first=False):
        d = vr(SV+(kt*2+ht)*4, 4)
        return f'{MF} {d}, {ar((kt*16+q)*4,4)}, {vr(src,4)}, {0 if first else d}'
    own = {ht: [qk(j, kt, ht, QO+(j*2+ht)*4, j == 0) for j in range(4) for kt in range(2)] for ht in range(2)}
    wr = [f'ds_write_b128 v14, {vr(QO+4*i,4)} offset:{i*1024}' for i in (0,2,4,6,1,3,5,7)]
    ck = s.cap(s.chk16, 28, [(QO+i, i & 3) for i in range(32)]) + s.cap(s.test, 28, '0x10001')
    L = [[wr[i]] + ck[4*i:4*i+4] for i in range(8)] + [ck[32:]]
    s.emit(slots(own[0], L))
    s.againq(lp)
    if P.wuve == 2: wuvl()
    if not P.w1: dblock(1)
    s("""s_waitcnt lgkmcnt(0)
         s_barrier""")
    s.ts('x_qa')
    rd = {ht: [f'ds_read_b128 {vr((Q1 if ht else Q0)+((jq-1)*4+j)*4,4)}, v{14+jq} offset:{(j*2+ht)*1024}' for jq in range(1,4) for j in range(4)] for ht in range(2)}
    s.emit(slots(own[1][:4], [rd[0][:6], rd[0][6:]]) if False else rd[0][:4] + slots(own[1][:4], fill(rd[0][4:], 3)))
    for i in range(12):
        s(f's_waitcnt lgkmcnt(11)')
        q = 4+i
        s(qk(q, 0, 0, Q0+4*i)); s(rd[1][i]); s(qk(q, 1, 0, Q0+4*i))
    MT = {0: 28, 1: 30}
    def X8(ht): return [SV+ht*4+r for r in range(4)] + [SV+8+ht*4+r for r in range(4)]
    def smax(ht):
        X = X8(ht)
        return [f'v_max3_f32 v8, v{X[0]}, v{X[1]}, v{X[2]}', f'v_max3_f32 v9, v{X[3]}, v{X[4]}, v{X[5]}',
                f'v_max3_f32 v8, v8, v{X[6]}, v{X[7]}', 'v_max_f32 v8, v8, v9', f'ds_max_f32 v20, v8 offset:{ht*4}']
    def sexp(ht):
        X = X8(ht); m = MT[ht]
        L = [f'v_mul_f32 v{m}, s{sC}, v{m}', f'v_ceil_f32 v{m}, v{m}']
        L += [f'v_fma_f32 v{x}, v{x}, s{sC}, -v{m}' for x in X]
        L += [f'v_exp_f32 v{x}, v{x}' for x in X]
        L += [f'v_cvt_pk_bf16_f32 v{PK+i}, v{X[2*i]}, v{X[2*i+1]}' for i in range(4)]
        return L
    BAR = ['s_waitcnt lgkmcnt(0)', 's_barrier']
    def prd(ht): return [f'ds_read_b128 {vr(QO+ht*16+ks*4,4)}, v19 offset:{ht*4096+ks*1024}' for ks in range(4)]
    def phase(ht, mf, extra, late):
        m = MT[ht]; n = len(mf)
        sm = smax(ht)
        L = [[], ['s_waitcnt lgkmcnt(8)'] if ht == 0 else [], sm[:2], sm[2:], [], [], BAR + [f'ds_read_b32 v{m}, v20 offset:{ht*4}'], extra[:2], extra[2:4], extra[4:6] + [f's_waitcnt lgkmcnt({min(len(extra),6)})']]
        L += fill(sexp(ht), P.sper)
        L[-1] = L[-1] + [f'ds_write_b128 v18, {vr(PK,4)} offset:{ht*4096}', f'{MF} {vr(SV+ht*4,4)}, v[24:27], {vr(PK,4)}, 0']
        L += [[f'v_cvt_i32_f32 v{m}, v{m}', f'v_lshl_or_b32 v{m}, v{m}, 16, s{sK}'], [f'ds_write_b32 v12, v{SV+ht*4} offset:{256+ht*256}']]
        L += late
        k = max(len(L) + 1, n - P.pcov)
        while len(L) < k: L.append([])
        L[-1] = L[-1] + BAR + prd(ht) + [f'ds_read_b128 {vr(LR+4*ht,4)}, v20 offset:{256+ht*256}']
        return slots(mf, L)
    def mlst(ht):
        l = s.lab('nml'); m = MT[ht]
        b = LR+4*ht
        s(f"""s_cmp_lg_u32 s{sW}, {ht}
              s_cbranch_scc1 {l}
              v_add_f32 v{b}, v{b}, v{b+1}
              v_add_f32 v{b+2}, v{b+2}, v{b+3}
              v_add_f32 v{b}, v{b}, v{b+2}
              s_mov_b64 exec, 0xffff""")
        s.tag32(m+1, b)
        s.wst(m, 2, 22, sT+7)
        s(f's_mov_b64 exec, -1\n{l}:')
    def pv(ht, ks, ct):
        d = vr((Q1 if ht else Q0)+ct*4, 4)
        if P.ost: return f'{MF} {d}, {vr(QO+ht*16+ks*4,4)}, {ar(128+(ct*4+ks)*4,4)}, {d if ks else 0}'
        return f'{MF} {d}, {ar(128+(ct*4+ks)*4,4)}, {vr(QO+ht*16+ks*4,4)}, {d if ks else 0}'
    def pvl(ht): return [pv(ht, ks, 2*d+c) for d in range(4) for ks in range(4) for c in range(2)]
    def opk(ht, d):
        O = (Q1 if ht else Q0) + 8*d; T = O
        L = []
        if P.ost:
            T = (Q1 if ht else Q0) + 32
            for r in range(4):
                L += s.cap(s.packtag, T+4*r+d, O+r, O+4+r, d)
                if d == 3:
                    b = sN if ht else sT+6
                    if r and P.osw: L += [f's_xor_b32 s{b}, s{b}, {0x60c00 if r == 2 else 0x20400}']
                    elif r: L += [f's_add_u32 s{b}, s{b}, {1<<17}']
                    L += s.cap(s.wst, T+4*r, 4, 21, b)
            return L
        for i in range(4): L += s.cap(s.packtag, T+i, O+2*i, O+2*i+1, i)
        return L + s.cap(s.wst, T, 4, 21, sN if ht else sT+6, d*64)
    mf1 = own[1][4:] + [qk(4+i, kt, 1, Q1+4*i) for i in range(12) for kt in range(2)]
    s.emit(phase(0, mf1, [], []))
    s.ts('x_qk')
    if P.wuve == 3: wuvl()
    if P.w1: dblock(1)
    s('s_waitcnt lgkmcnt(0)')
    UA = 56 if P.wuve >= 2 else 10
    uva = s.cap(lambda: (s(f's_lshl_b32 s{sT+2}, s{sW}, 1'), s.tr256(UA, UA+1, f's{sT+2}', XUV, 1024), s(f'v_xor_b32 v{UA+1}, 32, v{UA}')))
    pv0 = pvl(0)
    s.emit(phase(1, pv0, [], fill(opk(0, 0), 2)))
    s('s_waitcnt lgkmcnt(0)')
    pv1 = pvl(1)
    L = [s.cap(mlst, 0), s.cap(mlst, 1)] + fill(opk(0, 1) + opk(0, 2) + opk(0, 3) + opk(1, 0) + opk(1, 1), P.oper)
    while len(L) < 26: L.append([])
    mla = f"""s_lshl_b32 s{sV}, s{sH}, 10
          s_add_u32 s{sV}, s{sV}, {ML}
          s_and_b32 s{sT+1}, s{sW}, 1
          s_lshl_b32 s{sT+1}, s{sT+1}, 6
          s_and_b32 s{sT+2}, s{sW}, 2
          s_lshl_b32 s{sT+2}, s{sT+2}, 8
          s_add_u32 s{sT+1}, s{sT+1}, s{sT+2}
          v_lshlrev_b32 v8, 3, v{vL}
          v_xor_b32 v8, s{sT+1}, v8
          v_xor_b32 v9, 512, v8""".split('\n')
    mla = [x.strip() for x in mla]
    nafter = 0
    if P.peek:
        L[2] = L[2] + mla
        L[P.peek] = L[P.peek] + s.cap(s.wld, 12, 2, 8, sV) + s.cap(s.wld, 14, 2, 9, sV)
        nafter = 4 + sum(1 for sl in L[P.peek+1:] for x in sl if 'buffer_store' in x)
        assert wob[2] == 0 and fb_[2] == 0 and P.wuve == 1
    L += fill(opk(1, 2), P.oper)
    s.emit(slots(pv1, L))
    s.emit(opk(1, 3))
    s.ts('x_o')
    def m2l():
        for kp, so in enumerate((sT+6, sT+7, sV+2)):
            s.wld((24, 28, 29)[kp], 1, 22, so); s.wld((25, 30, 31)[kp], 1, 21, so)
    def eloads():
        s(f"""s_lshl2_add_u32 s{sT+4}, s{sI}, s{sW}
              s_lshl_b32 s{sT+5}, s{sT+4}, 5
              s_lshl_b32 s{sT+6}, s{sT+4}, 6
              s_add_u32 s{sT+6}, s{sT+6}, {MOD2}
              s_add_u32 s{sT+7}, s{sT+6}, 9216
              s_add_u32 s{sV+2}, s{sT+6}, 18432
              v_mov_b32 v27, v23
              v_lshlrev_b32 v23, 1, v{vP}
              v_lshlrev_b32 v22, 2, v{vP}
              v_add_u32 v21, 4608, v22
              buffer_load_ushort v26, v23, s[{r3}:{r3+3}], s{sT+5} offen""")
        m2l()
    dblock(2)
    if not P.peek: s.emit(mla)
    s(f"""s_lshl2_add_u32 s{sT+2}, s{sH}, s{sQ}
          s_lshl2_add_u32 s{sT+2}, s{sT+2}, s{sW}
          s_lshl_b32 s{sT+2}, s{sT+2}, 13
          s_add_u32 s{sV+1}, s{sT+2}, {OP}
          s_add_u32 s{sV+3}, s{sT+2}, {OP+4096}""")
    def opl(i): s.wld(64+4*i, 4, vL16, sV+1+2*(i >> 2), (i & 3)*1024)
    s.emit(uva)
    def uvrd():
        for j in range(4):
            for c in range(2):
                for hh in range(2):
                    s(f'ds_read_b64_tr_b16 {ar((j*2+c)*4+2*hh,2)}, v{UA+c} offset:{(8*j+4*hh)*1024}')
    if P.wuve < 2: uvrd()
    for i in range(8): s(f'v_mov_b32 v{48+i}, 0')
    s(f"""s_mul_i32 s{sT+2}, s{sW}, 272
          s_add_u32 s{sT+2}, s{sT+2}, {DX}
          v_lshlrev_b32 v18, 4, v{vP}
          v_lshl_add_u32 v18, v{vGQ}, 2, v18
          v_and_b32 v19, 3, v{vP}""")
    if P.ost:
        s(f"""v_lshrrev_b32 v18, 2, v{vP}
              v_lshlrev_b32 v18, 4, v18
              v_lshl_add_u32 v18, v{vGQ}, 6, v18
              v_lshl_add_u32 v18, v19, 1, v18""")
    s(f"""v_add_u32 v18, s{sT+2}, v18
          v_mul_u32_u24 v19, 272, v19
          v_lshl_add_u32 v19, v{vGQ}, 4, v19
          v_add_u32 v19, {DX}, v19
          v_lshlrev_b32 v20, 1, v{vL}""")
    s.tr128(10, 11, f's{sW}', 0)
    s(f"""v_add_u32 v11, 0x8000, v10
          {f's_cmp_le_u32 s{sSPIN}, {P.late}' if P.late else ''}
          {'s_cbranch_scc1 L_late' if P.late else ''}
          L_mln:
          s_waitcnt vmcnt({nafter if P.peek else P.drw})
          {'s_branch L_mlp' if P.peek else ''}
          L_ml:
          {f's_waitcnt vmcnt({P.drw})' if P.peek else ''}""")
    s.wld(12, 2, 8, sV); s.wld(14, 2, 9, sV)
    s.spin()
    s(f"""s_waitcnt vmcnt(0)
          L_mlp:
          v_xor_b32 v16, s{sE}, v12
          v_xor_b32 v17, s{sE}, v13
          v_bitop3_b32 v16, v14, s{sE}, v16 bitop3:0xbe
          v_bitop3_b32 v17, v15, s{sE}, v17 bitop3:0xbe
          v_lshlrev_b32 v16, 16, v16
          v_lshl_or_b32 v16, v17, 24, v16
          v_cmp_ne_u32 vcc, 0, v16
          v_max_i32 v16, v12, v14
          s_cbranch_vccnz L_ml""")
    s.ts('d_ml')
    for i in range(8): opl(i)
    s('L_mlo:')
    def word(a, b):
        for kt in range(a, b):
            for hh in range(2):
                off = kt*4096+hh*2048
                s(f'ds_read_b64_tr_b16 {ar(32+4*kt+2*hh,2)}, v{10 if off<0x8000 else 11} offset:{off if off<0x8000 else off-0x8000}')
    w3 = 16 - wob[3]
    if P.wuve >= 2: s('s_barrier'); uvrd()
    s(f's_cmp_ge_u32 s{sI}, 9\ns_cbranch_scc1 L_nw')
    eloads()
    if P.wuve < 2: s('s_barrier')
    word(0, w3)
    s(f"""s_lshl_b32 m0, s{sW}, 10
          s_add_u32 m0, m0, {w3*4096}
          L_nw:""")
    s.wave_red('v_max_i32', 16, 17)
    s("""v_sub_u32 v12, v12, v16
         v_sub_u32 v14, v14, v16
         v_ashrrev_i32 v12, 16, v12
         v_ashrrev_i32 v14, 16, v14
         v_add_u32 v12, 127, v12
         v_add_u32 v14, 127, v14
         v_max_i32 v12, 0, v12
         v_max_i32 v14, 0, v14
         v_lshlrev_b32 v17, 7, v12
         v_lshlrev_b32 v12, 23, v12
         v_lshlrev_b32 v14, 23, v14""")
    for i in range(8):
        s(f'v_mov_b32_dpp v{40+i}, v17 row_newbcast:{i} {DPP}\nv_mov_b32_dpp v{32+i}, v12 row_newbcast:{i} {DPP}')
    s("""v_mul_f32 v16, v12, v13
         v_fmac_f32 v16, v14, v15""")
    s.wave_red('v_add_f32', 16, 17)
    def opstep(i, cnt, first):
        pm = f's[{sPM+2*i}:{sPM+2*i+1}]'
        if not first: s(f's_mov_b64 exec, {pm}\ns_cbranch_execz L_ops{i}')
        else: s(f's_waitcnt vmcnt({cnt})')
        s.chk16(17, [(64+4*i+d, d) for d in range(4)]); s.test(17, '0x10001')
        s(f"""s_wqm_b64 {pm}, vcc
              s_andn2_b64 exec, exec, {pm}
              s_or_b64 s[{sM}:{sM+1}], s[{sM}:{sM+1}], vcc""")
        for d in range(4):
            s(f'v_dot2c_f32_bf16 v{48+2*d}, v{64+4*i+d}, v{40+i}')
            s(f'v_dot2c_f32_bf16 v{49+2*d}, v{64+4*i+d}, v{32+i}')
        if not first: s(f'L_ops{i}:')
        else: s.fullexec()
    def oppass(ne, items):
        n = 0
        for i in range(8):
            opstep(i, 7-i+ne+n, True)
            k = (len(items)*(i+1)+7)//8
            for f in items[n:k]: f()
            n = k
    def wo1():
        s.dma(27, r1, sT, P.wofl)
        s(f's_add_u32 s{sT}, s{sT}, {32*1152}\ns_add_u32 m0, m0, 4096')
    f3 = 3*sum(fb_[:3])
    s(f"""v_rcp_f32 v16, v16
          s_mov_b64 s[{sM}:{sM+1}], 0
          s_cmp_ge_u32 s{sI}, 9
          s_cbranch_scc1 L_op2""")
    oppass(7, [wo1]*wob[3])
    s('L_ope:')
    s(f"""s_cmp_lg_u64 s[{sM}:{sM+1}], 0
          s_cbranch_scc1 L_opr
          s_mov_b64 exec, -1""")
    s.ts('d_op')
    for e in range(4): s(f'v_permlane32_swap_b32 v{48+e}, v{52+e}')
    for e in range(4): s(f'v_add_f32 v{48+e}, v{48+e}, v{52+e}')
    for e in range(2): s(f'v_permlane16_swap_b32 v{48+e}, v{50+e}')
    for e in range(2): s(f'v_add_f32 v{48+e}, v{48+e}, v{50+e}')
    s(f"""v_cvt_pk_bf16_f32 v48, v48, v49
          {'ds_write_b16 v18, v48' + chr(10) + 'ds_write_b16_d16_hi v18, v48 offset:8' if P.ost else 'ds_write_b32 v18, v48'}
          s_add_u32 s{sT+2}, s{sX}, {CPL}
          s_add_u32 s{sT+3}, s{sX}, {CPG}
          s_mov_b32 s{sM}, 0xffff0000
          s_mov_b32 s{sM+1}, 0xffff0000
          s_waitcnt lgkmcnt(0)
          s_barrier""")
    for j in range(4): s(f'ds_read_b128 {vr(32+4*j,4)}, v19 offset:{j*64}')
    for j in range(4):
        s(f's_waitcnt lgkmcnt({3-j})')
        for c in range(2):
            d = vr(48+4*c, 4)
            s(f'{MF} {d}, {vr(32+4*j,4)}, {ar((j*2+c)*4,4)}, {d if j else 0}')
    s(f"""v_add_f32 v48, v48, v49
          v_add_f32 v50, v50, v51
          v_add_f32 v52, v52, v53
          v_add_f32 v54, v54, v55
          v_add_f32 v48, v48, v50
          v_add_f32 v52, v52, v54
          v_cndmask_b32 v48, v48, v52, s[{sM}:{sM+1}]
          v_mul_f32 v48, v48, v16""")
    s.gather8(12, 48)
    s('s_mov_b64 exec, 0x01010101')
    s.wst(12, 4, 20, sT+2, 0, '')
    s.ts('d_cp')
    s(f"""s_cmp_ge_u32 s{sI}, 9
          s_cbranch_scc1 L_nE2
          s_mov_b64 exec, -1""")
    s(f"""v_lshlrev_b32 v8, 6, v{vP}
          v_lshl_add_u32 v8, v{vGQ}, 4, v8
          s_lshl_b32 s{sT}, s{sG}, 12
          s_add_u32 s{sT}, s{sT}, {CPL}""")
    def cpl():
        for st in range(4): s.wld(32+4*st, 4, vL16 if P.exp & 1 else 8, sT, st*1024)
    cpl()
    s(f"""s_mov_b32 s{sN}, 0
          s_lshl_b32 s{sT+5}, s{sT+4}, 9
          s_lshl_b32 s{sT+1}, s{sG}, 6
          s_add_u32 s{sT+5}, s{sT+5}, s{sT+1}
          s_add_u32 s{sT+5}, s{sT+5}, {TR}
          s_mul_i32 s{sT+1}, s{sG}, 2304
          s_lshl_b32 s{sT+4}, s{sT+4}, 6
          s_add_u32 s{sT+4}, s{sT+4}, s{sT+1}
          s_add_u32 s{sT+4}, s{sT+4}, {T32}
          s_cmp_eq_u32 s{sG}, 0
          s_cselect_b32 s{sT+1}, -1, 0
          s_mov_b32 s{sPM}, 0
          s_mov_b32 s{sPM+1}, -1
          s_waitcnt vmcnt(5)""")
    if wob[3]: s('s_barrier'); word(w3, 16)
    s('L_m2b:')
    s.chk32(9, [24, 25, 28, 29, 30, 31]); s.test(9, '0xff')
    s(f"""s_cbranch_vccnz L_m2
          v_lshlrev_b32 v26, 16, v26
          v_and_b32 v26, s{sT+1}, v26
          v_add_f32 v24, v24, v28
          v_add_f32 v25, v25, v30
          v_add_f32 v24, v24, v29
          v_add_f32 v25, v25, v31
          v_cvt_pk_bf16_f32 v24, v24, v25
          v_and_b32 v25, 0xffff0000, v24
          v_lshlrev_b32 v24, 16, v24
          v_add_f32 v25, 1.0, v25
          v_cvt_pk_bf16_f32 v25, v25, v25
          v_and_b32 v25, 0xffff0000, v25
          v_cndmask_b32 v25, 1.0, v25, s[{sM}:{sM+1}]
          s_branch L_cpb
          L_cp:""")
    cpl()
    s.spin()
    s(f"""s_add_u32 s{sN}, s{sN}, 1
          s_cmp_eq_u32 s{sN}, {NLOC}
          s_cbranch_scc1 L_cpg
          L_cpb:
          s_waitcnt vmcnt(0) lgkmcnt(0)""")
    mf = [f'{MF} {vr(48+4*hd,4)}, {vr(32+4*st,4)}, {ar(32+(hd*4+st)*4,4)}, {vr(48+4*hd,4) if st else 0}' for hd in range(4) for st in range(4)]
    ck = s.cap(s.chk16, 9, [(32+i, i & 3) for i in range(16)]) + s.cap(s.test, 9, '0x10001')
    s.emit(slots(mf[:6], fill(ck, 3)))
    s.again('L_cp')
    s.ts('e_cp')
    def sum4(b): return [f'v_add_f32 v{b}, v{b}, v{b+1}', f'v_add_f32 v{b+2}, v{b+2}, v{b+3}', f'v_add_f32 v{b}, v{b}, v{b+2}']
    L = [sum4(48)[:2], sum4(48)[2:], [], [], sum4(52)[:2], sum4(52)[2:], [f'v_cndmask_b32 v48, v48, v52, s[{sM}:{sM+1}]'], [], sum4(56)[:2], sum4(56)[2:]]
    s.emit(slots(mf[6:], L))
    s.emit(sum4(60))
    s(f"""v_cndmask_b32 v56, v56, v60, s[{sM}:{sM+1}]
          v_cndmask_b32 v48, v48, v56, s[{sPM}:{sPM+1}]""")
    s.xgq('v_add_f32', 48, 49)
    s(f"""v_fma_f32 v48, v48, v24, v26
          v_mul_f32 v49, v48, v25""")
    s.gather8(52, 49)
    s.tag32(48, 48)
    s('s_mov_b64 exec, 0x01010101')
    s.wst(52, 4, 20, sT+5)
    s.wst(12, 4, 20, sT+3)
    s('s_mov_b64 exec, 0xffff')
    s.wst(48, 1, 22, sT+4)
    s.ts('e_tr')
    s('s_branch L_done')
    s('L_xf:\ns_barrier'); ffn_g(s); s(f's_branch L_ft{P.xft}')
    if P.late:
        s('L_late:')
        s.wld(12, 2, 8, sV); s.wld(14, 2, 9, sV)
        for i in range(8): opl(i)
        s(f"""s_waitcnt vmcnt(8)
          v_xor_b32 v16, s{sE}, v12
          v_xor_b32 v17, s{sE}, v13
          v_bitop3_b32 v16, v14, s{sE}, v16 bitop3:0xbe
          v_bitop3_b32 v17, v15, s{sE}, v17 bitop3:0xbe
          v_lshlrev_b32 v16, 16, v16
          v_lshl_or_b32 v16, v17, 24, v16
          v_cmp_ne_u32 vcc, 0, v16
          v_max_i32 v16, v12, v14
          s_cbranch_vccnz L_mln""")
        s.ts('d_ml')
        s('s_branch L_mlo')
    s('L_opr:')
    for i in range(8):
        s(f"""s_mov_b64 exec, s[{sPM+2*i}:{sPM+2*i+1}]
              s_cbranch_execz L_opn{i}""")
        opl(i)
        s(f'L_opn{i}:')
    s.fullexec(); s.spin()
    s(f's_waitcnt vmcnt(0)\ns_mov_b64 s[{sM}:{sM+1}], 0')
    for i in range(8): opstep(i, 0, False)
    s('s_branch L_ope\nL_op2:')
    if fb_[3]:
        s(f's_cmp_ge_u32 s{sI}, 14\ns_cbranch_scc1 L_op3')
    oppass(0, [])
    s('s_branch L_ope')
    if fb_[3]:
        s('L_op3:')
        oppass(0, [(lambda q=q: ffn_tile(s, 0, sT, q)) for q in range(f3, f3+3*fb_[3])])
        s('s_branch L_ope')
    s('L_m2:')
    m2l()
    s.spin()
    s('s_waitcnt vmcnt(0)\ns_branch L_m2b')
    s(f"""L_cpg:
          s_mov_b64 exec, 0x01010101""")
    s.wst(12, 4, 20, sT+3)
    s(f"""s_mov_b64 exec, -1
          s_add_u32 s{sT}, s{sT}, {CPG-CPL}
          s_branch L_cpb""")
    s('L_nE2:')
    s.wst(12, 4, 20, sT+3)
    s(f"""s_mov_b64 exec, -1
          s_cmp_ge_u32 s{sI}, 14
          s_cbranch_scc1 L_xf
          s_sub_u32 s{sU}, s{sI}, 9
          s_lshl3_add_u32 s{sU}, s{sU}, s{sG}
          s_cmp_ge_u32 s{sU}, 36
          s_cbranch_scc1 L_done
          s_cmp_lg_u32 s{sW}, 0
          s_cbranch_scc1 L_done""")
    s.srd(r4, 'out')
    s(f"""s_mul_i32 s{sT}, s{sU}, 7282
          s_lshr_b32 s{sT}, s{sT}, 16
          s_mul_i32 s{sT+1}, s{sT}, 9
          s_sub_u32 s{sT+1}, s{sU}, s{sT+1}
          s_mul_i32 s{sT}, s{sT}, 144
          s_lshr_b32 s{sT+2}, s{sT+1}, 2
          s_lshl_b32 s{sT+2}, s{sT+2}, 6
          s_add_u32 s{sT}, s{sT}, s{sT+2}
          s_and_b32 s{sT+2}, s{sT+1}, 3
          s_lshl2_add_u32 s{sT}, s{sT+2}, s{sT}
          s_cmp_eq_u32 s{sT+1}, 8
          s_cselect_b32 s{sT+2}, 4, 1
          s_cselect_b32 s{sT+3}, 1, 16
          v_and_b32 v8, 3, v{vL}
          v_mul_u32_u24 v9, s{sT+2}, v8
          v_mul_u32_u24 v8, s{sT+3}, v{vGQ}
          v_add3_u32 v9, v9, v8, s{sT}
          v_lshlrev_b32 v10, 2, v9
          v_lshlrev_b32 v9, 1, v9
          v_lshrrev_b32 v11, 2, v{vP}
          v_mul_u32_u24 v11, 2304, v11
          v_add_u32 v11, v11, v10
          s_mov_b32 s{sT+4}, {T32}
          s_mov_b32 s{sT+5}, {T32+4*2304}
          s_mov_b32 s{sT+6}, {MOD2+3*2304}
          s_mov_b32 s{sT+7}, {MOD2+3*2304+9216}
          s_mov_b32 s{sT+3}, {MOD2+3*2304+18432}
          s_mul_i32 s{sT}, s{sU}, 9216
          s_add_u32 s{sT}, s{sT}, {YP}
          s_add_u32 s{sT+1}, s{sT}, 4096
          s_add_u32 s{sT+2}, s{sT}, 8192
          L_t32:""")
    s.wld(24, 1, 11, sT+4); s.wld(25, 1, 11, sT+5); s.wld(26, 1, 10, sT+6); s.wld(27, 1, 10, sT+7); s.wld(28, 1, 10, sT+3)
    s.spin()
    s('s_waitcnt vmcnt(0)')
    s.chk32(15, [24, 25, 26, 27, 28]); s.test(15, '0xff'); s.again('L_t32')
    s(f"""v_add_f32 v24, v24, v25
          v_add_f32_dpp v24, v24, v24 row_ror:4 {DPP}
          v_add_f32_dpp v24, v24, v24 row_ror:8 {DPP}
          v_add_f32 v26, v26, v27
          v_add_f32 v26, v26, v28""")
    s.bfr(24, 24); s.bfr(26, 26)
    s('L_yp:')
    for i in range(9): s.wld(64+4*i, 4, vL16, sT+(i >> 2), (i & 3)*1024)
    s.fullexec(); s.spin()
    s('s_waitcnt vmcnt(0)')
    s.chk32(15, [64+4*i for i in range(9)]); s.test(15, '0xff'); s.againq('L_yp')
    s.ts('z_yp')
    for a, b in ((0,1),(2,3),(4,5),(6,7),(0,8),(2,4),(0,6),(0,2)):
        for h in range(2): s(f'v_pk_add_f32 {vr(64+4*a+2*h,2)}, {vr(64+4*a+2*h,2)}, {vr(64+4*b+2*h,2)}')
    s(f"""v_permlane32_swap_b32 v64, v66
          v_permlane32_swap_b32 v65, v67
          v_add_f32 v64, v64, v66
          v_add_f32 v65, v65, v67
          v_permlane16_swap_b32 v64, v65
          v_add_f32 v64, v64, v65
          v_add_f32_dpp v64, v64, v64 row_ror:4 {DPP}
          v_add_f32_dpp v64, v64, v64 row_ror:8 {DPP}""")
    s.bfr(64, 64)
    s('v_mul_f32 v64, v64, v26')
    s.bfr(64, 64)
    s(f"""v_add_f32 v64, v64, v24
          v_cvt_pk_bf16_f32 v64, v64, v64""")
    s.setexec(0x000f000f, 0x000f000f)
    s(f"""buffer_store_short v64, v9, s[{r4}:{r4+3}], 0 offen
          s_cmp_lg_u32 s{sU}, 0
          s_cbranch_scc1 L_done
          s_mov_b64 exec, 1
          v_mov_b32 v8, 0
          v_mov_b32 v9, s{sE}
          buffer_store_dword v9, v8, s[{rWS}:{rWS+3}], 0 offen sc1
          s_branch L_done""")
```
